```python
import torch

def _softmax(x, axis=-1):
    return torch.softmax(x, dim=axis)
def _gelu(x):
    return torch.nn.functional.gelu(x, approximate="tanh")
def _silu(x):
    return torch.nn.functional.silu(x)
def _sigmoid(x):
    return torch.sigmoid(x)
def _layernorm(x, axis=-1, eps=1e-5):
    m = x.mean(dim=axis, keepdim=True)
    v = x.var(dim=axis, keepdim=True, unbiased=False)
    return (x - m) / torch.sqrt(v + eps)
def _scatter_add(tgt, idx, src, axis=0):
    return tgt.clone().index_add_(axis, idx, src)
def _segment_sum(src, seg, n):
    out = torch.zeros((n,) + src.shape[1:], dtype=src.dtype)
    return out.index_add_(0, seg, src)
def _pad(x, pw):
    flat = tuple(v for pair in reversed(pw) for v in pair)
    return torch.nn.functional.pad(x, flat)

kernel_name = 'sequential_preLN__mha_block_cached__glu_gated_glu__decode'

def setup_inputs():

    _w = (lambda a: (lambda t: t.to(torch.bfloat16) if t.is_floating_point() else t)(torch.as_tensor(a)))
    def _A_setup():
        B, Sq, D = 4, 1, 512
        H, Sk, Dh = 32, 8192, 128
        return {
            "x": _w((lambda *s: torch.randn(*s, dtype=torch.bfloat16) * 0.05)(B, Sq, D)),
            "k_cache": _w((lambda *s: torch.randn(*s, dtype=torch.bfloat16) * 3.2)(B, H, Sk, Dh)),
            "v_cache": _w((lambda *s: torch.randn(*s, dtype=torch.bfloat16) * 0.4)(B, H, Sk, Dh)),
            "wq": _w((lambda *s: torch.randn(*s, dtype=torch.bfloat16) * 3.2)(D, H * Dh) * (D ** -0.5)),
            "wo": _w((lambda *s: torch.randn(*s, dtype=torch.bfloat16) * 0.4)(H * Dh, D) * ((H * Dh) ** -0.5)),
        }
    _A_in = _A_setup()

    def _B_setup():
        B, S, D, F = 4, 1, 512, 1792
        return {
            "x": _w((lambda *s: torch.randn(*s, dtype=torch.bfloat16) * 0.05)(B, S, D)),
            "w_gate": _w((lambda *s: torch.randn(*s, dtype=torch.bfloat16) * 0.1)(D, F)),
            "w_up": _w((lambda *s: torch.randn(*s, dtype=torch.bfloat16) * 0.05)(D, F)),
            "w_down": _w((lambda *s: torch.randn(*s, dtype=torch.bfloat16) * 0.05)(F, D)),
        }
    _B_in = _B_setup()

    return {
        "A_x": _A_in["x"],
        "A_k_cache": _A_in["k_cache"],
        "A_v_cache": _A_in["v_cache"],
        "A_wq": _A_in["wq"],
        "A_wo": _A_in["wo"],
        "B_x": _B_in["x"],
        "B_w_gate": _B_in["w_gate"],
        "B_w_up": _B_in["w_up"],
        "B_w_down": _B_in["w_down"],
    }

def reference(A_x, A_k_cache, A_v_cache, A_wq, A_wo, B_x, B_w_gate, B_w_up, B_w_down):
    def _A_ref(x, k_cache, v_cache, wq, wo):
        B, Sq, D = x.shape
        H, Dh = 32, 128
        q = (lambda x, *d: x.permute(*d))((x @ wq).reshape(B, Sq, H, Dh), 0, 2, 1, 3)
        scores = torch.einsum("bhqd,bhkd->bhqk", q, k_cache) * (Dh ** -0.5)
        p = _softmax(scores, axis=-1)
        o = torch.einsum("bhqk,bhkd->bhqd", p, v_cache)
        return (lambda x, *d: x.permute(*d))(o, 0, 2, 1, 3).reshape(B, Sq, H * Dh) @ wo

    def _B_ref(x, w_gate, w_up, w_down):
        g = torch.einsum("bsd,df->bsf", x, w_gate)
        u = torch.einsum("bsd,df->bsf", x, w_up)
        h = _sigmoid(g) * u
        return torch.einsum("bsf,fd->bsd", h, w_down)

    x = A_x
    h = x + _A_ref(_layernorm(x, axis=-1), A_k_cache, A_v_cache, A_wq, A_wo)
    h2 = h + _B_ref(_layernorm(h, axis=-1), B_w_gate, B_w_up, B_w_down)
    return h2
```

```python
NAME = "sequential_preLN__mha_block_cached__glu_gated_glu__decode"
HEADER_COMMENT = open("cdna_kernels/" + NAME + ".s.ref").read().split("; Override launch geometry")[0]

class Asm:
    def __init__(self):
        self.lines = []
        self.lbl = 0
    def e(self, s):
        for l in s.strip("\n").split("\n"):
            self.lines.append(l)
    def label(self, base="L"):
        self.lbl += 1
        return f"{base}_{self.lbl}"
    def text(self):
        return "\n".join(self.lines) + "\n"
    def kernel_begin(self, name):
        self.e(f".globl {name}\n.p2align 8\n.type {name},@function\n{name}:")
    def descriptor(self, name, vgpr, sgpr, accum=None):
        if accum is None: accum = min(256, (vgpr + 3) // 4 * 4)
        self.e(f""".amdhsa_kernel {name}
  .amdhsa_next_free_vgpr {vgpr}
  .amdhsa_next_free_sgpr {sgpr}
  .amdhsa_accum_offset {accum}
  .amdhsa_group_segment_fixed_size 0
  .amdhsa_kernarg_size 96
  .amdhsa_user_sgpr_count 2
  .amdhsa_user_sgpr_kernarg_segment_ptr 1
  .amdhsa_system_sgpr_workgroup_id_x 1
  .amdhsa_float_denorm_mode_32 3
.end_amdhsa_kernel""")
    def srd(self, d, p, nbytes):
        if d != p:
            self.e(f"s_mov_b32 s{d}, s{p}\ns_mov_b32 s{d+1}, s{p+1}")
        self.e(f"s_mov_b32 s{d+2}, {nbytes:#x}\ns_mov_b32 s{d+3}, 0x20000")
    def rbf(self, x, t=None):
        t = t or x
        self.e(f"v_cvt_pk_bf16_f32 {t}, {x}, {x}\nv_lshlrev_b32 {x}, 16, {t}")
    def wave_reduce(self, v, s, op="add"):
        ins = f"v_{op}_f32_dpp"
        self.e("s_nop 1")
        for ctl in ("quad_perm:[1,0,3,2] row_mask:0xf", "quad_perm:[2,3,0,1] row_mask:0xf", "row_half_mirror row_mask:0xf", "row_mirror row_mask:0xf",
                    "row_bcast:15 row_mask:0xa", "row_bcast:31 row_mask:0xc"):
            self.e(f"{ins} {v}, {v}, {v} {ctl} bank_mask:0xf\ns_nop 1")
        self.e(f"v_readlane_b32 {s}, {v}, 63\ns_nop 3")
    def layernorm8(self, x, t, s0, s1):
        X = [f"v{x+i}" for i in range(8)]
        T = [f"v{t+i}" for i in range(4)]
        e = self.e
        e(f"v_add_f32 {T[0]}, {X[0]}, {X[1]}")
        for i in range(2, 8): e(f"v_add_f32 {T[0]}, {T[0]}, {X[i]}")
        self.wave_reduce(T[0], s0)
        e(f"v_mov_b32 {T[1]}, {s0}")
        e(f"v_mul_f32 {T[1]}, 0x3b000000, {T[1]}")
        e(f"v_mov_b32 {T[0]}, 0")
        for i in range(8):
            e(f"v_sub_f32 {T[2]}, {X[i]}, {T[1]}")
            e(f"v_fmac_f32 {T[0]}, {T[2]}, {T[2]}")
        self.wave_reduce(T[0], s1)
        e(f"v_mov_b32 {T[2]}, {s1}")
        e(f"v_mul_f32 {T[2]}, 0x3b000000, {T[2]}")
        self.rbf(T[1]); self.rbf(T[2])
        e(f"v_add_f32 {T[2]}, 0x3727c5ac, {T[2]}")
        self.rbf(T[2])
        e(f"v_sqrt_f32 {T[2]}, {T[2]}\ns_nop 0")
        self.rbf(T[2])
        e(f"v_rcp_f32 {T[2]}, {T[2]}\ns_nop 0")
        for i in range(8):
            e(f"v_sub_f32 {X[i]}, {X[i]}, {T[1]}")
            self.rbf(X[i])
            e(f"v_mul_f32 {X[i]}, {X[i]}, {T[2]}")
            self.rbf(X[i])
```

```python
import sys
from asmlib import *
WS_Q, WS_STAT, WS_OP, WS_H, WS_ACT, WS_SC = 0, 0x10000, 0x20000, 0x40000, 0x44000, 0x100000
WSZ = 0x40000000

def naive_gemv(a, K, ld, srd, vcol, acc, lds_base, w=40, xa=56, xv=48):
    L = a.label("G")
    a.e(f"v_mov_b32 {acc}, 0\nv_mov_b32 v{xa}, {lds_base}\ns_mov_b32 s20, 0\ns_mov_b32 s21, {K//8}")
    a.e(f"{L}:")
    for j in range(8):
        a.e(f"buffer_load_ushort v{w+j}, {vcol}, {srd}, s20 offen\ns_add_u32 s20, s20, {ld}")
    a.e(f"ds_read_b128 v[{xv}:{xv+3}], v{xa}\nds_read_b128 v[{xv+4}:{xv+7}], v{xa} offset:16\nv_add_u32 v{xa}, 32, v{xa}")
    a.e("s_waitcnt vmcnt(0) lgkmcnt(0)")
    for j in range(8):
        a.e(f"v_lshlrev_b32 v{w+j}, 16, v{w+j}\nv_fmac_f32 {acc}, v{w+j}, v{xv+j}")
    a.e(f"s_sub_u32 s21, s21, 1\ns_cmp_lg_u32 s21, 0\ns_cbranch_scc1 {L}")

def gen(exact_p=2, round_o=1, perturb=None, mim=1):
    a = Asm()
    a.e(HEADER_COMMENT.rstrip("\n"))
    a.e("; @launch kernel=qproj_kernel grid=(64,1,1) block=(256,1,1) lds=2048")
    a.e("; @launch kernel=kphase_kernel grid=(256,1,1) block=(256,1,1) lds=16640")
    a.e("; @launch kernel=vphase_kernel grid=(256,1,1) block=(256,1,1) lds=20480")
    a.e("; @launch kernel=oproj_kernel grid=(8,1,1) block=(256,1,1) lds=16384")
    a.e("; @launch kernel=glu1_kernel grid=(28,1,1) block=(256,1,1) lds=2048")
    a.e("; @launch kernel=down_kernel grid=(8,1,1) block=(256,1,1) lds=7168")
    a.e('.amdgcn_target "amdgcn-amd-amdhsa--gfx950"\n.text')
    e = a.e
    a.kernel_begin("qproj_kernel")
    e("s_cmp_ge_u32 s2, 64\ns_cbranch_scc1 Lq_done")
    e("s_load_dwordx2 s[4:5], s[0:1], 0\ns_load_dwordx2 s[8:9], s[0:1], 24\ns_load_dwordx2 s[12:13], s[0:1], 88")
    e("v_and_b32 v1, 63, v0\nv_lshlrev_b32 v1, 4, v1")
    e("s_lshr_b32 s16, s2, 4\ns_and_b32 s17, s2, 15\ns_lshl_b32 s18, s16, 10")
    e("s_waitcnt lgkmcnt(0)")
    a.srd(4, 4, 4096); a.srd(8, 8, 512*4096*2); a.srd(12, 12, WSZ)
    e("buffer_load_dwordx4 v[4:7], v1, s[4:7], s18 offen\ns_waitcnt vmcnt(0)")
    for i in range(4):
        e(f"v_lshlrev_b32 v{8+2*i}, 16, v{4+i}\nv_and_b32 v{9+2*i}, 0xffff0000, v{4+i}")
    a.layernorm8(8, 16, "s22", "s23")
    e("v_lshlrev_b32 v2, 1, v1\nds_write_b128 v2, v[8:11]\nds_write_b128 v2, v[12:15] offset:16\ns_waitcnt lgkmcnt(0)\ns_barrier")
    e("s_lshl_b32 s17, s17, 8\nv_add_u32 v3, s17, v0\nv_lshlrev_b32 v3, 1, v3")
    naive_gemv(a, 512, 8192, "s[8:11]", "v3", "v20", 0)
    e("v_cvt_pk_bf16_f32 v20, v20, v20\ns_lshl_b32 s18, s16, 13")
    e(f"buffer_store_short v20, v3, s[12:15], s18 offen offset:{WS_Q}")
    e("Lq_done:\ns_endpgm")
    a.kernel_begin("kphase_kernel")
    e("s_cmp_ge_u32 s2, 256\ns_cbranch_scc1 Lk_done")
    e("s_load_dwordx2 s[4:5], s[0:1], 8\ns_load_dwordx2 s[12:13], s[0:1], 88")
    e("v_and_b32 v1, 63, v0\nv_lshlrev_b32 v1, 4, v1\nv_lshrrev_b32 v2, 6, v0\ns_nop 0\nv_readfirstlane_b32 s3, v2")
    e("v_and_b32 v3, 15, v0\nv_lshlrev_b32 v3, 4, v3")
    e("s_mov_b32 s40, 0xaaaaaaaa\ns_mov_b32 s41, 0xaaaaaaaa\ns_mov_b32 s42, 0xcccccccc\ns_mov_b32 s43, 0xcccccccc")
    e("s_lshl_b32 s22, s2, 20\ns_lshl_b32 s16, s3, 12\ns_add_u32 s22, s22, s16")
    e("s_lshr_b32 s16, s2, 1\ns_lshl_b32 s16, s16, 8")
    e("s_waitcnt lgkmcnt(0)")
    a.srd(4, 4, 1 << 28); a.srd(12, 12, WSZ)
    e(f"buffer_load_dwordx4 v[4:7], v3, s[12:15], s16 offen offset:{WS_Q}")
    B = 44
    def buf(i): return f"v[{B+4*i}:{B+4*i+3}]"
    def ld(i, srd="s[4:7]"):
        e(f"buffer_load_dwordx4 {buf(i)}, v1, {srd}, s22 offen offset:{(i%4)*1024} nt")
        if i % 4 == 3: e("s_add_u32 s22, s22, 16384")
    for i in range(16): ld(i)
    e("v_mov_b32 v2, 0xff800000")
    e("s_lshl_b32 s16, s3, 12\nv_lshrrev_b32 v3, 2, v1\nv_add_u32 v3, s16, v3")
    def A(i): return f"v{8+i}"
    def kblock(last):
        for i in range(16):
            e(f"s_waitcnt vmcnt({15 if not last else 15-i})")
            for j in range(4):
                e(f"v_dot2_f32_bf16 {A(i)}, v{B+4*i+j}, v{4+j}, {'0' if j == 0 else A(i)}")
            if not last: ld(i)
        for i in range(8):
            e(f"v_add_f32_dpp {A(i)}, {A(i)}, {A(i)} row_ror:8 row_mask:0xf bank_mask:0x3")
            e(f"v_add_f32_dpp {A(i)}, {A(i+8)}, {A(i+8)} row_ror:8 row_mask:0xf bank_mask:0xc")
        for i in range(4):
            e(f"v_add_f32_dpp {A(i)}, {A(i)}, {A(i)} row_half_mirror row_mask:0xf bank_mask:0x5")
            e(f"v_add_f32_dpp {A(i)}, {A(i+4)}, {A(i+4)} row_half_mirror row_mask:0xf bank_mask:0xa")
        e(f"v_cndmask_b32 v24, {A(1)}, {A(0)}, s[40:41]\nv_cndmask_b32 v25, {A(0)}, {A(1)}, s[40:41]")
        e(f"v_cndmask_b32 v26, {A(3)}, {A(2)}, s[40:41]\nv_cndmask_b32 v27, {A(2)}, {A(3)}, s[40:41]")
        e("v_add_f32_dpp v25, v24, v25 quad_perm:[1,0,3,2] row_mask:0xf bank_mask:0xf")
        e("v_add_f32_dpp v27, v26, v27 quad_perm:[1,0,3,2] row_mask:0xf bank_mask:0xf")
        e("v_cndmask_b32 v24, v27, v25, s[42:43]\nv_cndmask_b32 v26, v25, v27, s[42:43]\ns_nop 0")
        e("v_add_f32_dpp v26, v24, v26 quad_perm:[2,3,0,1] row_mask:0xf bank_mask:0xf")
        if mim: a.rbf("v26")
        e("v_mul_f32 v26, 0x3db504f3, v26")
        if mim: a.rbf("v26")
        e("v_max_f32 v2, v2, v26\nds_write_b32 v3, v26\nv_add_u32 v3, 256, v3")
    e("s_mov_b32 s23, 15\nLk_loop:")
    kblock(False)
    e("s_sub_u32 s23, s23, 1\ns_cmp_lg_u32 s23, 0\ns_cbranch_scc1 Lk_loop")
    kblock(True)
    a.wave_reduce("v2", "s24", "max")
    e("v_mov_b32 v2, s24\ns_lshl_b32 s16, s3, 2\nv_mov_b32 v24, s16\nds_write_b32 v24, v2 offset:16384\ns_waitcnt lgkmcnt(0)\ns_barrier")
    e("v_mov_b32 v24, 0\nds_read_b128 v[28:31], v24 offset:16384")
    e("v_subrev_u32 v3, 4096, v3")
    for k in range(16): e(f"ds_read_b32 v{B+k}, v3 offset:{k*256}")
    e("s_waitcnt lgkmcnt(0)\nv_max_f32 v28, v28, v29\nv_max3_f32 v28, v28, v30, v31")
    e(f"s_lshl_b32 s16, s2, 14\ns_add_u32 s16, s16, {WS_SC}")
    for k in range(16): e(f"buffer_store_dword v{B+k}, v3, s[12:15], s16 offen offset:{k*256}")
    e("v_mov_b32 v2, 0")
    for k in range(16):
        e(f"v_sub_f32 v24, v{B+k}, v28\nv_mul_f32 v24, 0x3fb8aa3b, v24\nv_exp_f32 v24, v24\ns_nop 0\nv_add_f32 v2, v2, v24")
    a.wave_reduce("v2", "s24", "add")
    e("v_mov_b32 v2, s24\ns_lshl_b32 s16, s3, 2\nv_mov_b32 v24, s16\nds_write_b32 v24, v2 offset:16400\ns_waitcnt lgkmcnt(0)\ns_barrier")
    e("v_mov_b32 v24, 0\nds_read_b128 v[32:35], v24 offset:16400\ns_waitcnt lgkmcnt(0)")
    e("v_add_f32 v32, v32, v33\nv_add_f32 v34, v34, v35\nv_add_f32 v29, v32, v34")
    e("v_cmp_eq_u32 vcc, 0, v0\ns_and_saveexec_b64 s[30:31], vcc\ns_cbranch_execz Lk_done")
    e(f"s_lshl_b32 s16, s2, 3\ns_add_u32 s16, s16, {WS_STAT}\nbuffer_store_dwordx2 v[28:29], v24, s[12:15], s16 offen")
    e("Lk_done:\ns_endpgm")
    a.kernel_begin("vphase_kernel")
    e("s_cmp_ge_u32 s2, 256\ns_cbranch_scc1 Lv_done")
    e("s_load_dwordx2 s[4:5], s[0:1], 16\ns_load_dwordx2 s[12:13], s[0:1], 88")
    e("v_and_b32 v1, 63, v0\nv_lshlrev_b32 v1, 4, v1\nv_lshrrev_b32 v2, 6, v0\ns_nop 0\nv_readfirstlane_b32 s3, v2")
    e("s_lshl_b32 s22, s2, 20\ns_lshl_b32 s16, s3, 12\ns_add_u32 s22, s22, s16")
    e("s_lshl_b32 s16, s3, 12\nv_lshrrev_b32 v3, 2, v1\nv_add_u32 v3, s16, v3")
    e("s_waitcnt lgkmcnt(0)")
    a.srd(4, 4, 1 << 28); a.srd(12, 12, WSZ)
    e(f"s_lshl_b32 s16, s2, 14\ns_add_u32 s16, s16, {WS_SC}")
    for k in range(16): e(f"buffer_load_dword v{8+k}, v3, s[12:15], s16 offen offset:{k*256}")
    e(f"s_lshr_b32 s16, s2, 1\ns_lshl_b32 s16, s16, 4\ns_add_u32 s16, s16, {WS_STAT}\nv_mov_b32 v24, 0")
    e("buffer_load_dwordx4 v[28:31], v24, s[12:15], s16 offen")
    for i in range(16): ld(i)
    e("v_and_b32 v2, 15, v0")
    for r in range(4):
        e(f"v_mov_b32 v{4+r}, 0\nv_mov_b32 v24, 0xffff\nv_cmp_eq_u32 vcc, {2*r}, v2\ns_nop 1\nv_cndmask_b32 v{4+r}, v{4+r}, v24, vcc")
        e(f"v_mov_b32 v24, 0xffff0000\nv_cmp_eq_u32 vcc, {2*r+1}, v2\ns_nop 1\nv_cndmask_b32 v{4+r}, v{4+r}, v24, vcc")
    e("s_waitcnt vmcnt(16)")
    e("v_max_f32 v32, v28, v30")
    e("v_sub_f32 v33, v28, v32\nv_mul_f32 v33, 0x3fb8aa3b, v33\nv_exp_f32 v33, v33")
    e("v_sub_f32 v34, v30, v32\nv_mul_f32 v34, 0x3fb8aa3b, v34\nv_exp_f32 v34, v34\ns_nop 0")
    e("v_mul_f32 v35, v33, v29\nv_fmac_f32 v35, v34, v31\nv_rcp_f32 v35, v35\ns_nop 0")
    if exact_p == 2:
        e("v_mov_b32 v36, v32\nv_mov_b32 v37, v35\nv_mov_b32 v38, 1.0")
    else:
        e("s_and_b32 s16, s2, 1\ns_cmp_eq_u32 s16, 0\ns_cselect_b64 vcc, -1, 0\ns_nop 1")
        e("v_cndmask_b32 v36, v30, v28, vcc\nv_cndmask_b32 v38, v34, v33, vcc\nv_mul_f32 v38, v38, v35\nv_mov_b32 v37, 1.0")
    for k in range(16):
        e(f"v_sub_f32 v24, v{8+k}, v36\nv_mul_f32 v24, 0x3fb8aa3b, v24\nv_exp_f32 v24, v24\ns_nop 0\nv_mul_f32 v24, v24, v37")
        e(f"v_cvt_pk_bf16_f32 v24, v24, v24\nds_write_b32 v3, v24 offset:{k*256}")
    e("v_mov_b32 v8, 0\nv_mov_b32 v9, 0\nv_mov_b32 v10, 0\nv_mov_b32 v11, 0")
    e("s_waitcnt lgkmcnt(0)\nds_read_b32 v2, v3\nv_add_u32 v3, 256, v3")
    def vblock(last):
        e("s_waitcnt lgkmcnt(0)\nv_mov_b32 v24, v2")
        if not last: e("ds_read_b32 v2, v3\nv_add_u32 v3, 256, v3")
        else: e("s_nop 1")
        for i in range(16):
            bb = 12 + 4 * (i & 1)
            for r in range(4):
                e(f"v_and_b32_dpp v{bb+r}, v24, v{4+r} row_newbcast:{i} row_mask:0xf bank_mask:0xf")
            e(f"s_waitcnt vmcnt({15 if not last else 15-i})\ns_nop 0")
            e(f"v_mfma_f32_16x16x32_bf16 v[8:11], {buf(i)}, v[{bb}:{bb+3}], v[8:11]")
            if not last: ld(i)
    e("s_mov_b32 s23, 15\nLv_loop:")
    vblock(False)
    e("s_sub_u32 s23, s23, 1\ns_cmp_lg_u32 s23, 0\ns_cbranch_scc1 Lv_loop")
    vblock(True)
    e("v_and_b32 v2, 7, v0\nv_bfe_u32 v24, v0, 4, 2\nv_lshlrev_b32 v24, 5, v24\nv_add_u32 v2, v2, v24\nv_bfe_u32 v24, v0, 3, 1\nv_lshl_add_u32 v2, v24, 7, v2\nv_lshlrev_b32 v2, 2, v2")
    e("s_lshl_b32 s16, s3, 10\nv_add_u32 v2, s16, v2\ns_nop 7")
    for r in range(4): e(f"ds_write_b32 v2, v{8+r} offset:{16384+32*r}")
    e("s_waitcnt lgkmcnt(0)\ns_barrier")
    e("v_cmp_gt_u32 vcc, 128, v0\ns_and_saveexec_b64 s[30:31], vcc\ns_cbranch_execz Lv_done")
    e("v_lshlrev_b32 v2, 2, v0")
    for w in range(4): e(f"ds_read_b32 v{12+w}, v2 offset:{16384+1024*w}")
    e("s_waitcnt lgkmcnt(0)\nv_add_f32 v12, v12, v13\nv_add_f32 v14, v14, v15\nv_add_f32 v12, v12, v14\nv_mul_f32 v12, v12, v38")
    e(f"s_lshl_b32 s16, s2, 9\ns_add_u32 s16, s16, {WS_OP}\nbuffer_store_dword v12, v2, s[12:15], s16 offen")
    e("Lv_done:\ns_endpgm")
    a.kernel_begin("oproj_kernel")
    e("s_cmp_ge_u32 s2, 8\ns_cbranch_scc1 Lo_done")
    e("s_load_dwordx2 s[4:5], s[0:1], 0\ns_load_dwordx2 s[8:9], s[0:1], 32\ns_load_dwordx2 s[12:13], s[0:1], 88")
    e("s_lshr_b32 s16, s2, 1\ns_and_b32 s17, s2, 1")
    e("s_waitcnt lgkmcnt(0)")
    a.srd(4, 4, 4096); a.srd(8, 8, 512*4096*2); a.srd(12, 12, WSZ)
    e("v_lshrrev_b32 v1, 7, v0\nv_lshlrev_b32 v1, 10, v1\nv_and_b32 v2, 127, v0\nv_lshl_add_u32 v1, v2, 2, v1")
    e(f"s_lshl_b32 s18, s16, 15\ns_add_u32 s18, s18, {WS_OP}\nv_lshlrev_b32 v2, 2, v0")
    for j in range(16):
        e(f"buffer_load_dword v4, v1, s[12:15], s18 offen\nbuffer_load_dword v5, v1, s[12:15], s18 offen offset:512\ns_add_u32 s18, s18, 2048\ns_waitcnt vmcnt(0)\nv_add_f32 v4, v4, v5")
        if round_o: a.rbf("v4")
        e(f"ds_write_b32 v2, v4 offset:{j*1024}")
    e("s_waitcnt lgkmcnt(0)\ns_barrier")
    e("s_lshl_b32 s17, s17, 8\nv_add_u32 v3, s17, v0\nv_lshlrev_b32 v3, 1, v3")
    naive_gemv(a, 4096, 1024, "s[8:11]", "v3", "v20", 0)
    a.rbf("v20")
    e("s_lshl_b32 s18, s16, 10\nbuffer_load_ushort v4, v3, s[4:7], s18 offen\ns_waitcnt vmcnt(0)\nv_lshlrev_b32 v4, 16, v4\nv_add_f32 v20, v20, v4")
    a.rbf("v20")
    e(f"v_lshlrev_b32 v3, 1, v3\ns_lshl_b32 s18, s16, 11\ns_add_u32 s18, s18, {WS_H}\nbuffer_store_dword v20, v3, s[12:15], s18 offen")
    e("Lo_done:\ns_endpgm")
    a.kernel_begin("glu1_kernel")
    e("s_cmp_ge_u32 s2, 28\ns_cbranch_scc1 Lg_done")
    e("s_load_dwordx2 s[4:5], s[0:1], 48\ns_load_dwordx2 s[8:9], s[0:1], 56\ns_load_dwordx2 s[12:13], s[0:1], 88")
    e("s_and_b32 s16, s2, 3\ns_lshr_b32 s17, s2, 2")
    e("v_and_b32 v1, 63, v0\nv_lshlrev_b32 v1, 5, v1")
    e("s_waitcnt lgkmcnt(0)")
    a.srd(4, 4, 512*1792*2); a.srd(8, 8, 512*1792*2); a.srd(12, 12, WSZ)
    e(f"s_lshl_b32 s18, s16, 11\ns_add_u32 s18, s18, {WS_H}")
    e("buffer_load_dwordx4 v[8:11], v1, s[12:15], s18 offen\nbuffer_load_dwordx4 v[12:15], v1, s[12:15], s18 offen offset:16\ns_waitcnt vmcnt(0)")
    a.layernorm8(8, 16, "s22", "s23")
    e("ds_write_b128 v1, v[8:11]\nds_write_b128 v1, v[12:15] offset:16\ns_waitcnt lgkmcnt(0)\ns_barrier")
    e("s_lshl_b32 s17, s17, 8\nv_add_u32 v3, s17, v0\nv_lshlrev_b32 v3, 1, v3")
    naive_gemv(a, 512, 3584, "s[4:7]", "v3", "v20", 0)
    naive_gemv(a, 512, 3584, "s[8:11]", "v3", "v21", 0)
    a.rbf("v20"); a.rbf("v21")
    e("v_mul_f32 v20, 0xbfb8aa3b, v20\nv_exp_f32 v20, v20\ns_nop 0\nv_add_f32 v20, 1.0, v20\nv_rcp_f32 v20, v20\ns_nop 0")
    a.rbf("v20")
    e("v_mul_f32 v20, v20, v21")
    a.rbf("v20")
    e(f"v_lshlrev_b32 v3, 1, v3\ns_mul_i32 s18, s16, 7168\ns_add_u32 s18, s18, {WS_ACT}\nbuffer_store_dword v20, v3, s[12:15], s18 offen")
    e("Lg_done:\ns_endpgm")
    a.kernel_begin("down_kernel")
    e("s_cmp_ge_u32 s2, 8\ns_cbranch_scc1 Ld_done")
    e("s_load_dwordx2 s[4:5], s[0:1], 72\ns_load_dwordx2 s[8:9], s[0:1], 64\ns_load_dwordx2 s[12:13], s[0:1], 88")
    e("s_lshr_b32 s16, s2, 1\ns_and_b32 s17, s2, 1")
    e("s_waitcnt lgkmcnt(0)")
    a.srd(4, 4, 4096); a.srd(8, 8, 512*1792*2); a.srd(12, 12, WSZ)
    e(f"s_mul_i32 s18, s16, 7168\ns_add_u32 s18, s18, {WS_ACT}\nv_lshlrev_b32 v2, 2, v0")
    for j in range(7):
        e(f"buffer_load_dword v4, v2, s[12:15], s18 offen\ns_add_u32 s18, s18, 1024\ns_waitcnt vmcnt(0)\nds_write_b32 v2, v4 offset:{j*1024}")
    e("s_waitcnt lgkmcnt(0)\ns_barrier")
    e("s_lshl_b32 s17, s17, 8\nv_add_u32 v3, s17, v0\nv_lshlrev_b32 v3, 1, v3")
    naive_gemv(a, 1792, 1024, "s[8:11]", "v3", "v20", 0)
    a.rbf("v20")
    e(f"v_lshlrev_b32 v5, 1, v3\ns_lshl_b32 s18, s16, 11\ns_add_u32 s18, s18, {WS_H}\nbuffer_load_dword v4, v5, s[12:15], s18 offen\ns_waitcnt vmcnt(0)\nv_add_f32 v20, v20, v4")
    if perturb is not None:
        import struct
        e(f"v_mul_f32 v20, {struct.unpack('<I', struct.pack('<f', perturb))[0]:#x}, v20")
    e("v_cvt_pk_bf16_f32 v20, v20, v20\ns_lshl_b32 s18, s16, 10\nbuffer_store_short v20, v3, s[4:7], s18 offen")
    e("Ld_done:\ns_endpgm")
    e('.section .rodata,"a"\n.p2align 6')
    for k, v in (("qproj_kernel", 64), ("kphase_kernel", 108), ("vphase_kernel", 108), ("oproj_kernel", 64), ("glu1_kernel", 64), ("down_kernel", 64)):
        a.descriptor(k, v, 48)
        e(".p2align 6")
    return a.text()

if __name__ == "__main__":
    import os
    os.makedirs("v0", exist_ok=True)
    open("v0/v0_exact.s", "w").write(gen())
    open("v0/v0_plocal.s", "w").write(gen(exact_p=1))
    open("v0/v0_plocal_noro.s", "w").write(gen(exact_p=1, round_o=0))
    open("v0/v0_exact_noro.s", "w").write(gen(round_o=0))
    open("v0/v0_nomim.s", "w").write(gen(exact_p=1, round_o=0, mim=0))
    for p in (1.005, 1.01, 1.02, 1.03, 1.05, 1.1):
        open(f"v0/v0_pert{p}.s", "w").write(gen(perturb=p))
```

```python
import sys
from asmlib import *
WSZ = 0x40000000
WS_O, WS_Y, WS_H, WS_D, WS_Q, WS_EP, WS_TK, WS_ST = 0x000000, 0x040000, 0x100000, 0x110000, 0x180000, 0x280000, 0x290000, 0x300000
NG = 56
LOG2E = "0x3fb8aa3b"
L_XD = 0
L_QP = 8192
L_OA = 10240
L_ML = 14336
L_PR = 14368
L_HN = 14400
L_AC = 18560
L_TR = 19584
LDS_BYTES = L_TR + 65536

def gen(stamps=0, sleep=2, wf="nt", wqf="", prio=3, lsleep=16, NS=10, qsleep=4, kfirst=8, nogw=0, hexit=0, dyn=1, s5sleep=4, gst=0, noq=0, D=16, lite=0, map1=0, nods=0, hsleep=3, kf="nt", vf="nt"):
    NM4 = 4 * (32 - 2 * NS)
    a = Asm(); e = a.e
    KN = NAME + "_kernel"
    e(HEADER_COMMENT.rstrip("\n"))
    e(f"; @launch grid=(256,1,1) block=(512,1,1) lds={LDS_BYTES}")
    e('.amdgcn_target "amdgcn-amd-amdhsa--gfx950"\n.text')
    a.kernel_begin(KN)
    def fstamp(reg="v62"):
        if stamps:
            e(f"s_memrealtime s[68:69]\ns_waitcnt lgkmcnt(0)\nv_writelane_b32 {reg}, s68, m0\ns_add_u32 m0, m0, 1")
    def fstamp_store(reg, off):
        if stamps:
            e(f"s_mov_b64 exec, -1\nv_and_b32 v2, 63, v0\nv_lshlrev_b32 v2, 2, v2\ns_lshl_b32 s41, s2, 8\ns_add_u32 s41, s41, {WS_ST+off}\nbuffer_store_dword {reg}, v2, s[12:15], s41 offen")
    def allsum(v, t, op="add"):
        e("s_nop 1")
        for ctl in ("quad_perm:[1,0,3,2]", "quad_perm:[2,3,0,1]", "row_half_mirror", "row_mirror"):
            e(f"v_{op}_f32_dpp {v}, {v}, {v} {ctl} row_mask:0xf bank_mask:0xf\ns_nop 1")
        e(f"v_mov_b32 {t}, {v}\ns_nop 1\nv_permlane16_swap_b32 {v}, {t}\ns_nop 1\nv_{op}_f32 {v}, {v}, {t}\nv_mov_b32 {t}, {v}\ns_nop 1\nv_permlane32_swap_b32 {v}, {t}\ns_nop 1\nv_{op}_f32 {v}, {v}, {t}")
    def ln8(X, T):
        c, s1, s2, t1, t2, u = (f"v{T+i}" for i in range(6))
        e(f"v_readfirstlane_b32 s40, v{X}\ns_nop 1")
        e(f"v_subrev_f32 {s1}, s40, v{X}\nv_mul_f32 {s2}, {s1}, {s1}")
        for i in range(1, 8):
            e(f"v_subrev_f32 {u}, s40, v{X+i}\nv_add_f32 {s1}, {s1}, {u}\nv_fmac_f32 {s2}, {u}, {u}")
        e("s_nop 0")
        for ctl in ("quad_perm:[1,0,3,2]", "quad_perm:[2,3,0,1]", "row_half_mirror", "row_mirror"):
            e(f"v_add_f32_dpp {s1}, {s1}, {s1} {ctl} row_mask:0xf bank_mask:0xf\nv_add_f32_dpp {s2}, {s2}, {s2} {ctl} row_mask:0xf bank_mask:0xf\ns_nop 0")
        for sw in ("v_permlane16_swap_b32", "v_permlane32_swap_b32"):
            e(f"v_mov_b32 {t1}, {s1}\nv_mov_b32 {t2}, {s2}\ns_nop 0\n{sw} {s1}, {t1}\n{sw} {s2}, {t2}\ns_nop 0\nv_add_f32 {s1}, {s1}, {t1}\nv_add_f32 {s2}, {s2}, {t2}")
        e(f"v_mul_f32 {s1}, 0x3b000000, {s1}\nv_mul_f32 {s2}, 0x3b000000, {s2}\nv_fma_f32 {s2}, -{s1}, {s1}, {s2}\nv_max_f32 {s2}, 0, {s2}\nv_add_f32 {s1}, s40, {s1}")
        a.rbf(s2); a.rbf(s1)
        e(f"v_add_f32 {s2}, 0x3727c5ac, {s2}"); a.rbf(s2)
        e(f"v_sqrt_f32 {s2}, {s2}")
        for i in range(8): e(f"v_sub_f32 v{X+i}, v{X+i}, {s1}")
        a.rbf(s2)
        e(f"v_rcp_f32 {s2}, {s2}")
        for i in range(4): e(f"v_cvt_pk_bf16_f32 v{X+2*i}, v{X+2*i}, v{X+2*i+1}")
        for i in range(4): e(f"v_and_b32 v{X+2*i+1}, 0xffff0000, v{X+2*i}\nv_lshlrev_b32 v{X+2*i}, 16, v{X+2*i}")
        for i in range(8): e(f"v_mul_f32 v{X+i}, v{X+i}, {s2}")
        for i in range(4): e(f"v_cvt_pk_bf16_f32 v{X+i}, v{X+2*i}, v{X+2*i+1}")
    def masks():
        for r in range(4):
            e(f"v_mov_b32 v{8+r}, 0\nv_mov_b32 v28, 0xffff\nv_cmp_eq_u32 vcc, {2*r}, v3\ns_nop 1\nv_cndmask_b32 v{8+r}, v{8+r}, v28, vcc")
            e(f"v_mov_b32 v28, 0xffff0000\nv_cmp_eq_u32 vcc, {2*r+1}, v3\ns_nop 1\nv_cndmask_b32 v{8+r}, v{8+r}, v28, vcc")

    e("s_cmp_ge_u32 s2, 256\ns_cbranch_scc1 L_end")
    if stamps: e("s_mov_b32 m0, 0\nv_mov_b32 v62, 0\nv_mov_b32 v63, 0")
    e("s_load_dwordx4 s[4:7], s[0:1], 8")
    e("s_load_dwordx4 s[44:47], s[0:1], 80")
    e("s_load_dwordx2 s[20:21], s[0:1], 0")
    e("s_load_dwordx4 s[24:27], s[0:1], 24")
    e("v_and_b32 v1, 63, v0\nv_lshrrev_b32 v2, 6, v0\nv_lshlrev_b32 v1, 4, v1\nv_readfirstlane_b32 s3, v2")
    e("s_mov_b32 s36, 0xaaaaaaaa\ns_mov_b32 s37, 0xaaaaaaaa\ns_mov_b32 s38, 0xcccccccc\ns_mov_b32 s39, 0xcccccccc")
    e("s_lshr_b32 s40, s2, 1\ns_xor_b32 s41, s40, s2\ns_and_b32 s41, s41, 1\ns_and_b32 s48, s40, 1")
    e("s_bfe_u32 s40, s2, 0x10002\ns_lshl_b32 s40, s40, 1\ns_or_b32 s77, s41, s40")
    e("s_lshr_b32 s51, s2, 3\ns_lshl_b32 s51, s51, 2\ns_add_u32 s51, s51, s77\ns_and_b32 s49, s51, 31\ns_lshr_b32 s50, s2, 6")
    e("v_bfe_u32 v2, v0, 4, 2\nv_and_b32 v3, 15, v0")
    e("s_cmp_ge_u32 s3, 4\ns_cbranch_scc1 L_helper")
    fstamp()
    e("s_lshl_b32 s54, s51, 21")
    def setoff(k, dst="s52"):
        e(f"s_sub_u32 s40, 127, {k}\ns_cmp_eq_u32 s48, 0\ns_cselect_b32 s40, {k}, s40\ns_lshr_b32 s41, s40, 2\ns_lshl_b32 s41, s41, 16\ns_and_b32 s40, s40, 3\ns_lshl_b32 s40, s40, 12\ns_add_u32 {dst}, s54, s41\ns_add_u32 {dst}, {dst}, s40")
    setoff("s3")
    e("s_mov_b32 s53, 0x10000\ns_cmp_eq_u32 s48, 0\ns_cselect_b32 s53, s53, 0xffff0000\ns_cselect_b32 s55, 1, 0x10000\ns_cselect_b32 s56, 0, 16")
    e("s_waitcnt lgkmcnt(0)\ns_mov_b32 s8, s6\ns_mov_b32 s9, s7")
    a.srd(4, 4, 1 << 28); a.srd(8, 8, 1 << 28)
    if stamps: a.srd(12, 46, WSZ)
    RA, RB, RC = 128, 192, 64
    def ld(kind, i, rb, off):
        sr = "s22" if kind == "K" else "s23"
        if i % 4 == 0: e(f"s_add_u32 {sr}, {off}, {(i//4)*16384}")
        e(f"buffer_load_dwordx4 v[{rb+4*i}:{rb+4*i+3}], v1, {'s[4:7]' if kind == 'K' else 's[8:11]'}, {sr} offen offset:{(i%4)*1024} {kf if kind == 'K' else vf}")
    e("s_add_u32 s57, s52, s53")
    for i in range(16):
        if i == kfirst: e("s_barrier")
        ld("K", i, RA, "s52")
    if kfirst >= 16: e("s_barrier")
    if stamps >= 2: fstamp()
    for i in range(16): ld("V", i, RB, "s52")
    if stamps >= 2: fstamp()
    for i in range(16): ld("K", i, RC, "s57")
    masks()
    e("v_mov_b32 v20, 0\nv_mov_b32 v21, 0\nv_mov_b32 v22, 0\nv_mov_b32 v23, 0\nv_mov_b32 v24, 0xff7fffff\nv_mov_b32 v25, 0")
    e(f"v_lshlrev_b32 v26, 5, v3\nv_mov_b32 v27, {L_PR}\ns_mov_b32 s65, 0")
    e(f"s_lshl_b32 s40, s51, 8\ns_add_u32 s40, s40, {WS_TK}\ns_add_u32 s74, s46, s40\ns_addc_u32 s75, s47, 0")
    fstamp()
    e("s_barrier")
    e("ds_read_b32 v31, v27 offset:8")
    for w in range(4):
        rb = (32, 40, 48, 12)[w]
        e(f"ds_read_b128 v[{rb}:{rb+3}], v26 offset:{L_QP+512*w}\nds_read_b128 v[{rb+4}:{rb+7}], v26 offset:{L_QP+512*w+16}")
    e("s_waitcnt lgkmcnt(0)")
    for j in range(8):
        e(f"v_add_f32 v{32+j}, v{32+j}, v{40+j}\nv_add_f32 v{48+j}, v{48+j}, v{12+j}\nv_add_f32 v{32+j}, v{32+j}, v{48+j}")
    for j in range(4): e(f"v_cvt_pk_bf16_f32 v{4+j}, v{32+2*j}, v{33+2*j}")
    e("v_readfirstlane_b32 s71, v31")
    def A(i): return f"v{32+i}"
    def kpart(src, wait, issue):
        fstamp()
        for i in range(16):
            e(f"s_waitcnt vmcnt({wait(i)})")
            for j in range(4):
                if lite: e(f"v_xor_b32 v32, v32, v{src+4*i+j}")
                else: e(f"v_dot2_f32_bf16 {A(i)}, v{src+4*i+j}, v{4+j}, {'0' if j == 0 else A(i)}")
            issue(i)
        if lite:
            e("s_add_u32 s65, s65, 1")
            return
        for i in range(8):
            e(f"v_add_f32_dpp {A(i)}, {A(i)}, {A(i)} row_ror:8 row_mask:0xf bank_mask:0x3")
            e(f"v_add_f32_dpp {A(i)}, {A(i+8)}, {A(i+8)} row_ror:8 row_mask:0xf bank_mask:0xc")
        for i in range(4):
            e(f"v_add_f32_dpp {A(i)}, {A(i)}, {A(i)} row_half_mirror row_mask:0xf bank_mask:0x5")
            e(f"v_add_f32_dpp {A(i)}, {A(i+4)}, {A(i+4)} row_half_mirror row_mask:0xf bank_mask:0xa")
        e(f"v_cndmask_b32 v28, {A(1)}, {A(0)}, s[36:37]\nv_cndmask_b32 v29, {A(0)}, {A(1)}, s[36:37]")
        e(f"v_cndmask_b32 v30, {A(3)}, {A(2)}, s[36:37]\nv_cndmask_b32 v31, {A(2)}, {A(3)}, s[36:37]")
        e("v_add_f32_dpp v29, v28, v29 quad_perm:[1,0,3,2] row_mask:0xf bank_mask:0xf")
        e("v_add_f32_dpp v31, v30, v31 quad_perm:[1,0,3,2] row_mask:0xf bank_mask:0xf")
        e("v_cndmask_b32 v28, v31, v29, s[38:39]\nv_cndmask_b32 v30, v29, v31, s[38:39]\ns_nop 0")
        e("v_add_f32_dpp v30, v28, v30 quad_perm:[2,3,0,1] row_mask:0xf bank_mask:0xf")
        a.rbf("v30"); e("v_mul_f32 v30, 0x3db504f3, v30"); a.rbf("v30")
        e("v_max_f32 v28, v30, v24")
        allsum("v28", "v29", "max")
        e(f"v_sub_f32 v29, v24, v28\nv_sub_f32 v30, v30, v28\nv_mul_f32 v29, {LOG2E}, v29\nv_mul_f32 v30, {LOG2E}, v30\nv_exp_f32 v29, v29\nv_exp_f32 v30, v30\nv_mov_b32 v24, v28")
        e("v_fma_f32 v25, v25, v29, v30\nv_cvt_pk_bf16_f32 v30, v30, v30")
        for r in range(4): e(f"v_mul_f32 v{20+r}, v{20+r}, v29")
        e("s_add_u32 s65, s65, 1")
        if not nods: e("v_mov_b32 v26, s65\nds_max_u32 v27, v26")
    def vpart(src, wait, issue):
        for i in range(16):
            bb = 12 + 4 * (i & 1)
            if lite == 1:
                e(f"s_waitcnt vmcnt({wait(i)})")
                for j in range(4): e(f"v_xor_b32 v32, v32, v{src+4*i+j}")
                issue(i)
                continue
            for r in range(4):
                e(f"v_and_b32_dpp v{bb+r}, v30, v{8+r} row_newbcast:{i} row_mask:0xf bank_mask:0xf")
            e(f"s_waitcnt vmcnt({wait(i)})\ns_nop 0")
            e(f"v_mfma_f32_16x16x32_bf16 v[20:23], v[{src+4*i}:{src+4*i+3}], v[{bb}:{bb+3}], v[20:23]")
            issue(i)
    none = lambda i: None
    kpart(RA, lambda i: 47, lambda i: ld("V", i, RA, "s57"))
    e("s_add_u32 s52, s57, s53")
    vpart(RB, lambda i: 47 - i + min(i, D), lambda i: ld("K", i, RB, "s52") if i < D else None)
    kpart(RC, lambda i: 31 - i + D, none)
    vpart(RA, lambda i: 15 - i + D, none)
    e("L_task:")
    L = a.label("L_nt")
    e(f"s_add_u32 s57, s52, s53\ns_cmp_lt_u32 s65, {NS-1 if dyn else 15}\ns_cbranch_scc1 {L}\ns_mov_b32 s72, s55\ns_atomic_add s72, s[74:75], 0 glc\n{L}:")
    def iss_k(i):
        p = i + D
        if p < 16: ld("K", p, RB, "s52")
        else: ld("V", p - 16, RB, "s52")
    kpart(RB, lambda i: D - 1, iss_k)
    e(f"s_cmp_lt_u32 s65, {NS if dyn else 16}\ns_cbranch_scc1 L_have")
    if dyn:
        e(f"s_waitcnt lgkmcnt(0)\ns_sub_u32 s72, s72, s71\ns_and_b32 s42, s72, 0xffff\ns_lshr_b32 s43, s72, 16\ns_add_u32 s42, s42, s43\ns_cmp_ge_u32 s42, {NM4}\ns_cbranch_scc1 L_last")
        e(f"s_lshr_b32 s72, s72, s56\ns_and_b32 s72, s72, 0xffff\ns_add_u32 s72, s72, {4*NS}")
        setoff("s72", "s57")
    else:
        e("s_branch L_last")
    e("L_have:")
    def iss_v(i):
        p = i + D
        if p < 16: ld("V", p, RB, "s52")
        else: ld("K", p - 16, RB, "s57")
    vpart(RB, lambda i: D - 1, iss_v)
    e("s_mov_b32 s52, s57\ns_branch L_task")
    e("L_last:")
    vpart(RB, lambda i: min(D - 1, 15 - i), lambda i: ld("V", i + D, RB, "s52") if i + D < 16 else None)
    fstamp()
    e("v_and_b32 v28, 7, v0\nv_lshl_add_u32 v28, v2, 5, v28\nv_bfe_u32 v29, v0, 3, 1\nv_lshl_add_u32 v28, v29, 7, v28\nv_lshlrev_b32 v28, 2, v28\ns_lshl_b32 s40, s3, 10\nv_add_u32 v28, s40, v28\ns_nop 1")
    for r in range(4): e(f"ds_write_b32 v28, v{20+r} offset:{L_OA+32*r}")
    allsum("v25", "v29")
    e(f"s_lshl_b32 s40, s3, 3\nv_mov_b32 v29, s40\nds_write_b64 v29, v[24:25] offset:{L_ML}\ns_waitcnt lgkmcnt(0)\ns_barrier")
    if stamps:
        e("s_cmp_lg_u32 s3, 0\ns_cbranch_scc1 L_end")
        fstamp_store("v62", 0)
    e("s_endpgm")
    e("L_helper:")
    S = "v63"
    fstamp(S)
    e("s_sub_u32 s3, s3, 4")
    if prio: e(f"s_setprio {prio}")
    e("s_load_dwordx4 s[28:31], s[0:1], 48\ns_load_dwordx4 s[32:35], s[0:1], 64")
    e("s_lshl_b32 s58, s50, 1\ns_add_u32 s58, s58, s48")
    e("v_lshlrev_b32 v26, 13, v2\nv_lshl_add_u32 v26, v3, 4, v26")
    e("s_lshl_b32 s41, s3, 10\ns_waitcnt lgkmcnt(0)")
    a.srd(12, 46, WSZ); a.srd(16, 20, 4096)
    e("buffer_load_dwordx4 v[48:51], v1, s[16:19], s41 offen")
    e(f"s_lshl_b32 s42, s49, 8\ns_add_u32 s76, s42, {WS_EP}\ns_add_u32 s42, s46, s76\ns_addc_u32 s43, s47, 0\ns_load_dwordx2 s[56:57], s[42:43], 0 glc")
    e(f"s_lshl_b32 s42, s51, 8\ns_add_u32 s42, s42, {WS_TK}\ns_add_u32 s42, s46, s42\ns_addc_u32 s43, s47, 0\ns_mov_b32 s72, 0\ns_cmp_lg_u32 s3, s50\ns_cbranch_scc1 L_nobase\ns_load_dword s72, s[42:43], 0 glc\nL_nobase:")
    a.srd(16, 24, 512 * 4096 * 2)
    e("s_lshl_b32 s40, s49, 8\ns_lshl_b32 s41, s58, 19\ns_add_u32 s40, s40, s41\ns_lshl_b32 s41, s3, 17\ns_add_u32 s40, s40, s41")
    e(f"v_mov_b32 v20, 0\nv_mov_b32 v21, 0\nv_mov_b32 v22, 0\nv_mov_b32 v23, 0\nv_mov_b32 v28, {L_PR}\nds_write_b128 v28, v[20:23]\ns_waitcnt lgkmcnt(0)")
    e("s_barrier")
    for t in range(4):
        e(f"buffer_load_dwordx4 v[{64+4*t}:{67+4*t}], v26, s[16:19], s40 offen {wqf}\ns_add_u32 s40, s40, 0x8000")
    masks()
    hs = [0]
    def hsync():
        hs[0] += 1
        L = a.label("L_hs")
        e(f"v_mov_b32 v28, {L_PR}\nv_mov_b32 v29, 1\ns_mov_b64 exec, 1\ns_waitcnt lgkmcnt(0)\nds_add_u32 v28, v29 offset:12\n{L}:\nds_read_b32 v29, v28 offset:12\ns_waitcnt lgkmcnt(0)\nv_readfirstlane_b32 s43, v29\ns_cmp_lt_u32 s43, {4*hs[0]}\ns_cbranch_scc1 {L}\ns_mov_b64 exec, -1")
    e(f"s_lshl_b32 s67, s3, 12\ns_add_u32 s67, s67, {L_TR}\nv_add_u32 v24, s67, v1\nv_mov_b32 v28, {L_PR}")
    e("s_waitcnt vmcnt(4)")
    fstamp(S)
    for i in range(4):
        e(f"v_lshlrev_b32 v{40+2*i}, 16, v{48+i}\nv_and_b32 v{41+2*i}, 0xffff0000, v{48+i}")
    ln8(40, 52)
    e("s_mov_b32 s62, 0x01000100\ns_mov_b32 s63, 0x03020302")
    for i in (3, 2, 1, 0): e(f"v_perm_b32 v{41+2*i}, v{40+i}, v{40+i}, s63\nv_perm_b32 v{40+2*i}, v{40+i}, v{40+i}, s62")
    e("s_lshl_b32 s40, s3, 11\nv_lshlrev_b32 v52, 1, v1\nv_add_u32 v52, s40, v52")
    e(f"ds_write_b128 v52, v[40:43] offset:{L_XD}\nds_write_b128 v52, v[44:47] offset:{L_XD+16}")
    e("s_lshl_b32 s41, s58, 8\ns_add_u32 s40, s40, s41\nv_lshlrev_b32 v52, 4, v3\nv_lshl_add_u32 v52, v2, 2, v52\nv_add_u32 v52, s40, v52\ns_waitcnt lgkmcnt(0)")
    e(f"ds_read_b32 v53, v52 offset:{L_XD}")
    e("s_cmp_lg_u32 s3, s50\ns_cbranch_scc1 L_nobase2\nv_mov_b32 v44, s72\nds_write_b32 v28, v44 offset:8\nL_nobase2:")
    e("s_add_u32 s56, s56, 1\ns_addc_u32 s57, s57, 0\nv_mov_b32 v42, s56\nv_mov_b32 v43, s57\nv_mov_b32 v46, s56\nv_mov_b32 v47, s57")
    e("s_lshl_b32 s40, s49, 2\ns_add_u32 s40, s40, s3\ns_lshl_b32 s40, s40, 3\ns_add_u32 s40, s40, s58\ns_lshl_b32 s40, s40, 10")
    e(f"s_add_u32 s40, s40, {WS_Q}\nv_lshlrev_b32 v52, 8, v2\nv_lshl_add_u32 v52, v3, 4, v52\ns_waitcnt lgkmcnt(0)")
    fstamp(S)
    for t in range(4): e(f"s_waitcnt vmcnt({3-t})\nds_write_b128 v24, v[{64+4*t}:{67+4*t}] offset:{1024*t}")
    hsync()
    for t in range(16): e(f"ds_read_b128 v[{64+4*t}:{67+4*t}], v1 offset:{L_TR+1024*t}")
    for t in range(16):
        bb = 12 + 4 * (t & 1)
        for r in range(4):
            e(f"v_and_b32_dpp v{bb+r}, v53, v{8+r} row_newbcast:{t} row_mask:0xf bank_mask:0xf")
        e(f"s_waitcnt lgkmcnt({15-t})\ns_nop 0")
        e(f"v_mfma_f32_16x16x32_bf16 v[20:23], v[{64+4*t}:{67+4*t}], v[{bb}:{bb+3}], v[20:23]")
    e("s_lshl_b32 s41, s49, 2\ns_add_u32 s41, s41, s50\ns_lshl_b32 s41, s41, 3\ns_lshl_b32 s42, s3, 1\ns_add_u32 s41, s41, s42\ns_lshl_b32 s41, s41, 10")
    e(f"s_add_u32 s41, s41, {WS_Q}\ns_mov_b32 exec_lo, 0x00ff00ff\ns_mov_b32 exec_hi, 0x00ff00ff")
    e("v_mov_b32 v40, v20\nv_mov_b32 v41, v21\nv_mov_b32 v44, v22\nv_mov_b32 v45, v23")
    e("buffer_store_dwordx4 v[40:43], v52, s[12:15], s40 offen sc1\nbuffer_store_dwordx4 v[44:47], v52, s[12:15], s40 offen offset:128 sc1\ns_mov_b64 exec, -1")
    fstamp(S)
    e("v_and_b32 v52, 7, v0\nv_and_b32 v53, 63, v0\nv_lshlrev_b32 v53, 1, v53\nv_sub_u32 v52, v53, v52\nv_lshlrev_b32 v52, 2, v52\ns_lshl_b32 s40, s3, 9\nv_add_u32 v52, s40, v52")
    e("s_mov_b32 s66, 0\nL_pq:")
    e("buffer_load_dwordx4 v[64:67], v1, s[12:15], s41 offen sc1\nbuffer_load_dwordx4 v[68:71], v1, s[12:15], s41 offen offset:1024 sc1\ns_waitcnt vmcnt(0)")
    e("v_xor_b32 v72, s56, v66\nv_xor_b32 v73, s57, v67\nv_xor_b32 v74, s56, v70\nv_xor_b32 v75, s57, v71\nv_or3_b32 v72, v72, v73, v74\nv_or_b32 v72, v72, v75")
    e(f"v_cmp_ne_u32 vcc, 0, v72\ns_cbranch_vccz L_pq_ok\ns_mov_b64 exec, vcc\ns_add_u32 s66, s66, 1\ns_cmp_gt_u32 s66, 400000\ns_cbranch_scc1 L_pq_ok\ns_sleep {qsleep}\ns_branch L_pq\nL_pq_ok:\ns_mov_b64 exec, -1")
    e(f"v_add_f32 v64, v64, v68\nv_add_f32 v65, v65, v69\nds_write_b32 v52, v64 offset:{L_QP}\nds_write_b32 v52, v65 offset:{L_QP+32}\ns_waitcnt lgkmcnt(0)")
    fstamp(S)
    e("s_barrier")
    if hexit: e("s_endpgm")
    e(f"s_lshr_b32 s78, s2, 3\ns_lshl_b32 s78, s78, 2\ns_add_u32 s78, s78, s77\ns_cmp_eq_u32 s48, 0\ns_cselect_b32 s78, s78, 255")
    e("v_mov_b32 v28, -1\nv_mov_b32 v29, -1\nv_mov_b32 v30, -1\nv_mov_b32 v31, -1\nv_and_b32 v27, 255, v0")
    e(f"s_lshl_b32 s40, s51, 1\ns_add_u32 s40, s40, s48\ns_lshl_b32 s54, s40, 10\ns_add_u32 s54, s54, {WS_O}\nv_lshlrev_b32 v32, 2, v27")
    e("buffer_store_dword v28, v32, s[12:15], s54 offen sc1")
    e("v_lshlrev_b32 v33, 16, v2\nv_bfe_u32 v34, v0, 3, 1\nv_lshl_add_u32 v33, v34, 10, v33\nv_and_b32 v34, 7, v0\nv_lshl_add_u32 v33, v34, 2, v33")
    e(f"s_lshl_b32 s60, s58, 13\ns_lshl_b32 s40, s3, 11\ns_add_u32 s60, s60, s40\ns_lshl_b32 s40, s49, 5\ns_add_u32 s60, s60, s40\ns_add_u32 s60, s60, {WS_Y}")
    e("buffer_store_dword v28, v33, s[12:15], s60 offen sc1")
    e("s_lshr_b32 s79, s2, 3\ns_sub_u32 s79, s79, 16\ns_lshl_b32 s79, s79, 2\ns_add_u32 s79, s79, s77\ns_lshl_b32 s79, s79, 2\ns_add_u32 s79, s79, s3\ns_cmp_eq_u32 s48, 1\ns_cselect_b32 s79, s79, 0x10000")
    e("v_bfe_u32 v40, v0, 2, 1\nv_bfe_u32 v41, v0, 3, 1\nv_lshl_add_u32 v40, v41, 1, v40\nv_bfe_u32 v41, v0, 5, 1\nv_lshl_add_u32 v40, v41, 2, v40")
    e("v_and_b32 v41, 3, v0\nv_bfe_u32 v42, v0, 4, 1\nv_lshl_add_u32 v41, v42, 2, v41\nv_lshlrev_b32 v41, 13, v41\nv_lshl_add_u32 v41, v40, 2, v41")
    e(f"s_lshl_b32 s55, s79, 5\ns_add_u32 s55, s55, {WS_H}\ns_cmp_lt_u32 s79, 256\ns_cselect_b32 s55, s55, 0x40000000\nbuffer_store_dword v28, v41, s[12:15], s55 offen sc1")
    e(f"s_lshl_b32 s59, s78, 13\ns_add_u32 s59, s59, {WS_D}\ns_cmp_lt_u32 s78, {NG}\ns_cselect_b32 s59, s59, 0x40000000\ns_add_u32 s40, s59, 4096\nv_lshlrev_b32 v27, 4, v27")
    e("buffer_store_dwordx4 v[28:31], v27, s[12:15], s59 offen sc1\nbuffer_store_dwordx4 v[28:31], v27, s[12:15], s40 offen sc1")
    a.srd(16, 20, 4096)
    e("v_lshlrev_b32 v42, 1, v40\ns_lshl_b32 s40, s79, 4\nbuffer_load_ushort v43, v42, s[16:19], s40 offen")
    e(f"s_waitcnt vmcnt(0)\nv_lshlrev_b32 v43, 16, v43\nv_mov_b32 v28, {L_PR+4}\nv_mov_b32 v29, 1\ns_mov_b64 exec, 1\nds_add_rtn_u32 v29, v28, v29\ns_waitcnt lgkmcnt(0)\ns_mov_b64 exec, -1\nv_readfirstlane_b32 s70, v29")
    def wait_progress(lbl, sreg):
        e(f"v_mov_b32 v28, {L_PR}\n{lbl}:\nds_read_b32 v29, v28\ns_waitcnt lgkmcnt(0)\nv_readfirstlane_b32 s40, v29\ns_cmp_ge_u32 s40, {sreg}\ns_cbranch_scc1 {lbl}_ok\ns_sleep 32\ns_branch {lbl}\n{lbl}_ok:")
    a.srd(16, 26, 4096 * 512 * 2)
    e("v_bfe_u32 v27, v0, 3, 3\nv_lshlrev_b32 v27, 10, v27\nv_and_b32 v28, 7, v0\nv_lshl_add_u32 v27, v28, 4, v27")
    e("s_lshl_b32 s40, s49, 17\ns_lshl_b32 s41, s58, 7\ns_add_u32 s40, s40, s41\ns_lshl_b32 s41, s3, 15\ns_add_u32 s40, s40, s41")
    for t in range(4): e(f"buffer_load_dwordx4 v[{64+4*t}:{67+4*t}], v27, s[16:19], s40 offen {wf}\ns_add_u32 s40, s40, 8192")
    e(f"v_bfe_u32 v25, v0, 2, 2\nv_lshlrev_b32 v25, 7, v25\nv_lshl_add_u32 v25, v2, 10, v25\nv_and_b32 v28, 3, v0\nv_lshl_add_u32 v25, v28, 3, v25\ns_lshl_b32 s41, s3, 5\ns_add_u32 s41, s41, {L_TR}\nv_add_u32 v25, s41, v25")
    for t in range(4): e(f"s_waitcnt vmcnt({3-t})\nds_write_b128 v24, v[{64+4*t}:{67+4*t}] offset:{1024*t}")
    hsync()
    for ks in range(4):
        for hh in range(2):
            e(f"ds_read_b64_tr_b16 v[{112+4*ks+2*hh}:{113+4*ks+2*hh}], v25 offset:{4096*ks+512*hh}")
    fstamp(S)
    e(f"s_cmp_ge_u32 s78, {NG if not nogw else 0}\ns_cbranch_scc1 L_nogw")
    hsync()
    e("s_mov_b32 s62, 0x05040100\ns_mov_b32 s63, 0x07060302")
    a.srd(16, 32, 512 * 1792 * 2)
    e("v_lshlrev_b32 v27, 13, v2\nv_lshl_add_u32 v27, v3, 3, v27\ns_lshl_b32 s40, s78, 15\ns_lshl_b32 s41, s3, 8\ns_add_u32 s40, s40, s41")
    for ee in range(8):
        if ee == 4: e("s_add_u32 s40, s40, 4096")
        e(f"buffer_load_dwordx2 v[{64+4*ee}:{65+4*ee}], v27, s[16:19], s40 offen offset:{(ee%4)*1024} {wf}")
        e(f"buffer_load_dwordx2 v[{66+4*ee}:{67+4*ee}], v27, s[16:19], s40 offen offset:{(ee%4)*1024+128} {wf}")
    e("s_cmp_lt_u32 s3, 2\ns_cselect_b32 s42, s28, s30\ns_cselect_b32 s43, s29, s31\ns_waitcnt vmcnt(0)")
    for j in range(8):
        for q in range(4):
            e(f"v_perm_b32 v{192+4*j+q}, v{64+4*(2*q+1)+(j>>1)}, v{64+4*(2*q)+(j>>1)}, {'s62' if j%2==0 else 's63'}")
    a.srd(16, 42, 512 * 1792 * 2)
    e("v_bfe_u32 v27, v0, 2, 4\nv_mul_u32_u24 v27, 3584, v27\nv_and_b32 v28, 3, v0\nv_lshl_add_u32 v27, v28, 4, v27")
    e(f"s_lshl_b32 s40, s78, 6\ns_and_b32 s41, s3, 1\ns_mul_i32 s41, s41, {256*3584}\ns_add_u32 s40, s40, s41")
    for t in range(16): e(f"buffer_load_dwordx4 v[{128+4*t}:{131+4*t}], v27, s[16:19], s40 offen {wf}\ns_add_u32 s40, s40, {16*3584}")
    e(f"s_lshl_b32 s41, s3, 14\ns_add_u32 s41, s41, {L_TR}\nv_add_u32 v24, s41, v1")
    e(f"v_bfe_u32 v25, v0, 2, 2\nv_lshlrev_b32 v25, 6, v25\nv_lshl_add_u32 v25, v2, 9, v25\nv_and_b32 v28, 3, v0\nv_lshl_add_u32 v25, v28, 3, v25")
    e(f"s_lshr_b32 s41, s3, 1\ns_lshl_b32 s41, s41, 15\ns_and_b32 s42, s3, 1\ns_lshl_b32 s42, s42, 5\ns_add_u32 s41, s41, s42\ns_add_u32 s41, s41, {L_TR}\nv_add_u32 v25, s41, v25")
    for t in range(16): e(f"s_waitcnt vmcnt({15-t})\nds_write_b128 v24, v[{128+4*t}:{131+4*t}] offset:{1024*t}")
    hsync()
    for ks in range(16):
        for hh in range(2):
            e(f"ds_read_b64_tr_b16 v[{128+4*ks+2*hh}:{129+4*ks+2*hh}], v25 offset:{2048*ks+256*hh}")
    e("L_nogw:")
    fstamp(S)
    e("s_cmp_lg_u32 s70, 3\ns_cbranch_scc1 L_noinit\ns_bfe_u32 s41, s2, 0x20003\ns_add_u32 s41, s41, 1")
    wait_progress("L_iw", "s41")
    e("s_mov_b32 s64, 1\ns_atomic_add s64, s[44:45], 0\nL_noinit:")
    e("v_lshrrev_b32 v28, 1, v1\nv_mov_b32 v29, 0")
    e("v_bfe_u32 v34, v0, 2, 2\nv_lshlrev_b32 v34, 16, v34\nv_and_b32 v35, 1, v0\nv_lshl_add_u32 v34, v35, 10, v34\nv_bfe_u32 v35, v0, 1, 1\nv_lshlrev_b32 v35, 8, v35\nv_lshl_add_u32 v35, v2, 5, v35\nv_add_u32 v35, v35, v34")
    e(f"s_lshl_b32 s61, s49, 11\ns_add_u32 s61, s61, {WS_O}")
    wait_progress("L_w2", NS - 2)
    e("v_lshrrev_b32 v28, 1, v1\nv_mov_b32 v29, 0")
    a.srd(16, 44, 256)
    e("s_mov_b32 s66, 0\nL_initchk:\nbuffer_load_dword v31, v29, s[16:19], 0 offen sc1\ns_waitcnt vmcnt(0)\nv_readfirstlane_b32 s64, v31\ns_cmp_ge_u32 s64, 256\ns_cbranch_scc1 L_initok\ns_add_u32 s66, s66, 1\ns_cmp_gt_u32 s66, 200000\ns_cbranch_scc1 L_initok\ns_sleep 8\ns_branch L_initchk\nL_initok:")
    e("s_barrier")
    fstamp(S)
    def poll(label, loads, words, slp=None):
        e(f"s_mov_b32 s66, 0\n{label}:")
        for l in loads: e(l)
        e("s_waitcnt vmcnt(0)")
        w = list(words)
        e(f"v_max_u32 v31, {w[0]}, {w[1]}")
        w = w[2:]
        while len(w) >= 2:
            e(f"v_max3_u32 v31, v31, {w[0]}, {w[1]}"); w = w[2:]
        if w: e(f"v_max_u32 v31, v31, {w[0]}")
        e(f"v_cmp_eq_u32 vcc, -1, v31\ns_cbranch_vccz {label}_ok\ns_mov_b64 exec, vcc\ns_add_u32 s66, s66, 1\ns_cmp_gt_u32 s66, 400000\ns_cbranch_scc1 {label}_ok")
        e(f"s_sleep {slp or sleep}\ns_branch {label}\n{label}_ok:\ns_mov_b64 exec, -1")
    e("s_cmp_lg_u32 s3, 0\ns_cbranch_scc1 L_st2")
    e(f"ds_read_b128 v[48:51], v29 offset:{L_ML}\nds_read_b128 v[52:55], v29 offset:{L_ML+16}")
    for w in range(4): e(f"ds_read_b64 v[{64+2*w}:{65+2*w}], v28 offset:{L_OA+1024*w}")
    e("s_waitcnt lgkmcnt(4)\nv_max_f32 v56, v48, v50\nv_max3_f32 v56, v56, v52, v54")
    for w in range(4): e(f"v_sub_f32 v{58+w}, v{48+2*w}, v56")
    for w in range(4): e(f"v_mul_f32 v{58+w}, {LOG2E}, v{58+w}")
    for w in range(4): e(f"v_exp_f32 v{58+w}, v{58+w}")
    e("s_waitcnt lgkmcnt(0)\nv_mul_f32 v57, v58, v49\nv_mul_f32 v64, v64, v58\nv_mul_f32 v65, v65, v58")
    for w in range(1, 4): e(f"v_fmac_f32 v57, v{58+w}, v{49+2*w}\nv_fmac_f32 v64, v{64+2*w}, v{58+w}\nv_fmac_f32 v65, v{65+2*w}, v{58+w}")
    e("v_min_u32 v64, -2, v64\nv_min_u32 v65, -2, v65\nv_min_u32 v56, -2, v56\nv_min_u32 v57, -2, v57")
    e("buffer_store_dwordx2 v[64:65], v28, s[12:15], s54 offen sc1\ns_mov_b64 exec, 1\nbuffer_store_dwordx2 v[56:57], v28, s[12:15], s54 offen offset:512 sc1\ns_mov_b64 exec, -1")
    fstamp(S)
    e("L_st2:")
    e(f"s_mov_b32 s66, 0\nL_p0:\nbuffer_load_dword v56, v34, s[12:15], s61 offen offset:512 sc1\ns_waitcnt vmcnt(0)\nv_cmp_eq_u32 vcc, -1, v56\ns_bcnt1_i32_b64 s64, vcc\ns_cmp_le_u32 s64, 16\ns_cbranch_scc1 L_p0_ok\ns_mov_b64 exec, vcc\ns_add_u32 s66, s66, 1\ns_cmp_gt_u32 s66, 100000\ns_cbranch_scc1 L_p0_ok\ns_sleep {lsleep}\ns_branch L_p0\nL_p0_ok:\ns_mov_b64 exec, -1")
    poll("L_p1", [f"buffer_load_dwordx4 v[{64+4*k}:{67+4*k}], v35, s[12:15], s61 offen offset:{(k>>1)*128+(k&1)*16} sc1" for k in range(4)] +
         ["buffer_load_dwordx2 v[56:57], v34, s[12:15], s61 offen offset:512 sc1"], [f"v{i}" for i in range(64, 80)] + ["v56", "v57"])
    e("s_nop 3\nv_mov_b32_dpp v58, v56 quad_perm:[1,0,3,2] row_mask:0xf bank_mask:0xf\nv_mov_b32_dpp v59, v57 quad_perm:[1,0,3,2] row_mask:0xf bank_mask:0xf")
    e(f"v_max_f32 v60, v56, v58\nv_sub_f32 v56, v56, v60\nv_sub_f32 v58, v58, v60\nv_mul_f32 v56, {LOG2E}, v56\nv_mul_f32 v58, {LOG2E}, v58\nv_exp_f32 v56, v56\nv_exp_f32 v58, v58\ns_nop 0")
    e("v_mul_f32 v57, v57, v56\nv_fmac_f32 v57, v59, v58\nv_rcp_f32 v57, v57\ns_nop 0\nv_mul_f32 v56, v56, v57")
    for k in range(16): e(f"v_mul_f32 v{64+k}, v{64+k}, v56")
    for k in range(16): e(f"v_add_f32_dpp v{64+k}, v{64+k}, v{64+k} quad_perm:[1,0,3,2] row_mask:0xf bank_mask:0xf")
    for k in range(8): e(f"v_cvt_pk_bf16_f32 v{80+k}, v{64+2*k}, v{65+2*k}")
    for k in range(8): e(f"v_mov_b32_dpp v{88+k}, v{80+k} quad_perm:[2,3,0,1] row_mask:0xf bank_mask:0xf")
    e("s_nop 0")
    for ks in range(4):
        e(f"v_mfma_f32_16x16x32_bf16 v[20:23], v[{80+4*ks}:{83+4*ks}], v[{112+4*ks}:{115+4*ks}], {'0' if ks == 0 else 'v[20:23]'}")
    e("s_lshl_b32 s40, s79, 10\ns_nop 2")
    e(f"s_add_u32 s40, s40, {WS_Y}\nv_and_b32 v44, 31, v0\nv_lshlrev_b32 v44, 5, v44\nv_bfe_u32 v45, v0, 5, 1\nv_lshl_add_u32 v44, v45, 4, v44")
    e("v_min_u32 v20, -2, v20\nbuffer_store_dword v20, v33, s[12:15], s60 offen sc1")
    fstamp(S)
    e("s_cmp_ge_u32 s79, 256\ns_cbranch_scc1 L_glu")
    poll("L_p3", ["buffer_load_dwordx4 v[48:51], v44, s[12:15], s40 offen sc1"], [f"v{i}" for i in range(48, 52)], slp=4)
    e("s_nop 3")
    for i in range(2):
        e(f"v_add_f32_dpp v{48+i}, v{48+i}, v{48+i} row_ror:8 row_mask:0xf bank_mask:0x3")
        e(f"v_add_f32_dpp v{48+i}, v{50+i}, v{50+i} row_ror:8 row_mask:0xf bank_mask:0xc")
    e("v_add_f32_dpp v48, v48, v48 row_half_mirror row_mask:0xf bank_mask:0x5\ns_nop 0\nv_add_f32_dpp v48, v49, v49 row_half_mirror row_mask:0xf bank_mask:0xa\ns_nop 1")
    e("v_add_f32_dpp v48, v48, v48 quad_perm:[1,0,3,2] row_mask:0xf bank_mask:0xf\ns_nop 1\nv_add_f32_dpp v48, v48, v48 quad_perm:[2,3,0,1] row_mask:0xf bank_mask:0xf")
    e("v_mov_b32 v49, v48\ns_nop 1\nv_permlane16_swap_b32 v48, v49\ns_nop 1\nv_add_f32 v48, v48, v49")
    a.rbf("v48"); e("v_add_f32 v48, v48, v43"); a.rbf("v48")
    e("v_min_u32 v43, -2, v48\nbuffer_store_dword v43, v41, s[12:15], s55 offen sc1")
    fstamp(S)
    e("s_branch L_s5\nL_glu:")
    e(f"s_cmp_ge_u32 s78, {NG}\ns_cbranch_scc1 L_fin")
    e(f"s_and_b32 s40, s78, 7\ns_lshl_b32 s40, s40, 13\ns_lshl_b32 s41, s3, 11\ns_add_u32 s42, s40, s41\ns_add_u32 s42, s42, {WS_H}\nv_lshlrev_b32 v44, 1, v1")
    e(f"s_mul_i32 s40, s3, 1040\nv_add_u32 v45, s40, v1\nv_and_b32 v46, 3, v0\nv_mul_u32_u24 v46, 1040, v46\nv_lshl_add_u32 v46, v2, 4, v46")
    poll("L_p4", ["buffer_load_dwordx4 v[48:51], v44, s[12:15], s42 offen sc1", "buffer_load_dwordx4 v[52:55], v44, s[12:15], s42 offen offset:16 sc1"], [f"v{i}" for i in range(48, 56)], slp=hsleep)
    fstamp(S)
    ln8(48, 56)
    if gst: fstamp(S)
    e(f"ds_write_b128 v45, v[48:51] offset:{L_HN}")
    e("v_lshlrev_b32 v44, 2, v3\ns_lshr_b32 s40, s3, 1\ns_lshl_b32 s40, s40, 9\ns_and_b32 s41, s3, 1\ns_lshl_b32 s41, s41, 6\ns_add_u32 s40, s40, s41\nv_add_u32 v44, s40, v44")
    e("v_bfe_u32 v45, v0, 2, 2\nv_lshlrev_b32 v45, 7, v45\nv_lshl_add_u32 v45, v2, 5, v45\nv_and_b32 v47, 3, v0\nv_lshl_add_u32 v45, v47, 3, v45\ns_waitcnt lgkmcnt(0)\ns_barrier")
    if gst: fstamp(S)
    for ks in range(12): e(f"ds_read_b128 v[{64+4*ks}:{67+4*ks}], v46 offset:{L_HN+64*ks}")
    for ks in range(12, 16): e(f"ds_read_b128 v[{224+4*(ks-12)}:{227+4*(ks-12)}], v46 offset:{L_HN+64*ks}")
    for ks in range(16):
        e(f"s_waitcnt lgkmcnt({15-ks})")
        c = "0" if ks < 2 else f"v[{20+4*(ks&1)}:{23+4*(ks&1)}]"
        ar = 64 + 4 * ks if ks < 12 else 224 + 4 * (ks - 12)
        e(f"v_mfma_f32_16x16x32_bf16 v[{20+4*(ks&1)}:{23+4*(ks&1)}], v[{ar}:{ar+3}], v[{128+4*ks}:{131+4*ks}], {c}")
    e("s_lshl_b32 s40, s3, 9\ns_add_u32 s40, s40, s59\ns_mov_b64 exec, 0xffff\ns_nop 4")
    for r in range(4): e(f"v_add_f32 v{20+r}, v{20+r}, v{24+r}\nds_write_b32 v44, v{20+r} offset:{L_AC+128*r}")
    e("s_mov_b64 exec, -1")
    if gst: fstamp(S)
    e("v_lshlrev_b32 v44, 11, v2\nv_lshl_add_u32 v44, v3, 4, v44\ns_waitcnt lgkmcnt(0)\ns_barrier")
    if gst: fstamp(S)
    e(f"ds_read_b64 v[20:21], v45 offset:{L_AC}\nds_read_b64 v[22:23], v45 offset:{L_AC+512}\ns_waitcnt lgkmcnt(1)")
    e("v_cvt_pk_bf16_f32 v20, v20, v21\nv_and_b32 v21, 0xffff0000, v20\nv_lshlrev_b32 v20, 16, v20\nv_mul_f32 v21, 0xbfb8aa3b, v21\nv_mul_f32 v20, 0xbfb8aa3b, v20\nv_exp_f32 v21, v21\nv_exp_f32 v20, v20")
    e("s_waitcnt lgkmcnt(0)\nv_cvt_pk_bf16_f32 v22, v22, v23\nv_add_f32 v21, 1.0, v21\nv_add_f32 v20, 1.0, v20\nv_rcp_f32 v21, v21\nv_rcp_f32 v20, v20\nv_and_b32 v23, 0xffff0000, v22\nv_lshlrev_b32 v22, 16, v22")
    e("v_cvt_pk_bf16_f32 v20, v20, v21\nv_and_b32 v21, 0xffff0000, v20\nv_lshlrev_b32 v20, 16, v20\nv_mul_f32 v21, v21, v23\nv_mul_f32 v20, v20, v22\nv_cvt_pk_bf16_f32 v36, v20, v21\ns_nop 1")
    for q in range(4): e(f"v_mov_b32_dpp v{32+q}, v36 quad_perm:[{q},{q},{q},{q}] row_mask:0xf bank_mask:0xf")
    e("s_nop 1")
    if gst: fstamp(S)
    for j in range(8):
        e(f"v_mfma_f32_16x16x32_bf16 v[{64+4*j}:{67+4*j}], v[32:35], v[{192+4*j}:{195+4*j}], 0")
    e("s_nop 0")
    for j in range(4): e(f"v_min_u32 v{96+j}, -2, v{64+4*j}")
    e("s_nop 0\nbuffer_store_dwordx4 v[96:99], v44, s[12:15], s40 offen sc1")
    for j in range(4, 8): e(f"v_min_u32 v{96+j}, -2, v{64+4*j}")
    e("buffer_store_dwordx4 v[100:103], v44, s[12:15], s40 offen offset:256 sc1")
    fstamp(S)
    e("s_branch L_fin\nL_s5:")
    e(f"v_lshlrev_b32 v44, 9, v1\ns_lshl_b32 s42, s79, 5\ns_add_u32 s42, s42, {WS_D}")
    a.srd(16, 34, 4096)
    for j in range(8): e(f"v_mov_b32 v{48+j}, 0")
    e(f"v_lshlrev_b32 v42, 1, v40\ns_lshl_b32 s40, s79, 4\ns_mov_b32 exec_lo, -1\ns_mov_b32 exec_hi, {(1 << (NG - 32)) - 1:#x}")
    poll("L_p6", ["buffer_load_dwordx4 v[48:51], v44, s[12:15], s42 offen sc1", "buffer_load_dwordx4 v[52:55], v44, s[12:15], s42 offen offset:16 sc1"], [f"v{i}" for i in range(48, 56)], slp=s5sleep)
    if gst: fstamp(S)
    e("s_nop 3")
    for i in range(4): e(f"v_permlane32_swap_b32 v{48+i}, v{52+i}")
    e("s_nop 1")
    for i in range(4): e(f"v_add_f32 v{48+i}, v{48+i}, v{52+i}")
    e("s_nop 0")
    for i in range(2):
        e(f"v_add_f32_dpp v{48+i}, v{48+i}, v{48+i} row_ror:8 row_mask:0xf bank_mask:0x3")
        e(f"v_add_f32_dpp v{48+i}, v{50+i}, v{50+i} row_ror:8 row_mask:0xf bank_mask:0xc")
    e("v_add_f32_dpp v48, v48, v48 row_half_mirror row_mask:0xf bank_mask:0x5\ns_nop 0\nv_add_f32_dpp v48, v49, v49 row_half_mirror row_mask:0xf bank_mask:0xa\ns_nop 1")
    e("v_add_f32_dpp v48, v48, v48 quad_perm:[1,0,3,2] row_mask:0xf bank_mask:0xf\ns_nop 1\nv_add_f32_dpp v48, v48, v48 quad_perm:[2,3,0,1] row_mask:0xf bank_mask:0xf")
    e("v_mov_b32 v49, v48\ns_nop 1\nv_permlane16_swap_b32 v48, v49\ns_nop 1\nv_add_f32 v48, v48, v49")
    a.rbf("v48"); e("v_add_f32 v48, v48, v43\nv_cvt_pk_bf16_f32 v48, v48, v48\ns_mov_b32 exec_lo, 0x1111\ns_mov_b32 exec_hi, 0x1111")
    e("buffer_store_short v48, v42, s[16:19], s40 offen")
    fstamp(S)
    e("L_fin:")
    e("s_cmp_lg_u32 s3, 0\ns_cbranch_scc1 L_end")
    e("s_cmp_lg_u32 s58, 0\ns_cbranch_scc1 L_noep\ns_mov_b64 exec, 1\nv_mov_b32 v48, s56\nv_mov_b32 v49, s57\nv_mov_b32 v50, 0\nbuffer_store_dwordx2 v[48:49], v50, s[12:15], s76 offen sc1\nL_noep:")
    fstamp_store(S, 65536)
    e("L_end:\ns_endpgm")
    e('.section .rodata,"a"\n.p2align 6')
    a.descriptor(KN, 256, 96, accum=256)
    return a.text()

if __name__ == "__main__":
    import os, json
    os.makedirs("v6", exist_ok=True)
    names = []
    for spec in sys.argv[1:]:
        kw = {}
        if spec != "base":
            for p in spec.split(","):
                k, v = p.split("=")
                kw[k] = v.replace("+", " ") if k in ("wf", "wqf", "kf", "vf") else int(v)
        fn = "v6/v6_" + spec.replace(",", "_").replace("=", "") + ".s"
        open(fn, "w").write(gen(**kw))
        names.append(fn)
    print(" ".join(names))
    base = ["work/bench.py", "work/fst4.py", "sequential_preLN__mha_block_cached__glu_gated_glu__decode_np.py", "cdna_kernels/cdna_launch.py", "cdna_kernels/cdna_unwritten_srd_check.py", "work/pair/pair_NS10.s"]
    print(json.dumps(base + ["work/" + f for f in names]))
```

```python
import sys
from asmlib import *
WSZ = 0x40000000
WS_O, WS_Y, WS_H, WS_D, WS_Q, WS_EP, WS_TK, WS_ST = 0x000000, 0x040000, 0x100000, 0x110000, 0x180000, 0x280000, 0x290000, 0x300000
NG = 56
LOG2E = "0x3fb8aa3b"
L_XD = 0
L_QP = 8192
L_OA = 10240
L_ML = 14336
L_PR = 14368
L_HN = 14400
L_AC = 18560
L_ON = 0
L_HG = 1152
L_TR = 19584
LDS_BYTES = L_TR + 65536

def gen(stamps=0, sleep=2, wf="nt", wqf="", prio=3, lsleep=4, thr=32, NS=10, qsleep=4, kfirst=0, hexit=0, dyn=1, s5sleep=3, s3sleep=3, hsleep=3,
        gst=0, D=16, kf="nt", vf="nt", GT=24, wsleep=2, abl=0):
    NM4 = 4 * (32 - 2 * NS)
    a = Asm(); e = a.e
    KN = NAME + "_kernel"
    e(HEADER_COMMENT.rstrip("\n"))
    e(f"; @launch grid=(256,1,1) block=(512,1,1) lds={LDS_BYTES}")
    e('.amdgcn_target "amdgcn-amd-amdhsa--gfx950"\n.text')
    a.kernel_begin(KN)
    def fstamp(reg="v62"):
        if stamps:
            e(f"s_memrealtime s[68:69]\ns_waitcnt lgkmcnt(0)\nv_writelane_b32 {reg}, s68, m0\ns_add_u32 m0, m0, 1")
    def fstamp_store(reg, off):
        if stamps:
            e(f"s_mov_b64 exec, -1\nv_and_b32 v2, 63, v0\nv_lshlrev_b32 v2, 2, v2\ns_lshl_b32 s41, s2, 8\ns_add_u32 s41, s41, {WS_ST+off}\nbuffer_store_dword {reg}, v2, s[12:15], s41 offen sc1")
    def allsum(v, t, op="add"):
        e("s_nop 1")
        for ctl in ("quad_perm:[1,0,3,2]", "quad_perm:[2,3,0,1]", "row_half_mirror", "row_mirror"):
            e(f"v_{op}_f32_dpp {v}, {v}, {v} {ctl} row_mask:0xf bank_mask:0xf\ns_nop 1")
        e(f"v_mov_b32 {t}, {v}\ns_nop 1\nv_permlane16_swap_b32 {v}, {t}\ns_nop 1\nv_{op}_f32 {v}, {v}, {t}\nv_mov_b32 {t}, {v}\ns_nop 1\nv_permlane32_swap_b32 {v}, {t}\ns_nop 1\nv_{op}_f32 {v}, {v}, {t}")
    def ln8(X, T):
        s1, s2, t1, t2, u = (f"v{T+i}" for i in range(5))
        e(f"v_readfirstlane_b32 s40, v{X}\ns_nop 1")
        e(f"v_subrev_f32 {s1}, s40, v{X}\nv_mul_f32 {s2}, {s1}, {s1}")
        for i in range(1, 8):
            e(f"v_subrev_f32 {u}, s40, v{X+i}\nv_add_f32 {s1}, {s1}, {u}\nv_fmac_f32 {s2}, {u}, {u}")
        e("s_nop 0")
        for ctl in ("quad_perm:[1,0,3,2]", "quad_perm:[2,3,0,1]", "row_half_mirror", "row_mirror"):
            e(f"v_add_f32_dpp {s1}, {s1}, {s1} {ctl} row_mask:0xf bank_mask:0xf\nv_add_f32_dpp {s2}, {s2}, {s2} {ctl} row_mask:0xf bank_mask:0xf\ns_nop 0")
        for sw in ("v_permlane16_swap_b32", "v_permlane32_swap_b32"):
            e(f"v_mov_b32 {t1}, {s1}\nv_mov_b32 {t2}, {s2}\ns_nop 0\n{sw} {s1}, {t1}\n{sw} {s2}, {t2}\ns_nop 0\nv_add_f32 {s1}, {s1}, {t1}\nv_add_f32 {s2}, {s2}, {t2}")
        e(f"v_mul_f32 {s1}, 0x3b000000, {s1}\nv_mul_f32 {s2}, 0x3b000000, {s2}\nv_fma_f32 {s2}, -{s1}, {s1}, {s2}\nv_max_f32 {s2}, 0, {s2}\nv_add_f32 {s1}, s40, {s1}")
        a.rbf(s2); a.rbf(s1)
        e(f"v_add_f32 {s2}, 0x3727c5ac, {s2}"); a.rbf(s2)
        e(f"v_sqrt_f32 {s2}, {s2}")
        for i in range(8): e(f"v_sub_f32 v{X+i}, v{X+i}, {s1}")
        a.rbf(s2)
        e(f"v_rcp_f32 {s2}, {s2}")
        for i in range(4): e(f"v_cvt_pk_bf16_f32 v{X+2*i}, v{X+2*i}, v{X+2*i+1}")
        for i in range(4): e(f"v_and_b32 v{X+2*i+1}, 0xffff0000, v{X+2*i}\nv_lshlrev_b32 v{X+2*i}, 16, v{X+2*i}")
        for i in range(8): e(f"v_mul_f32 v{X+i}, v{X+i}, {s2}")
        for i in range(4): e(f"v_cvt_pk_bf16_f32 v{X+i}, v{X+2*i}, v{X+2*i+1}")
    def masks():
        for r in range(4):
            e(f"v_mov_b32 v{8+r}, 0\nv_mov_b32 v28, 0xffff\nv_cmp_eq_u32 vcc, {2*r}, v3\ns_nop 1\nv_cndmask_b32 v{8+r}, v{8+r}, v28, vcc")
            e(f"v_mov_b32 v28, 0xffff0000\nv_cmp_eq_u32 vcc, {2*r+1}, v3\ns_nop 1\nv_cndmask_b32 v{8+r}, v{8+r}, v28, vcc")
    cnt = {12: 0, 24: 0}
    def gsync(off):
        cnt[off] += 1
        L = a.label("L_gs")
        e(f"v_mov_b32 v28, {L_PR}\nv_mov_b32 v29, 1\ns_mov_b64 exec, 1\ns_waitcnt lgkmcnt(0)\nds_add_u32 v28, v29 offset:{off}\n{L}:\nds_read_b32 v29, v28 offset:{off}\ns_waitcnt lgkmcnt(0)\nv_readfirstlane_b32 s43, v29\ns_cmp_lt_u32 s43, {4*cnt[off]}\ns_cbranch_scc1 {L}\ns_mov_b64 exec, -1")
    def poll(label, loads, words, slp=None):
        e(f"s_mov_b32 s66, 0\n{label}:")
        for l in loads: e(l)
        e("s_waitcnt vmcnt(0)")
        w = list(words)
        e(f"v_max_u32 v31, {w[0]}, {w[1]}")
        w = w[2:]
        while len(w) >= 2:
            e(f"v_max3_u32 v31, v31, {w[0]}, {w[1]}"); w = w[2:]
        if w: e(f"v_max_u32 v31, v31, {w[0]}")
        e(f"v_cmp_eq_u32 vcc, -1, v31\ns_cbranch_vccz {label}_ok\ns_mov_b64 exec, vcc\ns_add_u32 s66, s66, 1\ns_cmp_gt_u32 s66, 400000\ns_cbranch_scc1 {label}_ok")
        e(f"s_sleep {slp or sleep}\ns_branch {label}\n{label}_ok:\ns_mov_b64 exec, -1")
    def red4():
        for i in range(2):
            e(f"v_add_f32_dpp v{48+i}, v{48+i}, v{48+i} row_ror:8 row_mask:0xf bank_mask:0x3")
            e(f"v_add_f32_dpp v{48+i}, v{50+i}, v{50+i} row_ror:8 row_mask:0xf bank_mask:0xc")
        e("v_add_f32_dpp v48, v48, v48 row_half_mirror row_mask:0xf bank_mask:0x5\ns_nop 0\nv_add_f32_dpp v48, v49, v49 row_half_mirror row_mask:0xf bank_mask:0xa\ns_nop 1")
        e("v_add_f32_dpp v48, v48, v48 quad_perm:[1,0,3,2] row_mask:0xf bank_mask:0xf\ns_nop 1\nv_add_f32_dpp v48, v48, v48 quad_perm:[2,3,0,1] row_mask:0xf bank_mask:0xf")
        e("v_mov_b32 v49, v48\ns_nop 1\nv_permlane16_swap_b32 v48, v49\ns_nop 1\nv_add_f32 v48, v48, v49")

    e("s_cmp_ge_u32 s2, 256\ns_cbranch_scc1 L_end")
    if stamps: e("s_mov_b32 m0, 0\nv_mov_b32 v62, 0\nv_mov_b32 v63, 0")
    e("s_load_dwordx4 s[4:7], s[0:1], 8")
    e("s_load_dwordx4 s[44:47], s[0:1], 80")
    e("s_load_dwordx2 s[20:21], s[0:1], 0")
    e("s_load_dwordx4 s[24:27], s[0:1], 24")
    e("s_load_dwordx4 s[28:31], s[0:1], 48\ns_load_dwordx4 s[32:35], s[0:1], 64")
    e("v_and_b32 v1, 63, v0\nv_lshrrev_b32 v2, 6, v0\nv_lshlrev_b32 v1, 4, v1\nv_readfirstlane_b32 s3, v2")
    e("s_mov_b32 s36, 0xaaaaaaaa\ns_mov_b32 s37, 0xaaaaaaaa\ns_mov_b32 s38, 0xcccccccc\ns_mov_b32 s39, 0xcccccccc")
    e("s_lshr_b32 s40, s2, 1\ns_xor_b32 s41, s40, s2\ns_and_b32 s41, s41, 1\ns_and_b32 s48, s40, 1")
    e("s_bfe_u32 s40, s2, 0x10002\ns_lshl_b32 s40, s40, 1\ns_or_b32 s77, s41, s40")
    e("s_lshr_b32 s51, s2, 3\ns_lshl_b32 s51, s51, 2\ns_add_u32 s51, s51, s77\ns_and_b32 s49, s51, 31\ns_lshr_b32 s50, s2, 6")
    e("v_bfe_u32 v2, v0, 4, 2\nv_and_b32 v3, 15, v0")
    e("s_cmp_ge_u32 s3, 4\ns_cbranch_scc1 L_helper")
    fstamp()
    e("s_lshl_b32 s54, s51, 21")
    def setoff(k, dst):
        e(f"s_sub_u32 s40, 127, {k}\ns_cmp_eq_u32 s48, 0\ns_cselect_b32 s40, {k}, s40\ns_lshr_b32 s41, s40, 2\ns_lshl_b32 s41, s41, 16\ns_and_b32 s40, s40, 3\ns_lshl_b32 s40, s40, 12\ns_add_u32 {dst}, s54, s41\ns_add_u32 {dst}, {dst}, s40")
    setoff("s3", "s52")
    e("s_mov_b32 s53, 0x10000\ns_cmp_eq_u32 s48, 0\ns_cselect_b32 s53, s53, 0xffff0000\ns_cselect_b32 s55, 1, 0x10000\ns_cselect_b32 s56, 0, 16\ns_add_u32 s57, s52, s53")
    e("s_waitcnt lgkmcnt(0)\ns_mov_b32 s8, s6\ns_mov_b32 s9, s7")
    a.srd(4, 4, 1 << 28); a.srd(8, 8, 1 << 28); a.srd(12, 46, WSZ)
    RA, RB, RC = 128, 192, 64
    def ld(kind, i, rb, off):
        sr = "s22" if kind == "K" else "s23"
        if i % 4 == 0: e(f"s_add_u32 {sr}, {off}, {(i//4)*16384}")
        e(f"buffer_load_dwordx4 v[{rb+4*i}:{rb+4*i+3}], v1, {'s[4:7]' if kind == 'K' else 's[8:11]'}, {sr} offen offset:{(i%4)*1024} {kf if kind == 'K' else vf}")
    for i in range(16):
        if i == kfirst: e("s_barrier")
        ld("K", i, RA, "s52")
    if stamps >= 2: fstamp()
    for i in range(16): ld("V", i, RB, "s52")
    if stamps >= 2: fstamp()
    for i in range(16): ld("K", i, RC, "s57")
    masks()
    e("v_mov_b32 v20, 0\nv_mov_b32 v21, 0\nv_mov_b32 v22, 0\nv_mov_b32 v23, 0\nv_mov_b32 v24, 0xff7fffff\nv_mov_b32 v25, 0")
    e(f"v_lshlrev_b32 v26, 5, v3\nv_mov_b32 v27, {L_PR}\ns_mov_b32 s65, 0")
    e(f"s_lshl_b32 s40, s51, 8\ns_add_u32 s40, s40, {WS_TK}\ns_add_u32 s74, s46, s40\ns_addc_u32 s75, s47, 0")
    fstamp()
    e("s_barrier")
    e("ds_read_b32 v31, v27 offset:8")
    for w in range(4):
        rb = (32, 40, 48, 12)[w]
        e(f"ds_read_b128 v[{rb}:{rb+3}], v26 offset:{L_QP+512*w}\nds_read_b128 v[{rb+4}:{rb+7}], v26 offset:{L_QP+512*w+16}")
    e("s_waitcnt lgkmcnt(0)")
    for j in range(8):
        e(f"v_add_f32 v{32+j}, v{32+j}, v{40+j}\nv_add_f32 v{48+j}, v{48+j}, v{12+j}\nv_add_f32 v{32+j}, v{32+j}, v{48+j}")
    for j in range(4): e(f"v_cvt_pk_bf16_f32 v{4+j}, v{32+2*j}, v{33+2*j}")
    e("v_readfirstlane_b32 s71, v31")
    def A(i): return f"v{32+i}"
    def kpart(src, wait, issue):
        fstamp()
        for i in range(16):
            e(f"s_waitcnt vmcnt({wait(i)})")
            for j in range(4):
                e(f"v_dot2_f32_bf16 {A(i)}, v{src+4*i+j}, v{4+j}, {'0' if j == 0 else A(i)}")
            issue(i)
        for i in range(8):
            e(f"v_add_f32_dpp {A(i)}, {A(i)}, {A(i)} row_ror:8 row_mask:0xf bank_mask:0x3")
            e(f"v_add_f32_dpp {A(i)}, {A(i+8)}, {A(i+8)} row_ror:8 row_mask:0xf bank_mask:0xc")
        for i in range(4):
            e(f"v_add_f32_dpp {A(i)}, {A(i)}, {A(i)} row_half_mirror row_mask:0xf bank_mask:0x5")
            e(f"v_add_f32_dpp {A(i)}, {A(i+4)}, {A(i+4)} row_half_mirror row_mask:0xf bank_mask:0xa")
        e(f"v_cndmask_b32 v28, {A(1)}, {A(0)}, s[36:37]\nv_cndmask_b32 v29, {A(0)}, {A(1)}, s[36:37]")
        e(f"v_cndmask_b32 v30, {A(3)}, {A(2)}, s[36:37]\nv_cndmask_b32 v31, {A(2)}, {A(3)}, s[36:37]")
        e("v_add_f32_dpp v29, v28, v29 quad_perm:[1,0,3,2] row_mask:0xf bank_mask:0xf")
        e("v_add_f32_dpp v31, v30, v31 quad_perm:[1,0,3,2] row_mask:0xf bank_mask:0xf")
        e("v_cndmask_b32 v28, v31, v29, s[38:39]\nv_cndmask_b32 v30, v29, v31, s[38:39]\ns_nop 0")
        e("v_add_f32_dpp v30, v28, v30 quad_perm:[2,3,0,1] row_mask:0xf bank_mask:0xf")
        a.rbf("v30"); e("v_mul_f32 v30, 0x3db504f3, v30"); a.rbf("v30")
        e("v_max_f32 v28, v30, v24")
        allsum("v28", "v29", "max")
        e(f"v_sub_f32 v29, v24, v28\nv_sub_f32 v30, v30, v28\nv_mul_f32 v29, {LOG2E}, v29\nv_mul_f32 v30, {LOG2E}, v30\nv_exp_f32 v29, v29\nv_exp_f32 v30, v30\nv_mov_b32 v24, v28")
        e("v_fma_f32 v25, v25, v29, v30\nv_cvt_pk_bf16_f32 v30, v30, v30")
        for r in range(4): e(f"v_mul_f32 v{20+r}, v{20+r}, v29")
        e("s_add_u32 s65, s65, 1\nv_mov_b32 v26, s65\nds_max_u32 v27, v26")
    def vpart(src, wait, issue):
        for i in range(16):
            bb = 12 + 4 * (i & 1)
            for r in range(4):
                e(f"v_and_b32_dpp v{bb+r}, v30, v{8+r} row_newbcast:{i} row_mask:0xf bank_mask:0xf")
            e(f"s_waitcnt vmcnt({wait(i)})\ns_nop 0")
            e(f"v_mfma_f32_16x16x32_bf16 v[20:23], v[{src+4*i}:{src+4*i+3}], v[{bb}:{bb+3}], v[20:23]")
            issue(i)
    none = lambda i: None
    kpart(RA, lambda i: 47, lambda i: ld("V", i, RA, "s57"))
    e("s_add_u32 s52, s57, s53")
    vpart(RB, lambda i: 47 - i + min(i, D), lambda i: ld("K", i, RB, "s52") if i < D else None)
    kpart(RC, lambda i: 31 - i + D, none)
    vpart(RA, lambda i: 15 - i + D, none)
    e("L_task:")
    e(f"s_add_u32 s57, s52, s53\ns_cmp_lt_u32 s65, {NS-1 if dyn else 15}\ns_cbranch_scc1 L_nt\ns_mov_b32 s72, s55\ns_atomic_add s72, s[74:75], 0 glc\nL_nt:")
    def iss_k(i):
        p = i + D
        if p < 16: ld("K", p, RB, "s52")
        else: ld("V", p - 16, RB, "s52")
    kpart(RB, lambda i: D - 1, iss_k)
    e(f"s_cmp_lt_u32 s65, {NS if dyn else 16}\ns_cbranch_scc1 L_have")
    if dyn:
        e(f"s_waitcnt lgkmcnt(0)\ns_sub_u32 s72, s72, s71\ns_and_b32 s42, s72, 0xffff\ns_lshr_b32 s43, s72, 16\ns_add_u32 s42, s42, s43\ns_cmp_ge_u32 s42, {NM4}\ns_cbranch_scc1 L_last")
        e(f"s_cmp_lg_u32 s42, {NM4-GT}\ns_cbranch_scc1 L_nogt\ns_mov_b32 s78, 1\ns_atomic_add s78, s[44:45], 128 glc\ns_waitcnt lgkmcnt(0)\ns_add_u32 s78, s78, 1\nv_mov_b32 v26, s78\nds_write_b32 v27, v26 offset:20\nL_nogt:")
        e(f"s_lshr_b32 s72, s72, s56\ns_and_b32 s72, s72, 0xffff\ns_add_u32 s72, s72, {4*NS}")
        setoff("s72", "s57")
    else:
        e("s_branch L_last")
    e("L_have:")
    def iss_v(i):
        p = i + D
        if p < 16: ld("V", p, RB, "s52")
        else: ld("K", p - 16, RB, "s57")
    vpart(RB, lambda i: D - 1, iss_v)
    e("s_mov_b32 s52, s57\ns_branch L_task")
    e("L_last:")
    vpart(RB, lambda i: min(D - 1, 15 - i), lambda i: ld("V", i + D, RB, "s52") if i + D < 16 else None)
    fstamp()
    e("v_and_b32 v28, 7, v0\nv_lshl_add_u32 v28, v2, 5, v28\nv_bfe_u32 v29, v0, 3, 1\nv_lshl_add_u32 v28, v29, 7, v28\nv_lshlrev_b32 v28, 2, v28\ns_lshl_b32 s40, s3, 10\nv_add_u32 v28, s40, v28\ns_nop 1")
    for r in range(4): e(f"ds_write_b32 v28, v{20+r} offset:{L_OA+32*r}")
    allsum("v25", "v29")
    e(f"s_lshl_b32 s40, s3, 3\nv_mov_b32 v29, s40\nds_write_b64 v29, v[24:25] offset:{L_ML}")
    e("v_mov_b32 v26, 1\ns_mov_b64 exec, 1\ns_waitcnt lgkmcnt(0)\nds_add_u32 v27, v26 offset:16\ns_mov_b64 exec, -1")
    e("L_sfin:")
    if stamps:
        e("s_cmp_lg_u32 s3, 0\ns_cbranch_scc1 L_end")
        fstamp_store("v62", 0)
    e("s_endpgm")
    e("L_helper:")
    S = "v63"
    fstamp(S)
    e("s_sub_u32 s3, s3, 4")
    if prio: e(f"s_setprio {prio}")
    e("s_lshl_b32 s58, s50, 1\ns_add_u32 s58, s58, s48")
    e("v_lshlrev_b32 v26, 13, v2\nv_lshl_add_u32 v26, v3, 4, v26")
    e(f"v_mov_b32 v20, 0\nv_mov_b32 v21, 0\nv_mov_b32 v22, 0\nv_mov_b32 v23, 0\nv_mov_b32 v28, {L_PR}\nds_write_b128 v28, v[20:23]\nds_write_b128 v28, v[20:23] offset:16")
    e("s_lshl_b32 s40, s49, 8\ns_lshl_b32 s41, s58, 19\ns_add_u32 s40, s40, s41\ns_lshl_b32 s41, s3, 17\ns_add_u32 s40, s40, s41")
    e("s_lshl_b32 s41, s3, 10\ns_waitcnt lgkmcnt(0)")
    a.srd(16, 20, 4096)
    e("buffer_load_dwordx4 v[48:51], v1, s[16:19], s41 offen")
    a.srd(16, 24, 512 * 4096 * 2)
    if abl & 8: e("s_mov_b32 s18, 0")
    if kfirst: e("s_barrier")
    for t in range(4):
        e(f"buffer_load_dwordx4 v[{64+4*t}:{67+4*t}], v26, s[16:19], s40 offen {wqf}\ns_add_u32 s40, s40, 0x8000")
    if not kfirst: e("s_barrier")
    a.srd(12, 46, WSZ)
    e(f"s_lshl_b32 s42, s49, 8\ns_add_u32 s76, s42, {WS_EP}\ns_add_u32 s42, s46, s76\ns_addc_u32 s43, s47, 0\ns_load_dwordx2 s[56:57], s[42:43], 0 glc")
    e(f"s_lshl_b32 s42, s51, 8\ns_add_u32 s42, s42, {WS_TK}\ns_add_u32 s42, s46, s42\ns_addc_u32 s43, s47, 0\ns_mov_b32 s72, 0\ns_cmp_lg_u32 s3, s50\ns_cbranch_scc1 L_nobase\ns_load_dword s72, s[42:43], 0 glc\nL_nobase:")
    masks()
    e(f"s_lshl_b32 s67, s3, 12\ns_add_u32 s67, s67, {L_TR}\nv_add_u32 v24, s67, v1\nv_mov_b32 v28, {L_PR}")
    e("s_mov_b32 s62, 0x01000100\ns_mov_b32 s63, 0x03020302")
    e("s_lshl_b32 s40, s3, 11\nv_lshlrev_b32 v58, 1, v1\nv_add_u32 v58, s40, v58")
    e("s_lshl_b32 s41, s58, 8\ns_add_u32 s40, s40, s41\nv_lshlrev_b32 v59, 4, v3\nv_lshl_add_u32 v59, v2, 2, v59\nv_add_u32 v59, s40, v59")
    e("s_waitcnt vmcnt(4)")
    fstamp(S)
    for i in range(4):
        e(f"v_lshlrev_b32 v{40+2*i}, 16, v{48+i}\nv_and_b32 v{41+2*i}, 0xffff0000, v{48+i}")
    ln8(40, 52)
    for i in (3, 2, 1, 0): e(f"v_perm_b32 v{41+2*i}, v{40+i}, v{40+i}, s63\nv_perm_b32 v{40+2*i}, v{40+i}, v{40+i}, s62")
    e(f"ds_write_b128 v58, v[40:43] offset:{L_XD}\nds_write_b128 v58, v[44:47] offset:{L_XD+16}")
    for t in range(4): e(f"s_waitcnt vmcnt({3-t})\nds_write_b128 v24, v[{64+4*t}:{67+4*t}] offset:{1024*t}")
    fstamp(S)
    gsync(12)
    e(f"ds_read_b32 v53, v59 offset:{L_XD}")
    for t in range(16): e(f"ds_read_b128 v[{64+4*t}:{67+4*t}], v1 offset:{L_TR+1024*t}")
    e("s_cmp_lg_u32 s3, s50\ns_cbranch_scc1 L_nobase2\nv_mov_b32 v44, s72\nds_write_b32 v28, v44 offset:8\ns_waitcnt lgkmcnt(0)\nL_nobase2:")
    e("s_add_u32 s56, s56, 1\ns_addc_u32 s57, s57, 0\nv_mov_b32 v42, s56\nv_mov_b32 v43, s57\nv_mov_b32 v46, s56\nv_mov_b32 v47, s57")
    e("s_lshl_b32 s40, s49, 2\ns_add_u32 s40, s40, s3\ns_lshl_b32 s40, s40, 3\ns_add_u32 s40, s40, s58\ns_lshl_b32 s40, s40, 10")
    e(f"s_add_u32 s40, s40, {WS_Q}\nv_lshlrev_b32 v52, 8, v2\nv_lshl_add_u32 v52, v3, 4, v52\ns_waitcnt lgkmcnt(15)")
    for t in range(16):
        bb = 12 + 4 * (t & 1)
        for r in range(4):
            e(f"v_and_b32_dpp v{bb+r}, v53, v{8+r} row_newbcast:{t} row_mask:0xf bank_mask:0xf")
        e(f"s_waitcnt lgkmcnt({15-t})\ns_nop 0")
        e(f"v_mfma_f32_16x16x32_bf16 v[20:23], v[{64+4*t}:{67+4*t}], v[{bb}:{bb+3}], v[20:23]")
    e("s_lshl_b32 s61, s49, 2\ns_add_u32 s61, s61, s50\ns_lshl_b32 s61, s61, 3\ns_lshl_b32 s42, s3, 1\ns_add_u32 s61, s61, s42\ns_lshl_b32 s61, s61, 10")
    e(f"s_add_u32 s61, s61, {WS_Q}\ns_mov_b32 exec_lo, 0x00ff00ff\ns_mov_b32 exec_hi, 0x00ff00ff")
    e("v_mov_b32 v40, v20\nv_mov_b32 v41, v21\nv_mov_b32 v44, v22\nv_mov_b32 v45, v23")
    e("buffer_store_dwordx4 v[40:43], v52, s[12:15], s40 offen sc1\nbuffer_store_dwordx4 v[44:47], v52, s[12:15], s40 offen offset:128 sc1\ns_mov_b64 exec, -1")
    fstamp(S)
    a.srd(16, 26, 4096 * 512 * 2)
    if abl & 1: e("s_mov_b32 s18, 0")
    if abl & 2: e("s_mov_b32 s14, 0")
    e("v_bfe_u32 v27, v0, 3, 3\nv_lshlrev_b32 v27, 10, v27\nv_and_b32 v28, 7, v0\nv_lshl_add_u32 v27, v28, 4, v27")
    e("s_lshl_b32 s40, s49, 17\ns_lshl_b32 s41, s58, 7\ns_add_u32 s40, s40, s41\ns_lshl_b32 s41, s3, 15\ns_add_u32 s40, s40, s41")
    for t in range(4): e(f"buffer_load_dwordx4 v[{96+4*t}:{99+4*t}], v27, s[16:19], s40 offen {wf}\ns_add_u32 s40, s40, 8192")
    e("v_mov_b32 v28, -1\nv_mov_b32 v29, -1\nv_mov_b32 v30, -1\nv_mov_b32 v31, -1\nv_and_b32 v27, 255, v0")
    e(f"s_lshl_b32 s40, s51, 1\ns_add_u32 s40, s40, s48\ns_lshl_b32 s54, s40, 10\ns_add_u32 s54, s54, {WS_O}\nv_lshlrev_b32 v32, 2, v27")
    e("buffer_store_dword v28, v32, s[12:15], s54 offen sc1")
    e("v_lshlrev_b32 v33, 16, v2\nv_bfe_u32 v34, v0, 3, 1\nv_lshl_add_u32 v33, v34, 10, v33\nv_and_b32 v34, 7, v0\nv_lshl_add_u32 v33, v34, 2, v33")
    e(f"s_lshl_b32 s60, s58, 13\ns_lshl_b32 s40, s3, 11\ns_add_u32 s60, s60, s40\ns_lshl_b32 s40, s49, 5\ns_add_u32 s60, s60, s40\ns_add_u32 s60, s60, {WS_Y}")
    e("buffer_store_dword v28, v33, s[12:15], s60 offen sc1")
    e("s_lshr_b32 s79, s2, 3\ns_sub_u32 s79, s79, 16\ns_lshl_b32 s79, s79, 2\ns_add_u32 s79, s79, s77\ns_lshl_b32 s79, s79, 2\ns_add_u32 s79, s79, s3\ns_cmp_eq_u32 s48, 1\ns_cselect_b32 s79, s79, 0x10000")
    e("v_bfe_u32 v36, v0, 2, 1\nv_bfe_u32 v37, v0, 3, 1\nv_lshl_add_u32 v36, v37, 1, v36\nv_bfe_u32 v37, v0, 5, 1\nv_lshl_add_u32 v36, v37, 2, v36")
    e("v_and_b32 v37, 3, v0\nv_bfe_u32 v38, v0, 4, 1\nv_lshl_add_u32 v37, v38, 2, v37\nv_lshlrev_b32 v37, 13, v37\nv_lshl_add_u32 v37, v36, 2, v37")
    e(f"s_lshl_b32 s55, s79, 5\ns_add_u32 s55, s55, {WS_H}\ns_cmp_lt_u32 s79, 256\ns_cselect_b32 s55, s55, 0x40000000\nbuffer_store_dword v28, v37, s[12:15], s55 offen sc1")
    e(f"s_lshl_b32 s59, s2, 13\ns_add_u32 s59, s59, {WS_D}\ns_cmp_lt_u32 s2, {NG}\ns_cselect_b32 s59, s59, 0x40000000\ns_add_u32 s40, s59, 4096\nv_lshlrev_b32 v27, 4, v27")
    e("buffer_store_dwordx4 v[28:31], v27, s[12:15], s59 offen sc1\nbuffer_store_dwordx4 v[28:31], v27, s[12:15], s40 offen sc1")
    a.srd(16, 20, 4096)
    e("v_lshlrev_b32 v38, 1, v36\ns_lshl_b32 s40, s79, 4\nbuffer_load_ushort v39, v38, s[16:19], s40 offen")
    e("v_and_b32 v52, 7, v0\nv_and_b32 v53, 63, v0\nv_lshlrev_b32 v53, 1, v53\nv_sub_u32 v52, v53, v52\nv_lshlrev_b32 v52, 2, v52\ns_lshl_b32 s40, s3, 9\nv_add_u32 v52, s40, v52")
    if abl & 2: e("s_mov_b32 s14, 0x40000000")
    if abl & 4: e("s_waitcnt vmcnt(0)\ns_branch L_pq_ok")
    e("s_mov_b32 s66, 0\nL_pq:")
    e("buffer_load_dwordx4 v[64:67], v1, s[12:15], s61 offen sc1\nbuffer_load_dwordx4 v[68:71], v1, s[12:15], s61 offen offset:1024 sc1\ns_waitcnt vmcnt(0)")
    e("v_xor_b32 v72, s56, v66\nv_xor_b32 v73, s57, v67\nv_xor_b32 v74, s56, v70\nv_xor_b32 v75, s57, v71\nv_or3_b32 v72, v72, v73, v74\nv_or_b32 v72, v72, v75")
    e(f"v_cmp_ne_u32 vcc, 0, v72\ns_cbranch_vccz L_pq_ok\ns_mov_b64 exec, vcc\ns_add_u32 s66, s66, 1\ns_cmp_gt_u32 s66, 400000\ns_cbranch_scc1 L_pq_ok\ns_sleep {qsleep}\ns_branch L_pq\nL_pq_ok:\ns_mov_b64 exec, -1")
    e(f"v_add_f32 v64, v64, v68\nv_add_f32 v65, v65, v69\nds_write_b32 v52, v64 offset:{L_QP}\nds_write_b32 v52, v65 offset:{L_QP+32}\ns_waitcnt lgkmcnt(0)")
    fstamp(S)
    e("s_barrier")
    if hexit == 1: e("s_endpgm")
    e(f"v_lshlrev_b32 v39, 16, v39\nv_mov_b32 v28, {L_PR}\nv_mov_b32 v29, 1\ns_mov_b64 exec, 1\nds_add_rtn_u32 v29, v28, v29 offset:4\ns_waitcnt lgkmcnt(0)\ns_mov_b64 exec, -1\nv_readfirstlane_b32 s70, v29")
    e(f"v_bfe_u32 v25, v0, 2, 2\nv_lshlrev_b32 v25, 7, v25\nv_lshl_add_u32 v25, v2, 10, v25\nv_and_b32 v28, 3, v0\nv_lshl_add_u32 v25, v28, 3, v25\ns_lshl_b32 s41, s3, 5\ns_add_u32 s41, s41, {L_TR}\nv_add_u32 v25, s41, v25")
    for t in range(4): e(f"ds_write_b128 v24, v[{96+4*t}:{99+4*t}] offset:{1024*t}")
    gsync(12)
    for ks in range(4):
        for hh in range(2):
            e(f"ds_read_b64_tr_b16 v[{112+4*ks+2*hh}:{113+4*ks+2*hh}], v25 offset:{4096*ks+512*hh}")
    def wait_progress(lbl, sreg):
        e(f"v_mov_b32 v28, {L_PR}\n{lbl}:\nds_read_b32 v29, v28\ns_waitcnt lgkmcnt(0)\nv_readfirstlane_b32 s40, v29\ns_cmp_ge_u32 s40, {sreg}\ns_cbranch_scc1 {lbl}_ok\ns_sleep 32\ns_branch {lbl}\n{lbl}_ok:")
    e("s_cmp_lg_u32 s70, 3\ns_cbranch_scc1 L_noinit\ns_bfe_u32 s41, s2, 0x20003\ns_add_u32 s41, s41, 1")
    wait_progress("L_iw", "s41")
    e("s_mov_b32 s64, 1\ns_atomic_add s64, s[44:45], 0\nL_noinit:")
    e("v_bfe_u32 v34, v0, 5, 1\nv_lshlrev_b32 v34, 10, v34\nv_and_b32 v35, 31, v0\nv_lshl_add_u32 v35, v35, 4, v34")
    e(f"s_lshl_b32 s61, s49, 11\ns_lshl_b32 s40, s3, 16\ns_add_u32 s61, s61, s40\ns_add_u32 s61, s61, {WS_O}")
    e(f"v_and_b32 v4, 31, v0\nv_lshlrev_b32 v4, 3, v4\ns_mul_i32 s40, s3, 272\nv_add_u32 v4, s40, v4")
    e("v_bfe_u32 v5, v0, 2, 2\nv_mul_u32_u24 v5, 272, v5\nv_lshl_add_u32 v5, v2, 4, v5")
    e("s_lshl_b32 s40, s3, 5\nv_lshlrev_b32 v6, 2, v36\nv_add_u32 v6, s40, v6\nv_and_b32 v7, 7, v0\nv_lshlrev_b32 v7, 4, v7\nv_bfe_u32 v37, v0, 3, 3\nv_lshl_add_u32 v37, v37, 13, v7")
    e(f"s_lshl_b32 s62, s79, 10\ns_add_u32 s62, s62, {WS_Y}\nv_and_b32 v44, 31, v0\nv_lshlrev_b32 v44, 5, v44\nv_bfe_u32 v45, v0, 5, 1\nv_lshl_add_u32 v44, v45, 4, v44")
    e(f"v_lshlrev_b32 v45, 9, v1\ns_lshl_b32 s63, s79, 5\ns_add_u32 s63, s63, {WS_D}\ns_lshl_b32 s67, s79, 4")
    wait_progress("L_w2", NS - 2)
    e("v_lshrrev_b32 v28, 1, v1\nv_mov_b32 v29, 0")
    a.srd(16, 44, 256)
    e("s_mov_b32 s66, 0\nL_initchk:\nbuffer_load_dword v31, v29, s[16:19], 0 offen sc1\ns_waitcnt vmcnt(0)\nv_readfirstlane_b32 s64, v31\ns_cmp_ge_u32 s64, 256\ns_cbranch_scc1 L_initok\ns_add_u32 s66, s66, 1\ns_cmp_gt_u32 s66, 200000\ns_cbranch_scc1 L_initok\ns_sleep 8\ns_branch L_initchk\nL_initok:")
    if hexit == 2: e("s_endpgm")
    def glu_loads():
        a.srd(16, 32, 512 * 1792 * 2)
        e("v_lshlrev_b32 v26, 13, v2\nv_lshl_add_u32 v26, v3, 3, v26\ns_lshl_b32 s40, s78, 15\ns_lshl_b32 s41, s3, 8\ns_add_u32 s40, s40, s41")
        for ee in range(8):
            if ee == 4: e("s_add_u32 s40, s40, 4096")
            e(f"buffer_load_dwordx2 v[{64+4*ee}:{65+4*ee}], v26, s[16:19], s40 offen offset:{(ee%4)*1024} {wf}")
            e(f"buffer_load_dwordx2 v[{66+4*ee}:{67+4*ee}], v26, s[16:19], s40 offen offset:{(ee%4)*1024+128} {wf}")
        e("s_cmp_lt_u32 s3, 2\ns_cselect_b32 s42, s28, s30\ns_cselect_b32 s43, s29, s31")
        a.srd(16, 42, 512 * 1792 * 2)
        e("v_bfe_u32 v26, v0, 2, 4\nv_mul_u32_u24 v26, 3584, v26\nv_and_b32 v28, 3, v0\nv_lshl_add_u32 v26, v28, 4, v26")
        e(f"s_lshl_b32 s40, s78, 6\ns_and_b32 s41, s3, 1\ns_mul_i32 s41, s41, {256*3584}\ns_add_u32 s40, s40, s41")
        for t in range(16): e(f"buffer_load_dwordx4 v[{128+4*t}:{131+4*t}], v26, s[16:19], s40 offen {wf}\ns_add_u32 s40, s40, {16*3584}")
    e(f"s_setprio 0\ns_mov_b32 s78, 255\nv_mov_b32 v27, {L_PR}\nL_wf:\nds_read_b64 v[30:31], v27 offset:16\ns_waitcnt lgkmcnt(0)\nv_readfirstlane_b32 s40, v30\nv_readfirstlane_b32 s41, v31")
    e(f"s_cmp_eq_u32 s41, 0\ns_cbranch_scc1 L_wf2\ns_cmp_lg_u32 s78, 255\ns_cbranch_scc1 L_wf2\ns_sub_u32 s78, s41, 1\ns_cmp_ge_u32 s78, {NG}\ns_cbranch_scc1 L_wf2")
    e(f"s_setprio {prio}")
    glu_loads()
    e("s_mov_b32 s80, 0x05040100\ns_mov_b32 s81, 0x07060302")
    e(f"s_lshl_b32 s41, s3, 14\ns_add_u32 s41, s41, {L_TR}\nv_add_u32 v24, s41, v1")
    e(f"v_bfe_u32 v25, v0, 2, 2\nv_lshlrev_b32 v25, 6, v25\nv_lshl_add_u32 v25, v2, 9, v25\nv_and_b32 v28, 3, v0\nv_lshl_add_u32 v25, v28, 3, v25")
    e(f"s_lshr_b32 s41, s3, 1\ns_lshl_b32 s41, s41, 15\ns_and_b32 s42, s3, 1\ns_lshl_b32 s42, s42, 5\ns_add_u32 s41, s41, s42\ns_add_u32 s41, s41, {L_TR}\nv_add_u32 v25, s41, v25")
    e("s_waitcnt vmcnt(16)")
    for j in range(8):
        for q in range(4):
            e(f"v_perm_b32 v{192+4*j+q}, v{64+4*(2*q+1)+(j>>1)}, v{64+4*(2*q)+(j>>1)}, {'s80' if j%2==0 else 's81'}")
    for t in range(16): e(f"s_waitcnt vmcnt({15-t})\nds_write_b128 v24, v[{128+4*t}:{131+4*t}] offset:{1024*t}")
    gsync(12)
    for ks in range(16):
        for hh in range(2):
            e(f"ds_read_b64_tr_b16 v[{128+4*ks+2*hh}:{129+4*ks+2*hh}], v25 offset:{2048*ks+256*hh}")
    e(f"s_and_b32 s40, s78, 7\ns_lshl_b32 s40, s40, 13\ns_lshl_b32 s41, s3, 11\ns_add_u32 s73, s40, s41\ns_add_u32 s73, s73, {WS_H}\nv_lshlrev_b32 v46, 1, v1")
    e(f"s_mul_i32 s40, s3, 1040\nv_add_u32 v47, s40, v1\nv_and_b32 v43, 3, v0\nv_mul_u32_u24 v43, 1040, v43\nv_lshl_add_u32 v43, v2, 4, v43")
    e("v_lshlrev_b32 v40, 2, v3\ns_lshr_b32 s40, s3, 1\ns_lshl_b32 s40, s40, 9\ns_and_b32 s41, s3, 1\ns_lshl_b32 s41, s41, 6\ns_add_u32 s40, s40, s41\nv_add_u32 v40, s40, v40")
    e("v_bfe_u32 v41, v0, 2, 2\nv_lshlrev_b32 v41, 7, v41\nv_lshl_add_u32 v41, v2, 5, v41\nv_and_b32 v61, 3, v0\nv_lshl_add_u32 v41, v61, 3, v41")
    e(f"v_lshlrev_b32 v42, 11, v2\nv_lshl_add_u32 v42, v3, 4, v42\ns_lshl_b32 s59, s78, 13\ns_lshl_b32 s40, s3, 9\ns_add_u32 s59, s59, s40\ns_add_u32 s59, s59, {WS_D}")
    e("s_setprio 0\ns_branch L_wf")
    e(f"L_wf2:\ns_cmp_ge_u32 s40, 4\ns_cbranch_scc1 L_wf_ok\ns_sleep {wsleep}\ns_branch L_wf\nL_wf_ok:\ns_setprio {prio}")
    e("v_lshrrev_b32 v28, 1, v1\nv_mov_b32 v29, 0")
    a.srd(16, 34, 4096)
    fstamp(S)
    e("s_cmp_lg_u32 s3, 0\ns_cbranch_scc1 L_st2")
    e(f"ds_read_b128 v[48:51], v29 offset:{L_ML}\nds_read_b128 v[52:55], v29 offset:{L_ML+16}")
    for w in range(4): e(f"ds_read_b64 v[{64+2*w}:{65+2*w}], v28 offset:{L_OA+1024*w}")
    e("s_waitcnt lgkmcnt(4)\nv_max_f32 v56, v48, v50\nv_max3_f32 v56, v56, v52, v54")
    for w in range(4): e(f"v_sub_f32 v{58+w}, v{48+2*w}, v56")
    for w in range(4): e(f"v_mul_f32 v{58+w}, {LOG2E}, v{58+w}")
    for w in range(4): e(f"v_exp_f32 v{58+w}, v{58+w}")
    e("s_waitcnt lgkmcnt(0)\nv_mul_f32 v57, v58, v49\nv_mul_f32 v64, v64, v58\nv_mul_f32 v65, v65, v58")
    for w in range(1, 4): e(f"v_fmac_f32 v57, v{58+w}, v{49+2*w}\nv_fmac_f32 v64, v{64+2*w}, v{58+w}\nv_fmac_f32 v65, v{65+2*w}, v{58+w}")
    e("v_min_u32 v64, -2, v64\nv_min_u32 v65, -2, v65\nv_min_u32 v56, -2, v56\nv_min_u32 v57, -2, v57")
    e("buffer_store_dwordx2 v[64:65], v28, s[12:15], s54 offen sc1\ns_mov_b64 exec, 1\nbuffer_store_dwordx2 v[56:57], v28, s[12:15], s54 offen offset:512 sc1\ns_mov_b64 exec, -1")
    fstamp(S)
    e("L_st2:")
    poll("L_p1", ["buffer_load_dwordx4 v[64:67], v35, s[12:15], s61 offen sc1", "buffer_load_dwordx2 v[56:57], v34, s[12:15], s61 offen offset:512 sc1"],
         [f"v{i}" for i in range(64, 68)] + ["v56", "v57"], slp=lsleep)
    e("v_mov_b32 v58, v56\nv_mov_b32 v60, v56\nv_mov_b32 v59, v57\nv_mov_b32 v61, v57\ns_nop 0\nv_permlane32_swap_b32 v58, v60\nv_permlane32_swap_b32 v59, v61\ns_nop 0")
    e(f"v_max_f32 v57, v58, v60\nv_sub_f32 v56, v56, v57\nv_sub_f32 v58, v58, v57\nv_sub_f32 v60, v60, v57\nv_mul_f32 v56, {LOG2E}, v56\nv_mul_f32 v58, {LOG2E}, v58\nv_mul_f32 v60, {LOG2E}, v60\nv_exp_f32 v56, v56\nv_exp_f32 v58, v58\nv_exp_f32 v60, v60")
    e("v_mul_f32 v59, v59, v58\nv_fmac_f32 v59, v61, v60\nv_rcp_f32 v59, v59\ns_nop 0\nv_mul_f32 v56, v56, v59")
    for k in range(4): e(f"v_mul_f32 v{64+k}, v{64+k}, v56")
    e("v_mov_b32 v68, v64\nv_mov_b32 v69, v65\nv_mov_b32 v70, v66\nv_mov_b32 v71, v67\ns_nop 0")
    for k in range(4): e(f"v_permlane32_swap_b32 v{64+k}, v{68+k}")
    e("s_nop 0")
    for k in range(4): e(f"v_add_f32 v{64+k}, v{64+k}, v{68+k}")
    e(f"v_cvt_pk_bf16_f32 v64, v64, v65\nv_cvt_pk_bf16_f32 v65, v66, v67\nds_write_b64 v4, v[64:65] offset:{L_ON}\ns_waitcnt lgkmcnt(0)\ns_barrier")
    for ks in range(4): e(f"ds_read_b128 v[{80+4*ks}:{83+4*ks}], v5 offset:{L_ON+64*ks}")
    for ks in range(4):
        e(f"s_waitcnt lgkmcnt({3-ks})")
        e(f"v_mfma_f32_16x16x32_bf16 v[20:23], v[{80+4*ks}:{83+4*ks}], v[{112+4*ks}:{115+4*ks}], {'0' if ks == 0 else 'v[20:23]'}")
    e("s_nop 7\nv_min_u32 v20, -2, v20\nbuffer_store_dword v20, v33, s[12:15], s60 offen sc1")
    fstamp(S)
    e("s_cmp_ge_u32 s79, 256\ns_cbranch_scc1 L_glu")
    poll("L_p3", ["buffer_load_dwordx4 v[48:51], v44, s[12:15], s62 offen sc1"], [f"v{i}" for i in range(48, 52)], slp=s3sleep)
    e("s_nop 3")
    red4()
    a.rbf("v48"); e("v_add_f32 v48, v48, v39"); a.rbf("v48")
    e(f"v_min_u32 v39, -2, v48\nds_write_b32 v6, v39 offset:{L_HG}\ns_waitcnt lgkmcnt(0)\ns_barrier\ns_cmp_lg_u32 s3, 0\ns_cbranch_scc1 L_nohp")
    e(f"ds_read_b128 v[48:51], v7 offset:{L_HG}\ns_waitcnt lgkmcnt(0)\nbuffer_store_dwordx4 v[48:51], v37, s[12:15], s55 offen sc1\nL_nohp:")
    fstamp(S)
    e(f"L_glu:\ns_cmp_ge_u32 s78, {NG}\ns_cbranch_scc1 L_s5")
    poll("L_p4", ["buffer_load_dwordx4 v[48:51], v46, s[12:15], s73 offen sc1", "buffer_load_dwordx4 v[52:55], v46, s[12:15], s73 offen offset:16 sc1"], [f"v{i}" for i in range(48, 56)], slp=hsleep)
    fstamp(S)
    ln8(48, 56)
    e(f"ds_write_b128 v47, v[48:51] offset:{L_HN}")
    e("s_mov_b64 exec, -1\ns_waitcnt lgkmcnt(0)\ns_barrier")
    if gst: fstamp(S)
    for ks in range(12): e(f"ds_read_b128 v[{64+4*ks}:{67+4*ks}], v43 offset:{L_HN+64*ks}")
    for ks in range(12, 16): e(f"ds_read_b128 v[{224+4*(ks-12)}:{227+4*(ks-12)}], v43 offset:{L_HN+64*ks}")
    for ks in range(16):
        e(f"s_waitcnt lgkmcnt({15-ks})")
        c = "0" if ks < 2 else f"v[{20+4*(ks&1)}:{23+4*(ks&1)}]"
        ar = 64 + 4 * ks if ks < 12 else 224 + 4 * (ks - 12)
        e(f"v_mfma_f32_16x16x32_bf16 v[{20+4*(ks&1)}:{23+4*(ks&1)}], v[{ar}:{ar+3}], v[{128+4*ks}:{131+4*ks}], {c}")
    e("s_mov_b64 exec, 0xffff\ns_nop 6")
    for r in range(4): e(f"v_add_f32 v{20+r}, v{20+r}, v{24+r}\nds_write_b32 v40, v{20+r} offset:{L_AC+128*r}")
    e("s_mov_b64 exec, -1\ns_waitcnt lgkmcnt(0)\ns_barrier")
    if gst: fstamp(S)
    e(f"ds_read_b64 v[20:21], v41 offset:{L_AC}\nds_read_b64 v[22:23], v41 offset:{L_AC+512}\ns_waitcnt lgkmcnt(1)")
    e("v_cvt_pk_bf16_f32 v20, v20, v21\nv_and_b32 v21, 0xffff0000, v20\nv_lshlrev_b32 v20, 16, v20\nv_mul_f32 v21, 0xbfb8aa3b, v21\nv_mul_f32 v20, 0xbfb8aa3b, v20\nv_exp_f32 v21, v21\nv_exp_f32 v20, v20")
    e("s_waitcnt lgkmcnt(0)\nv_cvt_pk_bf16_f32 v22, v22, v23\nv_add_f32 v21, 1.0, v21\nv_add_f32 v20, 1.0, v20\nv_rcp_f32 v21, v21\nv_rcp_f32 v20, v20\nv_and_b32 v23, 0xffff0000, v22\nv_lshlrev_b32 v22, 16, v22")
    e("v_cvt_pk_bf16_f32 v20, v20, v21\nv_and_b32 v21, 0xffff0000, v20\nv_lshlrev_b32 v20, 16, v20\nv_mul_f32 v21, v21, v23\nv_mul_f32 v20, v20, v22\nv_cvt_pk_bf16_f32 v36, v20, v21\ns_nop 1")
    for q in range(4): e(f"v_mov_b32_dpp v{32+q}, v36 quad_perm:[{q},{q},{q},{q}] row_mask:0xf bank_mask:0xf")
    e("s_nop 1")
    for j in range(8):
        e(f"v_mfma_f32_16x16x32_bf16 v[{64+4*j}:{67+4*j}], v[32:35], v[{192+4*j}:{195+4*j}], 0")
    e("s_nop 0")
    for j in range(4): e(f"v_min_u32 v{96+j}, -2, v{64+4*j}")
    e("s_nop 0\nbuffer_store_dwordx4 v[96:99], v42, s[12:15], s59 offen sc1")
    for j in range(4, 8): e(f"v_min_u32 v{96+j}, -2, v{64+4*j}")
    e("buffer_store_dwordx4 v[100:103], v42, s[12:15], s59 offen offset:256 sc1")
    fstamp(S)
    e("L_s5:\ns_cmp_ge_u32 s79, 256\ns_cbranch_scc1 L_fin")
    for j in range(8): e(f"v_mov_b32 v{48+j}, 0")
    e(f"s_mov_b32 exec_lo, -1\ns_mov_b32 exec_hi, {(1 << (NG - 32)) - 1:#x}")
    poll("L_p6", ["buffer_load_dwordx4 v[48:51], v45, s[12:15], s63 offen sc1", "buffer_load_dwordx4 v[52:55], v45, s[12:15], s63 offen offset:16 sc1"], [f"v{i}" for i in range(48, 56)], slp=s5sleep)
    e("s_nop 3")
    for i in range(4): e(f"v_permlane32_swap_b32 v{48+i}, v{52+i}")
    e("s_nop 1")
    for i in range(4): e(f"v_add_f32 v{48+i}, v{48+i}, v{52+i}")
    e("s_nop 0")
    red4()
    a.rbf("v48"); e("v_add_f32 v48, v48, v39\nv_cvt_pk_bf16_f32 v48, v48, v48\ns_mov_b32 exec_lo, 0x1111\ns_mov_b32 exec_hi, 0x1111")
    e("buffer_store_short v48, v38, s[16:19], s67 offen")
    fstamp(S)
    e("L_fin:")
    e("s_cmp_lg_u32 s3, 0\ns_cbranch_scc1 L_end")
    e("s_cmp_lg_u32 s58, 0\ns_cbranch_scc1 L_noep\ns_mov_b64 exec, 1\nv_mov_b32 v48, s56\nv_mov_b32 v49, s57\nv_mov_b32 v50, 0\nbuffer_store_dwordx2 v[48:49], v50, s[12:15], s76 offen sc1\nL_noep:")
    fstamp_store(S, 65536)
    e("L_end:\ns_endpgm")
    e('.section .rodata,"a"\n.p2align 6')
    a.descriptor(KN, 256, 96, accum=256)
    return a.text()

if __name__ == "__main__":
    import os, json
    os.makedirs("v10", exist_ok=True)
    names = []
    for spec in sys.argv[1:]:
        kw = {}
        if spec != "base":
            for p in spec.split(","):
                k, v = p.split("=")
                kw[k] = v.replace("+", " ") if k in ("wf", "wqf", "kf", "vf") else int(v)
        fn = "v10/v10_" + spec.replace(",", "_").replace("=", "") + ".s"
        open(fn, "w").write(gen(**kw))
        names.append(fn)
    print(" ".join(names))
    base = ["work/bench.py", "work/fst9.py", "sequential_preLN__mha_block_cached__glu_gated_glu__decode_np.py", "cdna_kernels/cdna_launch.py", "cdna_kernels/cdna_unwritten_srd_check.py", "work/pair/pair_NS10.s"]
    print(json.dumps(base + ["work/" + f for f in names]))
```

```python
import sys
from asmlib import *
WSZ = 0x40000000
WS_O, WS_Y, WS_H, WS_D, WS_Q, WS_EP, WS_TK, WS_QB, WS_ST = 0x000000, 0x080000, 0x100000, 0x110000, 0x180000, 0x280000, 0x290000, 0x2a0000, 0x300000
NG = 56
LOG2E = "0x3fb8aa3b"
L_XD = 0
L_QP = 8192
L_OA = 10240
L_ML = 14336
L_PR = 14368
L_HN = 14400
L_AC = 18560
L_ON = 0
L_HG = 1152
L_QP2 = 19584
L_OB = L_QP2 + 2048
L_MLB = L_OB + 4096
L_TR = L_MLB + 64
L_GU = L_TR + 16384
LDS_BYTES = L_GU + 65536

def gen(stamps=0, sleep=2, wf="nt", wqf="", prio=3, lsleep=4, thr=32, NS=10, qsleep=4, kfirst=0, hexit=0, dyn=1, s5sleep=3, s3sleep=3, hsleep=3,
        gst=0, D=16, kf="nt", vf="nt", GT=24, wsleep=2, abl=0, steal=1):
    NM4 = 4 * (32 - 2 * NS)
    a = Asm(); e = a.e
    KN = NAME + "_kernel"
    e(HEADER_COMMENT.rstrip("\n"))
    e(f"; @launch grid=(256,1,1) block=(512,1,1) lds={LDS_BYTES}")
    e('.amdgcn_target "amdgcn-amd-amdhsa--gfx950"\n.text')
    a.kernel_begin(KN)
    def fstamp(reg="v62"):
        if stamps:
            e(f"s_memrealtime s[68:69]\ns_waitcnt lgkmcnt(0)\nv_writelane_b32 {reg}, s68, m0\ns_add_u32 m0, m0, 1")
    def fstamp_store(reg, off):
        if stamps:
            e(f"s_mov_b64 exec, -1\nv_and_b32 v2, 63, v0\nv_lshlrev_b32 v2, 2, v2\ns_lshl_b32 s41, s2, 8\ns_add_u32 s41, s41, {WS_ST+off}\nbuffer_store_dword {reg}, v2, s[12:15], s41 offen sc1")
    def allsum(v, t, op="add"):
        e("s_nop 1")
        for ctl in ("quad_perm:[1,0,3,2]", "quad_perm:[2,3,0,1]", "row_half_mirror", "row_mirror"):
            e(f"v_{op}_f32_dpp {v}, {v}, {v} {ctl} row_mask:0xf bank_mask:0xf\ns_nop 1")
        e(f"v_mov_b32 {t}, {v}\ns_nop 1\nv_permlane16_swap_b32 {v}, {t}\ns_nop 1\nv_{op}_f32 {v}, {v}, {t}\nv_mov_b32 {t}, {v}\ns_nop 1\nv_permlane32_swap_b32 {v}, {t}\ns_nop 1\nv_{op}_f32 {v}, {v}, {t}")
    def ln8(X, T):
        s1, s2, t1, t2, u = (f"v{T+i}" for i in range(5))
        e(f"v_readfirstlane_b32 s40, v{X}\ns_nop 1")
        e(f"v_subrev_f32 {s1}, s40, v{X}\nv_mul_f32 {s2}, {s1}, {s1}")
        for i in range(1, 8):
            e(f"v_subrev_f32 {u}, s40, v{X+i}\nv_add_f32 {s1}, {s1}, {u}\nv_fmac_f32 {s2}, {u}, {u}")
        e("s_nop 0")
        for ctl in ("quad_perm:[1,0,3,2]", "quad_perm:[2,3,0,1]", "row_half_mirror", "row_mirror"):
            e(f"v_add_f32_dpp {s1}, {s1}, {s1} {ctl} row_mask:0xf bank_mask:0xf\nv_add_f32_dpp {s2}, {s2}, {s2} {ctl} row_mask:0xf bank_mask:0xf\ns_nop 0")
        for sw in ("v_permlane16_swap_b32", "v_permlane32_swap_b32"):
            e(f"v_mov_b32 {t1}, {s1}\nv_mov_b32 {t2}, {s2}\ns_nop 0\n{sw} {s1}, {t1}\n{sw} {s2}, {t2}\ns_nop 0\nv_add_f32 {s1}, {s1}, {t1}\nv_add_f32 {s2}, {s2}, {t2}")
        e(f"v_mul_f32 {s1}, 0x3b000000, {s1}\nv_mul_f32 {s2}, 0x3b000000, {s2}\nv_fma_f32 {s2}, -{s1}, {s1}, {s2}\nv_max_f32 {s2}, 0, {s2}\nv_add_f32 {s1}, s40, {s1}")
        a.rbf(s2); a.rbf(s1)
        e(f"v_add_f32 {s2}, 0x3727c5ac, {s2}"); a.rbf(s2)
        e(f"v_sqrt_f32 {s2}, {s2}")
        for i in range(8): e(f"v_sub_f32 v{X+i}, v{X+i}, {s1}")
        a.rbf(s2)
        e(f"v_rcp_f32 {s2}, {s2}")
        for i in range(4): e(f"v_cvt_pk_bf16_f32 v{X+2*i}, v{X+2*i}, v{X+2*i+1}")
        for i in range(4): e(f"v_and_b32 v{X+2*i+1}, 0xffff0000, v{X+2*i}\nv_lshlrev_b32 v{X+2*i}, 16, v{X+2*i}")
        for i in range(8): e(f"v_mul_f32 v{X+i}, v{X+i}, {s2}")
        for i in range(4): e(f"v_cvt_pk_bf16_f32 v{X+i}, v{X+2*i}, v{X+2*i+1}")
    def masks():
        for r in range(4):
            e(f"v_mov_b32 v{8+r}, 0\nv_mov_b32 v28, 0xffff\nv_cmp_eq_u32 vcc, {2*r}, v3\ns_nop 1\nv_cndmask_b32 v{8+r}, v{8+r}, v28, vcc")
            e(f"v_mov_b32 v28, 0xffff0000\nv_cmp_eq_u32 vcc, {2*r+1}, v3\ns_nop 1\nv_cndmask_b32 v{8+r}, v{8+r}, v28, vcc")
    cnt = {12: 0, 24: 0}
    def gsync(off):
        cnt[off] += 1
        L = a.label("L_gs")
        e(f"v_mov_b32 v28, {L_PR}\nv_mov_b32 v29, 1\ns_mov_b64 exec, 1\ns_waitcnt lgkmcnt(0)\nds_add_u32 v28, v29 offset:{off}\n{L}:\nds_read_b32 v29, v28 offset:{off}\ns_waitcnt lgkmcnt(0)\nv_readfirstlane_b32 s43, v29\ns_cmp_lt_u32 s43, {4*cnt[off]}\ns_cbranch_scc1 {L}\ns_mov_b64 exec, -1")
    def poll(label, loads, words, slp=None):
        e(f"s_mov_b32 s66, 0\n{label}:")
        for l in loads: e(l)
        e("s_waitcnt vmcnt(0)")
        w = list(words)
        e(f"v_max_u32 v31, {w[0]}, {w[1]}")
        w = w[2:]
        while len(w) >= 2:
            e(f"v_max3_u32 v31, v31, {w[0]}, {w[1]}"); w = w[2:]
        if w: e(f"v_max_u32 v31, v31, {w[0]}")
        e(f"v_cmp_eq_u32 vcc, -1, v31\ns_cbranch_vccz {label}_ok\ns_mov_b64 exec, vcc\ns_add_u32 s66, s66, 1\ns_cmp_gt_u32 s66, 400000\ns_cbranch_scc1 {label}_ok")
        e(f"s_sleep {slp or sleep}\ns_branch {label}\n{label}_ok:\ns_mov_b64 exec, -1")
    def red4():
        for i in range(2):
            e(f"v_add_f32_dpp v{48+i}, v{48+i}, v{48+i} row_ror:8 row_mask:0xf bank_mask:0x3")
            e(f"v_add_f32_dpp v{48+i}, v{50+i}, v{50+i} row_ror:8 row_mask:0xf bank_mask:0xc")
        e("v_add_f32_dpp v48, v48, v48 row_half_mirror row_mask:0xf bank_mask:0x5\ns_nop 0\nv_add_f32_dpp v48, v49, v49 row_half_mirror row_mask:0xf bank_mask:0xa\ns_nop 1")
        e("v_add_f32_dpp v48, v48, v48 quad_perm:[1,0,3,2] row_mask:0xf bank_mask:0xf\ns_nop 1\nv_add_f32_dpp v48, v48, v48 quad_perm:[2,3,0,1] row_mask:0xf bank_mask:0xf")
        e("v_mov_b32 v49, v48\ns_nop 1\nv_permlane16_swap_b32 v48, v49\ns_nop 1\nv_add_f32 v48, v48, v49")

    e("s_cmp_ge_u32 s2, 256\ns_cbranch_scc1 L_end")
    if stamps: e("s_mov_b32 m0, 0\nv_mov_b32 v62, 0\nv_mov_b32 v63, 0")
    e("s_load_dwordx4 s[4:7], s[0:1], 8")
    e("s_load_dwordx4 s[44:47], s[0:1], 80")
    e("s_load_dwordx2 s[20:21], s[0:1], 0")
    e("s_load_dwordx4 s[24:27], s[0:1], 24")
    e("s_load_dwordx4 s[28:31], s[0:1], 48\ns_load_dwordx4 s[32:35], s[0:1], 64")
    e("v_and_b32 v1, 63, v0\nv_lshrrev_b32 v2, 6, v0\nv_lshlrev_b32 v1, 4, v1\nv_readfirstlane_b32 s3, v2")
    e("s_mov_b32 s36, 0xaaaaaaaa\ns_mov_b32 s37, 0xaaaaaaaa\ns_mov_b32 s38, 0xcccccccc\ns_mov_b32 s39, 0xcccccccc")
    e("s_lshr_b32 s40, s2, 1\ns_xor_b32 s41, s40, s2\ns_and_b32 s41, s41, 1\ns_and_b32 s48, s40, 1")
    e("s_bfe_u32 s40, s2, 0x10002\ns_lshl_b32 s40, s40, 1\ns_or_b32 s77, s41, s40")
    e("s_lshr_b32 s51, s2, 3\ns_lshl_b32 s51, s51, 2\ns_add_u32 s51, s51, s77\ns_and_b32 s49, s51, 31\ns_lshr_b32 s50, s2, 6")
    e("v_bfe_u32 v2, v0, 4, 2\nv_and_b32 v3, 15, v0")
    e("s_cmp_ge_u32 s3, 4\ns_cbranch_scc1 L_helper")
    fstamp()
    e("s_lshl_b32 s54, s51, 21")
    def setoff(k, dst):
        e(f"s_sub_u32 s40, 127, {k}\ns_cmp_eq_u32 s48, 0\ns_cselect_b32 s40, {k}, s40\ns_lshr_b32 s41, s40, 2\ns_lshl_b32 s41, s41, 16\ns_and_b32 s40, s40, 3\ns_lshl_b32 s40, s40, 12\ns_add_u32 {dst}, s54, s41\ns_add_u32 {dst}, {dst}, s40")
    setoff("s3", "s52")
    e("s_mov_b32 s53, 0x10000\ns_cmp_eq_u32 s48, 0\ns_cselect_b32 s53, s53, 0xffff0000\ns_cselect_b32 s55, 1, 0x10000\ns_cselect_b32 s56, 0, 16\ns_add_u32 s57, s52, s53")
    e("s_waitcnt lgkmcnt(0)\ns_mov_b32 s8, s6\ns_mov_b32 s9, s7")
    a.srd(4, 4, 1 << 28); a.srd(8, 8, 1 << 28); a.srd(12, 46, WSZ)
    RA, RB, RC = 128, 192, 64
    def ld(kind, i, rb, off):
        sr = "s22" if kind == "K" else "s23"
        if i % 4 == 0: e(f"s_add_u32 {sr}, {off}, {(i//4)*16384}")
        e(f"buffer_load_dwordx4 v[{rb+4*i}:{rb+4*i+3}], v1, {'s[4:7]' if kind == 'K' else 's[8:11]'}, {sr} offen offset:{(i%4)*1024} {kf if kind == 'K' else vf}")
    for i in range(16):
        if i == kfirst: e("s_barrier")
        ld("K", i, RA, "s52")
    if stamps >= 2: fstamp()
    for i in range(16): ld("V", i, RB, "s52")
    if stamps >= 2: fstamp()
    for i in range(16): ld("K", i, RC, "s57")
    masks()
    e("v_mov_b32 v20, 0\nv_mov_b32 v21, 0\nv_mov_b32 v22, 0\nv_mov_b32 v23, 0\nv_mov_b32 v24, 0xff7fffff\nv_mov_b32 v25, 0")
    e(f"v_lshlrev_b32 v26, 5, v3\nv_mov_b32 v27, {L_PR}\ns_mov_b32 s65, 0")
    e(f"s_lshl_b32 s40, s51, 8\ns_add_u32 s40, s40, {WS_TK}\ns_add_u32 s74, s46, s40\ns_addc_u32 s75, s47, 0")
    e("v_and_b32 v56, 7, v0\nv_lshl_add_u32 v56, v2, 5, v56\nv_bfe_u32 v29, v0, 3, 1\nv_lshl_add_u32 v56, v29, 7, v56\nv_lshlrev_b32 v56, 2, v56\ns_lshl_b32 s40, s3, 10\nv_add_u32 v56, s40, v56\ns_lshl_b32 s40, s3, 3\nv_mov_b32 v57, s40")
    for r in range(4): e(f"ds_write_b32 v56, v20 offset:{L_OB+32*r}")
    e(f"ds_write_b64 v57, v[24:25] offset:{L_MLB}\nv_add_u32 v56, {L_OA}, v56\nv_add_u32 v57, {L_ML}, v57\nv_mov_b32 v58, v26\ns_mov_b32 s86, 0")
    fstamp()
    e("s_barrier")
    e("ds_read_b32 v31, v27 offset:8")
    for w in range(4):
        rb = (32, 40, 48, 12)[w]
        e(f"ds_read_b128 v[{rb}:{rb+3}], v26 offset:{L_QP+512*w}\nds_read_b128 v[{rb+4}:{rb+7}], v26 offset:{L_QP+512*w+16}")
    e("s_waitcnt lgkmcnt(0)")
    for j in range(8):
        e(f"v_add_f32 v{32+j}, v{32+j}, v{40+j}\nv_add_f32 v{48+j}, v{48+j}, v{12+j}\nv_add_f32 v{32+j}, v{32+j}, v{48+j}")
    for j in range(4): e(f"v_cvt_pk_bf16_f32 v{4+j}, v{32+2*j}, v{33+2*j}")
    e("v_readfirstlane_b32 s71, v31")
    def A(i): return f"v{32+i}"
    def kpart(src, wait, issue):
        fstamp()
        for i in range(16):
            e(f"s_waitcnt vmcnt({wait(i)})")
            for j in range(4):
                e(f"v_dot2_f32_bf16 {A(i)}, v{src+4*i+j}, v{4+j}, {'0' if j == 0 else A(i)}")
            issue(i)
        for i in range(8):
            e(f"v_add_f32_dpp {A(i)}, {A(i)}, {A(i)} row_ror:8 row_mask:0xf bank_mask:0x3")
            e(f"v_add_f32_dpp {A(i)}, {A(i+8)}, {A(i+8)} row_ror:8 row_mask:0xf bank_mask:0xc")
        for i in range(4):
            e(f"v_add_f32_dpp {A(i)}, {A(i)}, {A(i)} row_half_mirror row_mask:0xf bank_mask:0x5")
            e(f"v_add_f32_dpp {A(i)}, {A(i+4)}, {A(i+4)} row_half_mirror row_mask:0xf bank_mask:0xa")
        e(f"v_cndmask_b32 v28, {A(1)}, {A(0)}, s[36:37]\nv_cndmask_b32 v29, {A(0)}, {A(1)}, s[36:37]")
        e(f"v_cndmask_b32 v30, {A(3)}, {A(2)}, s[36:37]\nv_cndmask_b32 v31, {A(2)}, {A(3)}, s[36:37]")
        e("v_add_f32_dpp v29, v28, v29 quad_perm:[1,0,3,2] row_mask:0xf bank_mask:0xf")
        e("v_add_f32_dpp v31, v30, v31 quad_perm:[1,0,3,2] row_mask:0xf bank_mask:0xf")
        e("v_cndmask_b32 v28, v31, v29, s[38:39]\nv_cndmask_b32 v30, v29, v31, s[38:39]\ns_nop 0")
        e("v_add_f32_dpp v30, v28, v30 quad_perm:[2,3,0,1] row_mask:0xf bank_mask:0xf")
        a.rbf("v30"); e("v_mul_f32 v30, 0x3db504f3, v30"); a.rbf("v30")
        e("v_max_f32 v28, v30, v24")
        allsum("v28", "v29", "max")
        e(f"v_sub_f32 v29, v24, v28\nv_sub_f32 v30, v30, v28\nv_mul_f32 v29, {LOG2E}, v29\nv_mul_f32 v30, {LOG2E}, v30\nv_exp_f32 v29, v29\nv_exp_f32 v30, v30\nv_mov_b32 v24, v28")
        e("v_fma_f32 v25, v25, v29, v30\nv_cvt_pk_bf16_f32 v30, v30, v30")
        for r in range(4): e(f"v_mul_f32 v{20+r}, v{20+r}, v29")
        e("s_add_u32 s65, s65, 1\nv_mov_b32 v26, s65\nds_max_u32 v27, v26")
    def vpart(src, wait, issue):
        for i in range(16):
            bb = 12 + 4 * (i & 1)
            for r in range(4):
                e(f"v_and_b32_dpp v{bb+r}, v30, v{8+r} row_newbcast:{i} row_mask:0xf bank_mask:0xf")
            e(f"s_waitcnt vmcnt({wait(i)})\ns_nop 0")
            e(f"v_mfma_f32_16x16x32_bf16 v[20:23], v[{src+4*i}:{src+4*i+3}], v[{bb}:{bb+3}], v[20:23]")
            issue(i)
    none = lambda i: None
    kpart(RA, lambda i: 47, lambda i: ld("V", i, RA, "s57"))
    e("s_add_u32 s52, s57, s53")
    vpart(RB, lambda i: 47 - i + min(i, D), lambda i: ld("K", i, RB, "s52") if i < D else None)
    kpart(RC, lambda i: 31 - i + D, none)
    vpart(RA, lambda i: 15 - i + D, none)
    e("L_task:")
    e(f"s_add_u32 s57, s52, s53\ns_cmp_lt_u32 s65, {NS-1 if dyn else 15}\ns_cbranch_scc1 L_nt\ns_mov_b32 s72, s55\ns_atomic_add s72, s[74:75], 0 glc\nL_nt:")
    def iss_k(i):
        p = i + D
        if p < 16: ld("K", p, RB, "s52")
        else: ld("V", p - 16, RB, "s52")
    kpart(RB, lambda i: D - 1, iss_k)
    e(f"s_cmp_lt_u32 s65, {NS if dyn else 16}\ns_cbranch_scc1 L_have")
    if dyn:
        e(f"s_waitcnt lgkmcnt(0)\ns_sub_u32 s72, s72, s71\ns_and_b32 s42, s72, 0xffff\ns_lshr_b32 s43, s72, 16\ns_add_u32 s42, s42, s43\ns_cmp_ge_u32 s42, {NM4}\ns_cbranch_scc1 L_last")
        e(f"s_lshr_b32 s72, s72, s56\ns_and_b32 s72, s72, 0xffff\ns_add_u32 s72, s72, {4*NS}")
        setoff("s72", "s57")
    else:
        e("s_branch L_last")
    e("L_have:")
    def iss_v(i):
        p = i + D
        if p < 16: ld("V", p, RB, "s52")
        else: ld("K", p - 16, RB, "s57")
    vpart(RB, lambda i: D - 1, iss_v)
    e("s_mov_b32 s52, s57\ns_branch L_task")
    e("L_last:")
    if steal:
        e("s_mov_b32 s87, 0\ns_cmp_lg_u32 s86, 0\ns_cbranch_scc1 L_nosib\nds_read_b64 v[28:29], v27 offset:20\ns_waitcnt lgkmcnt(0)\nv_readfirstlane_b32 s40, v28\nv_readfirstlane_b32 s71, v29\ns_cmp_lt_u32 s40, 4\ns_cbranch_scc1 L_nosib")
        e("s_xor_b32 s74, s74, 256\ns_xor_b32 s54, s54, 0x200000\ns_mov_b32 s72, s55\ns_atomic_add s72, s[74:75], 0 glc\ns_mov_b32 s87, 1\nL_nosib:")
    vpart(RB, lambda i: min(D - 1, 15 - i), lambda i: ld("V", i + D, RB, "s52") if i + D < 16 else None)
    fstamp()
    allsum("v25", "v29")
    for r in range(4): e(f"ds_write_b32 v56, v{20+r} offset:{32*r}")
    e("ds_write_b64 v57, v[24:25]")
    if steal:
        e(f"s_cmp_eq_u32 s87, 0\ns_cbranch_scc1 L_done\ns_waitcnt lgkmcnt(0)\ns_sub_u32 s72, s72, s71\ns_and_b32 s42, s72, 0xffff\ns_lshr_b32 s43, s72, 16\ns_add_u32 s42, s42, s43\ns_cmp_ge_u32 s42, {NM4}\ns_cbranch_scc1 L_done")
        e(f"s_lshr_b32 s72, s72, s56\ns_and_b32 s72, s72, 0xffff\ns_add_u32 s72, s72, {4*NS}")
        setoff("s72", "s52")
        for i in range(D): ld("K", i, RB, "s52")
        e(f"s_mov_b32 s86, 1\nv_add_u32 v56, {L_OB-L_OA}, v56\nv_add_u32 v57, {L_MLB-L_ML}, v57\nv_mov_b32 v26, v58")
        for w in range(4):
            rb = (32, 40, 48, 12)[w]
            e(f"ds_read_b128 v[{rb}:{rb+3}], v26 offset:{L_QP2+512*w}\nds_read_b128 v[{rb+4}:{rb+7}], v26 offset:{L_QP2+512*w+16}")
        e("s_waitcnt lgkmcnt(0)")
        for j in range(8):
            e(f"v_add_f32 v{32+j}, v{32+j}, v{40+j}\nv_add_f32 v{48+j}, v{48+j}, v{12+j}\nv_add_f32 v{32+j}, v{32+j}, v{48+j}")
        for j in range(4): e(f"v_cvt_pk_bf16_f32 v{4+j}, v{32+2*j}, v{33+2*j}")
        e("v_mov_b32 v20, 0\nv_mov_b32 v21, 0\nv_mov_b32 v22, 0\nv_mov_b32 v23, 0\nv_mov_b32 v24, 0xff7fffff\nv_mov_b32 v25, 0\ns_branch L_task\nL_done:")
    e("v_mov_b32 v26, 1\ns_mov_b64 exec, 1\ns_waitcnt lgkmcnt(0)\nds_add_u32 v27, v26 offset:16\ns_mov_b64 exec, -1")
    e("L_sfin:")
    if stamps:
        e("s_cmp_lg_u32 s3, 0\ns_cbranch_scc1 L_end")
        fstamp_store("v62", 0)
    e("s_endpgm")
    e("L_helper:")
    S = "v63"
    fstamp(S)
    e("s_sub_u32 s3, s3, 4")
    if prio: e(f"s_setprio {prio}")
    e("s_lshl_b32 s58, s50, 1\ns_add_u32 s58, s58, s48")
    e("v_lshlrev_b32 v26, 13, v2\nv_lshl_add_u32 v26, v3, 4, v26")
    e(f"v_mov_b32 v20, 0\nv_mov_b32 v21, 0\nv_mov_b32 v22, 0\nv_mov_b32 v23, 0\nv_mov_b32 v28, {L_PR}\nds_write_b128 v28, v[20:23]\nds_write_b128 v28, v[20:23] offset:16")
    e("s_lshl_b32 s40, s49, 8\ns_lshl_b32 s41, s58, 19\ns_add_u32 s40, s40, s41\ns_lshl_b32 s41, s3, 17\ns_add_u32 s40, s40, s41")
    e("s_lshl_b32 s41, s3, 10\ns_waitcnt lgkmcnt(0)")
    a.srd(16, 20, 4096)
    e("buffer_load_dwordx4 v[48:51], v1, s[16:19], s41 offen")
    a.srd(16, 24, 512 * 4096 * 2)
    if abl & 8: e("s_mov_b32 s18, 0")
    if kfirst: e("s_barrier")
    for t in range(4):
        e(f"buffer_load_dwordx4 v[{64+4*t}:{67+4*t}], v26, s[16:19], s40 offen {wqf}\ns_add_u32 s40, s40, 0x8000")
    if not kfirst: e("s_barrier")
    a.srd(12, 46, WSZ)
    e(f"s_lshl_b32 s42, s49, 8\ns_add_u32 s76, s42, {WS_EP}\ns_add_u32 s42, s46, s76\ns_addc_u32 s43, s47, 0\ns_load_dwordx2 s[56:57], s[42:43], 0 glc\ns_xor_b32 s42, s42, 256\ns_load_dwordx2 s[82:83], s[42:43], 0 glc")
    e(f"s_lshl_b32 s42, s51, 8\ns_add_u32 s42, s42, {WS_TK}\ns_add_u32 s42, s46, s42\ns_addc_u32 s43, s47, 0\ns_mov_b32 s72, 0\ns_cmp_lg_u32 s3, s50\ns_cbranch_scc1 L_nobase\ns_load_dword s72, s[42:43], 0 glc\nL_nobase:")
    masks()
    e(f"s_lshl_b32 s67, s3, 12\ns_add_u32 s67, s67, {L_TR}\nv_add_u32 v24, s67, v1\nv_mov_b32 v28, {L_PR}")
    e("s_mov_b32 s62, 0x01000100\ns_mov_b32 s63, 0x03020302")
    e("s_lshl_b32 s40, s3, 11\nv_lshlrev_b32 v58, 1, v1\nv_add_u32 v58, s40, v58")
    e("s_lshl_b32 s41, s58, 8\ns_add_u32 s40, s40, s41\nv_lshlrev_b32 v59, 4, v3\nv_lshl_add_u32 v59, v2, 2, v59\nv_add_u32 v59, s40, v59")
    e("s_waitcnt vmcnt(4)")
    fstamp(S)
    for i in range(4):
        e(f"v_lshlrev_b32 v{40+2*i}, 16, v{48+i}\nv_and_b32 v{41+2*i}, 0xffff0000, v{48+i}")
    ln8(40, 52)
    for i in (3, 2, 1, 0): e(f"v_perm_b32 v{41+2*i}, v{40+i}, v{40+i}, s63\nv_perm_b32 v{40+2*i}, v{40+i}, v{40+i}, s62")
    e(f"ds_write_b128 v58, v[40:43] offset:{L_XD}\nds_write_b128 v58, v[44:47] offset:{L_XD+16}")
    for t in range(4): e(f"s_waitcnt vmcnt({3-t})\nds_write_b128 v24, v[{64+4*t}:{67+4*t}] offset:{1024*t}")
    fstamp(S)
    gsync(12)
    e(f"ds_read_b32 v53, v59 offset:{L_XD}")
    for t in range(16): e(f"ds_read_b128 v[{64+4*t}:{67+4*t}], v1 offset:{L_TR+1024*t}")
    e("s_cmp_lg_u32 s3, s50\ns_cbranch_scc1 L_nobase2\nv_mov_b32 v44, s72\nds_write_b32 v28, v44 offset:8\ns_waitcnt lgkmcnt(0)\nL_nobase2:")
    e("s_add_u32 s56, s56, 1\ns_addc_u32 s57, s57, 0\nv_mov_b32 v42, s56\nv_mov_b32 v43, s57\nv_mov_b32 v46, s56\nv_mov_b32 v47, s57")
    e("s_lshl_b32 s40, s49, 2\ns_add_u32 s40, s40, s3\ns_lshl_b32 s40, s40, 3\ns_add_u32 s40, s40, s58\ns_lshl_b32 s40, s40, 10")
    e(f"s_add_u32 s40, s40, {WS_Q}\nv_lshlrev_b32 v52, 8, v2\nv_lshl_add_u32 v52, v3, 4, v52\ns_waitcnt lgkmcnt(15)")
    for t in range(16):
        bb = 12 + 4 * (t & 1)
        for r in range(4):
            e(f"v_and_b32_dpp v{bb+r}, v53, v{8+r} row_newbcast:{t} row_mask:0xf bank_mask:0xf")
        e(f"s_waitcnt lgkmcnt({15-t})\ns_nop 0")
        e(f"v_mfma_f32_16x16x32_bf16 v[20:23], v[{64+4*t}:{67+4*t}], v[{bb}:{bb+3}], v[20:23]")
    e("s_lshl_b32 s61, s49, 2\ns_add_u32 s61, s61, s50\ns_lshl_b32 s61, s61, 3\ns_lshl_b32 s42, s3, 1\ns_add_u32 s61, s61, s42\ns_lshl_b32 s61, s61, 10")
    e(f"s_add_u32 s61, s61, {WS_Q}\ns_mov_b32 exec_lo, 0x00ff00ff\ns_mov_b32 exec_hi, 0x00ff00ff")
    e("v_mov_b32 v40, v20\nv_mov_b32 v41, v21\nv_mov_b32 v44, v22\nv_mov_b32 v45, v23")
    e("buffer_store_dwordx4 v[40:43], v52, s[12:15], s40 offen sc1\nbuffer_store_dwordx4 v[44:47], v52, s[12:15], s40 offen offset:128 sc1")
    e(f"s_lshl_b32 s84, s51, 6\ns_add_u32 s84, s84, {WS_QB}\ns_cmp_lg_u32 s3, s50\ns_cbranch_scc1 L_noqb\ns_cmp_lg_u32 s48, 0\ns_cbranch_scc1 L_noqb\ns_mov_b64 exec, 1\nv_mov_b32 v54, s72\nv_mov_b32 v55, 0\nv_mov_b32 v56, s56\nv_mov_b32 v57, s57\nbuffer_store_dwordx4 v[54:57], v52, s[12:15], s84 offen sc1\nL_noqb:\ns_mov_b64 exec, -1")
    fstamp(S)
    a.srd(16, 26, 4096 * 512 * 2)
    if abl & 1: e("s_mov_b32 s18, 0")
    if abl & 2: e("s_mov_b32 s14, 0")
    e("v_bfe_u32 v27, v0, 3, 3\nv_lshlrev_b32 v27, 10, v27\nv_and_b32 v28, 7, v0\nv_lshl_add_u32 v27, v28, 4, v27")
    e("s_lshl_b32 s40, s49, 17\ns_lshl_b32 s41, s58, 7\ns_add_u32 s40, s40, s41\ns_lshl_b32 s41, s3, 15\ns_add_u32 s40, s40, s41")
    for t in range(4): e(f"buffer_load_dwordx4 v[{96+4*t}:{99+4*t}], v27, s[16:19], s40 offen {wf}\ns_add_u32 s40, s40, 8192")
    e("v_mov_b32 v28, -1\nv_mov_b32 v29, -1\nv_mov_b32 v30, -1\nv_mov_b32 v31, -1\nv_and_b32 v27, 255, v0")
    e(f"s_lshl_b32 s40, s51, 2\ns_add_u32 s40, s40, s48\ns_lshl_b32 s54, s40, 10\ns_add_u32 s54, s54, {WS_O}\ns_xor_b32 s85, s54, 0x1800\nv_lshlrev_b32 v32, 2, v27")
    e("buffer_store_dword v28, v32, s[12:15], s54 offen sc1\nbuffer_store_dword v28, v32, s[12:15], s85 offen sc1")
    e("v_lshlrev_b32 v33, 16, v2\nv_bfe_u32 v34, v0, 3, 1\nv_lshl_add_u32 v33, v34, 10, v33\nv_and_b32 v34, 7, v0\nv_lshl_add_u32 v33, v34, 2, v33")
    e(f"s_lshl_b32 s60, s58, 13\ns_lshl_b32 s40, s3, 11\ns_add_u32 s60, s60, s40\ns_lshl_b32 s40, s49, 5\ns_add_u32 s60, s60, s40\ns_add_u32 s60, s60, {WS_Y}")
    e("buffer_store_dword v28, v33, s[12:15], s60 offen sc1")
    e("s_lshr_b32 s79, s2, 3\ns_sub_u32 s79, s79, 16\ns_lshl_b32 s79, s79, 2\ns_add_u32 s79, s79, s77\ns_lshl_b32 s79, s79, 2\ns_add_u32 s79, s79, s3\ns_cmp_eq_u32 s48, 1\ns_cselect_b32 s79, s79, 0x10000")
    e("v_bfe_u32 v36, v0, 2, 1\nv_bfe_u32 v37, v0, 3, 1\nv_lshl_add_u32 v36, v37, 1, v36\nv_bfe_u32 v37, v0, 5, 1\nv_lshl_add_u32 v36, v37, 2, v36")
    e("v_and_b32 v37, 3, v0\nv_bfe_u32 v38, v0, 4, 1\nv_lshl_add_u32 v37, v38, 2, v37\nv_lshlrev_b32 v37, 13, v37\nv_lshl_add_u32 v37, v36, 2, v37")
    e(f"s_lshl_b32 s55, s79, 5\ns_add_u32 s55, s55, {WS_H}\ns_cmp_lt_u32 s79, 256\ns_cselect_b32 s55, s55, 0x40000000\nbuffer_store_dword v28, v37, s[12:15], s55 offen sc1")
    e(f"s_lshl_b32 s59, s2, 13\ns_add_u32 s59, s59, {WS_D}\ns_cmp_lt_u32 s2, {NG}\ns_cselect_b32 s59, s59, 0x40000000\ns_add_u32 s40, s59, 4096\nv_lshlrev_b32 v27, 4, v27")
    e("buffer_store_dwordx4 v[28:31], v27, s[12:15], s59 offen sc1\nbuffer_store_dwordx4 v[28:31], v27, s[12:15], s40 offen sc1")
    a.srd(16, 20, 4096)
    e("v_lshlrev_b32 v38, 1, v36\ns_lshl_b32 s40, s79, 4\nbuffer_load_ushort v39, v38, s[16:19], s40 offen")
    e("v_and_b32 v52, 7, v0\nv_and_b32 v53, 63, v0\nv_lshlrev_b32 v53, 1, v53\nv_sub_u32 v52, v53, v52\nv_lshlrev_b32 v52, 2, v52\ns_lshl_b32 s40, s3, 9\nv_add_u32 v52, s40, v52")
    if abl & 2: e("s_mov_b32 s14, 0x40000000")
    if abl & 4: e("s_waitcnt vmcnt(0)\ns_branch L_pq_ok")
    e("s_mov_b32 s66, 0\nL_pq:")
    e("buffer_load_dwordx4 v[64:67], v1, s[12:15], s61 offen sc1\nbuffer_load_dwordx4 v[68:71], v1, s[12:15], s61 offen offset:1024 sc1\ns_waitcnt vmcnt(0)")
    e("v_xor_b32 v72, s56, v66\nv_xor_b32 v73, s57, v67\nv_xor_b32 v74, s56, v70\nv_xor_b32 v75, s57, v71\nv_or3_b32 v72, v72, v73, v74\nv_or_b32 v72, v72, v75")
    e(f"v_cmp_ne_u32 vcc, 0, v72\ns_cbranch_vccz L_pq_ok\ns_mov_b64 exec, vcc\ns_add_u32 s66, s66, 1\ns_cmp_gt_u32 s66, 400000\ns_cbranch_scc1 L_pq_ok\ns_sleep {qsleep}\ns_branch L_pq\nL_pq_ok:\ns_mov_b64 exec, -1")
    e(f"v_add_f32 v64, v64, v68\nv_add_f32 v65, v65, v69\nds_write_b32 v52, v64 offset:{L_QP}\nds_write_b32 v52, v65 offset:{L_QP+32}\ns_waitcnt lgkmcnt(0)")
    fstamp(S)
    e("s_barrier")
    if hexit == 1: e("s_endpgm")
    e(f"v_lshlrev_b32 v39, 16, v39\nv_mov_b32 v28, {L_PR}\nv_mov_b32 v29, 1\ns_mov_b64 exec, 1\nds_add_rtn_u32 v29, v28, v29 offset:4\ns_waitcnt lgkmcnt(0)\ns_mov_b64 exec, -1\nv_readfirstlane_b32 s70, v29")
    e(f"v_bfe_u32 v25, v0, 2, 2\nv_lshlrev_b32 v25, 7, v25\nv_lshl_add_u32 v25, v2, 10, v25\nv_and_b32 v28, 3, v0\nv_lshl_add_u32 v25, v28, 3, v25\ns_lshl_b32 s41, s3, 5\ns_add_u32 s41, s41, {L_TR}\nv_add_u32 v25, s41, v25")
    for t in range(4): e(f"ds_write_b128 v24, v[{96+4*t}:{99+4*t}] offset:{1024*t}")
    gsync(12)
    for ks in range(4):
        for hh in range(2):
            e(f"ds_read_b64_tr_b16 v[{112+4*ks+2*hh}:{113+4*ks+2*hh}], v25 offset:{4096*ks+512*hh}")
    def wait_progress(lbl, sreg):
        e(f"v_mov_b32 v28, {L_PR}\n{lbl}:\nds_read_b32 v29, v28\ns_waitcnt lgkmcnt(0)\nv_readfirstlane_b32 s40, v29\ns_cmp_ge_u32 s40, {sreg}\ns_cbranch_scc1 {lbl}_ok\ns_sleep 32\ns_branch {lbl}\n{lbl}_ok:")
    def glu_loads():
        a.srd(16, 32, 512 * 1792 * 2)
        e("v_lshlrev_b32 v26, 13, v2\nv_lshl_add_u32 v26, v3, 3, v26\ns_lshl_b32 s40, s78, 15\ns_lshl_b32 s41, s3, 8\ns_add_u32 s40, s40, s41")
        for ee in range(8):
            if ee == 4: e("s_add_u32 s40, s40, 4096")
            e(f"buffer_load_dwordx2 v[{64+4*ee}:{65+4*ee}], v26, s[16:19], s40 offen offset:{(ee%4)*1024} {wf}")
            e(f"buffer_load_dwordx2 v[{66+4*ee}:{67+4*ee}], v26, s[16:19], s40 offen offset:{(ee%4)*1024+128} {wf}")
        e("s_cmp_lt_u32 s3, 2\ns_cselect_b32 s42, s28, s30\ns_cselect_b32 s43, s29, s31")
        a.srd(16, 42, 512 * 1792 * 2)
        e("v_bfe_u32 v26, v0, 2, 4\nv_mul_u32_u24 v26, 3584, v26\nv_and_b32 v28, 3, v0\nv_lshl_add_u32 v26, v28, 4, v26")
        e(f"s_lshl_b32 s40, s78, 6\ns_and_b32 s41, s3, 1\ns_mul_i32 s41, s41, {256*3584}\ns_add_u32 s40, s40, s41")
        for t in range(16): e(f"buffer_load_dwordx4 v[{128+4*t}:{131+4*t}], v26, s[16:19], s40 offen {wf}\ns_add_u32 s40, s40, {16*3584}")
    e(f"s_lshr_b32 s78, s51, 1\ns_and_b32 s40, s51, 1\ns_or_b32 s40, s40, s48\ns_cmp_eq_u32 s40, 0\ns_cselect_b32 s78, s78, 255\ns_cmp_ge_u32 s78, {NG}\ns_cbranch_scc1 L_nogw")
    glu_loads()
    e("s_mov_b32 s80, 0x05040100\ns_mov_b32 s81, 0x07060302")
    e(f"s_lshl_b32 s41, s3, 14\ns_add_u32 s41, s41, {L_GU}\nv_add_u32 v24, s41, v1")
    e(f"v_bfe_u32 v25, v0, 2, 2\nv_lshlrev_b32 v25, 6, v25\nv_lshl_add_u32 v25, v2, 9, v25\nv_and_b32 v28, 3, v0\nv_lshl_add_u32 v25, v28, 3, v25")
    e(f"s_lshr_b32 s41, s3, 1\ns_lshl_b32 s41, s41, 15\ns_and_b32 s42, s3, 1\ns_lshl_b32 s42, s42, 5\ns_add_u32 s41, s41, s42\ns_add_u32 s41, s41, {L_GU}\nv_add_u32 v25, s41, v25")
    e("s_waitcnt vmcnt(16)")
    for j in range(8):
        for q in range(4):
            e(f"v_perm_b32 v{192+4*j+q}, v{64+4*(2*q+1)+(j>>1)}, v{64+4*(2*q)+(j>>1)}, {'s80' if j%2==0 else 's81'}")
    for t in range(16): e(f"s_waitcnt vmcnt({15-t})\nds_write_b128 v24, v[{128+4*t}:{131+4*t}] offset:{1024*t}")
    gsync(12)
    for ks in range(16):
        for hh in range(2):
            e(f"ds_read_b64_tr_b16 v[{128+4*ks+2*hh}:{129+4*ks+2*hh}], v25 offset:{2048*ks+256*hh}")
    e(f"s_and_b32 s40, s78, 7\ns_lshl_b32 s40, s40, 13\ns_lshl_b32 s41, s3, 11\ns_add_u32 s73, s40, s41\ns_add_u32 s73, s73, {WS_H}\nv_lshlrev_b32 v46, 1, v1")
    e(f"s_mul_i32 s40, s3, 1040\nv_add_u32 v47, s40, v1\nv_and_b32 v43, 3, v0\nv_mul_u32_u24 v43, 1040, v43\nv_lshl_add_u32 v43, v2, 4, v43")
    e("v_lshlrev_b32 v40, 2, v3\ns_lshr_b32 s40, s3, 1\ns_lshl_b32 s40, s40, 9\ns_and_b32 s41, s3, 1\ns_lshl_b32 s41, s41, 6\ns_add_u32 s40, s40, s41\nv_add_u32 v40, s40, v40")
    e("v_bfe_u32 v41, v0, 2, 2\nv_lshlrev_b32 v41, 7, v41\nv_lshl_add_u32 v41, v2, 5, v41\nv_and_b32 v61, 3, v0\nv_lshl_add_u32 v41, v61, 3, v41")
    e(f"v_lshlrev_b32 v42, 11, v2\nv_lshl_add_u32 v42, v3, 4, v42\ns_lshl_b32 s59, s78, 13\ns_lshl_b32 s40, s3, 9\ns_add_u32 s59, s59, s40\ns_add_u32 s59, s59, {WS_D}")
    e("L_nogw:")
    if steal:
        wait_progress("L_sw", 3)
        e(f"s_add_u32 s82, s82, 1\ns_addc_u32 s83, s83, 0\ns_xor_b32 s61, s61, 0x8000\ns_xor_b32 s84, s84, 64\nv_mov_b32 v29, 0\ns_mov_b32 s66, 0\nL_ps:")
        e("buffer_load_dwordx4 v[64:67], v1, s[12:15], s61 offen sc1\nbuffer_load_dwordx4 v[68:71], v1, s[12:15], s61 offen offset:1024 sc1\nbuffer_load_dwordx4 v[76:79], v29, s[12:15], s84 offen sc1\ns_waitcnt vmcnt(0)")
        e("v_xor_b32 v72, s82, v66\nv_xor_b32 v73, s83, v67\nv_xor_b32 v74, s82, v70\nv_xor_b32 v75, s83, v71\nv_or3_b32 v72, v72, v73, v74\nv_xor_b32 v73, s82, v78\nv_xor_b32 v74, s83, v79\nv_or3_b32 v72, v72, v73, v74\nv_or_b32 v72, v72, v75")
        e(f"v_cmp_ne_u32 vcc, 0, v72\ns_cbranch_vccz L_ps_ok\ns_add_u32 s66, s66, 1\ns_cmp_gt_u32 s66, 1000\ns_cbranch_scc1 L_ps_no\ns_sleep 16\ns_branch L_ps\nL_ps_ok:")
        e(f"v_add_f32 v64, v64, v68\nv_add_f32 v65, v65, v69\nds_write_b32 v52, v64 offset:{L_QP2}\nds_write_b32 v52, v65 offset:{L_QP2+32}\nv_mov_b32 v28, {L_PR}\nds_write_b32 v28, v76 offset:24\nv_mov_b32 v29, 1\ns_mov_b64 exec, 1\ns_waitcnt lgkmcnt(0)\nds_add_u32 v28, v29 offset:20\ns_mov_b64 exec, -1\nL_ps_no:")
    e("s_cmp_lg_u32 s70, 3\ns_cbranch_scc1 L_noinit\ns_bfe_u32 s41, s2, 0x20003\ns_add_u32 s41, s41, 1")
    wait_progress("L_iw", "s41")
    e("s_mov_b32 s64, 1\ns_atomic_add s64, s[44:45], 0\nL_noinit:")
    e("v_lshlrev_b32 v34, 10, v2\nv_lshl_add_u32 v35, v3, 5, v34")
    e(f"s_lshl_b32 s40, s49, 12\ns_lshl_b32 s41, s3, 17\ns_add_u32 s88, s40, s41\ns_add_u32 s88, s88, {WS_O}")
    e("v_lshlrev_b32 v4, 4, v3\nv_lshl_add_u32 v4, v2, 2, v4\nv_bfe_u32 v5, v0, 4, 1\nv_bfe_u32 v6, v0, 5, 1\nv_lshlrev_b32 v4, 4, v3\nv_lshl_add_u32 v4, v6, 3, v4\nv_lshl_add_u32 v4, v5, 2, v4\ns_mul_i32 s40, s3, 272\nv_add_u32 v4, s40, v4")
    e("v_bfe_u32 v5, v0, 2, 2\nv_mul_u32_u24 v5, 272, v5\nv_lshl_add_u32 v5, v2, 4, v5")
    e("s_lshl_b32 s40, s3, 5\nv_lshlrev_b32 v6, 2, v36\nv_add_u32 v6, s40, v6\nv_and_b32 v7, 7, v0\nv_lshlrev_b32 v7, 4, v7\nv_bfe_u32 v37, v0, 3, 3\nv_lshl_add_u32 v37, v37, 13, v7")
    e(f"s_lshl_b32 s62, s79, 10\ns_add_u32 s62, s62, {WS_Y}\nv_and_b32 v44, 31, v0\nv_lshlrev_b32 v44, 5, v44\nv_bfe_u32 v45, v0, 5, 1\nv_lshl_add_u32 v44, v45, 4, v44")
    e(f"v_lshlrev_b32 v45, 9, v1\ns_lshl_b32 s63, s79, 5\ns_add_u32 s63, s63, {WS_D}\ns_lshl_b32 s67, s79, 4")
    wait_progress("L_w2", NS - 2)
    e("v_lshrrev_b32 v28, 1, v1\nv_mov_b32 v29, 0")
    a.srd(16, 44, 256)
    e("s_mov_b32 s66, 0\nL_initchk:\nbuffer_load_dword v31, v29, s[16:19], 0 offen sc1\ns_waitcnt vmcnt(0)\nv_readfirstlane_b32 s64, v31\ns_cmp_ge_u32 s64, 256\ns_cbranch_scc1 L_initok\ns_add_u32 s66, s66, 1\ns_cmp_gt_u32 s66, 200000\ns_cbranch_scc1 L_initok\ns_sleep 8\ns_branch L_initchk\nL_initok:")
    if hexit == 2: e("s_endpgm")
    e(f"s_setprio 0\nv_mov_b32 v27, {L_PR}\nL_wf:\nds_read_b32 v30, v27 offset:16\ns_waitcnt lgkmcnt(0)\nv_readfirstlane_b32 s40, v30\ns_cmp_ge_u32 s40, 4\ns_cbranch_scc1 L_wf_ok\ns_sleep {wsleep}\ns_branch L_wf\nL_wf_ok:\ns_setprio {prio}")
    e(f"v_lshrrev_b32 v28, 1, v1\ns_cmp_eq_u32 s3, 0\ns_cselect_b32 s54, s54, s85\ns_mov_b32 s40, {L_OB}\ns_cselect_b32 s40, {L_OA}, s40\nv_add_u32 v30, s40, v28\ns_mov_b32 s40, {L_MLB}\ns_cselect_b32 s40, {L_ML}, s40\nv_mov_b32 v29, s40")
    a.srd(16, 34, 4096)
    fstamp(S)
    e("s_cmp_ge_u32 s3, 2\ns_cbranch_scc1 L_st2")
    e("ds_read_b128 v[48:51], v29\nds_read_b128 v[52:55], v29 offset:16")
    for w in range(4): e(f"ds_read_b64 v[{64+2*w}:{65+2*w}], v30 offset:{1024*w}")
    e("s_waitcnt lgkmcnt(4)\nv_max_f32 v56, v48, v50\nv_max3_f32 v56, v56, v52, v54")
    for w in range(4): e(f"v_sub_f32 v{58+w}, v{48+2*w}, v56")
    for w in range(4): e(f"v_mul_f32 v{58+w}, {LOG2E}, v{58+w}")
    for w in range(4): e(f"v_exp_f32 v{58+w}, v{58+w}")
    e("s_waitcnt lgkmcnt(0)\nv_mul_f32 v57, v58, v49\nv_mul_f32 v64, v64, v58\nv_mul_f32 v65, v65, v58")
    for w in range(1, 4): e(f"v_fmac_f32 v57, v{58+w}, v{49+2*w}\nv_fmac_f32 v64, v{64+2*w}, v{58+w}\nv_fmac_f32 v65, v{65+2*w}, v{58+w}")
    e("v_min_u32 v64, -2, v64\nv_min_u32 v65, -2, v65\nv_min_u32 v56, -2, v56\nv_min_u32 v57, -2, v57")
    e("buffer_store_dwordx2 v[64:65], v28, s[12:15], s54 offen sc1\ns_mov_b64 exec, 1\nbuffer_store_dwordx2 v[56:57], v28, s[12:15], s54 offen offset:512 sc1\ns_mov_b64 exec, -1")
    fstamp(S)
    e("L_st2:")
    poll("L_p1", ["buffer_load_dwordx4 v[64:67], v35, s[12:15], s88 offen sc1", "buffer_load_dwordx4 v[68:71], v35, s[12:15], s88 offen offset:16 sc1",
                  "buffer_load_dwordx2 v[56:57], v34, s[12:15], s88 offen offset:512 sc1"], [f"v{i}" for i in range(64, 72)] + ["v56", "v57"], slp=lsleep)
    e("v_mov_b32 v58, v56\nv_mov_b32 v59, v56\ns_nop 1\nv_permlane16_swap_b32 v58, v59\ns_nop 0\nv_max_f32 v58, v58, v59\nv_mov_b32 v59, v58\ns_nop 1\nv_permlane32_swap_b32 v58, v59\ns_nop 0\nv_max_f32 v58, v58, v59")
    e(f"v_sub_f32 v56, v56, v58\nv_mul_f32 v56, {LOG2E}, v56\nv_exp_f32 v56, v56\ns_nop 0\nv_mul_f32 v57, v57, v56")
    for k in range(8): e(f"v_mul_f32 v{64+k}, v{64+k}, v56")
    e("v_mov_b32 v59, v57\ns_nop 0")
    for k in range(4): e(f"v_permlane32_swap_b32 v{64+k}, v{68+k}")
    e("v_permlane16_swap_b32 v57, v59")
    for k in range(4): e(f"v_add_f32 v{64+k}, v{64+k}, v{68+k}")
    e("v_add_f32 v57, v57, v59\nv_mov_b32 v59, v57\nv_permlane16_swap_b32 v64, v66\nv_permlane16_swap_b32 v65, v67\nv_permlane32_swap_b32 v57, v59\ns_nop 0")
    e("v_add_f32 v57, v57, v59\nv_rcp_f32 v57, v57\nv_add_f32 v64, v64, v66\nv_add_f32 v65, v65, v67\nv_mul_f32 v64, v64, v57\nv_mul_f32 v65, v65, v57")
    e(f"v_cvt_pk_bf16_f32 v64, v64, v65\nds_write_b32 v4, v64 offset:{L_ON}\ns_waitcnt lgkmcnt(0)\ns_barrier")
    for ks in range(4): e(f"ds_read_b128 v[{80+4*ks}:{83+4*ks}], v5 offset:{L_ON+64*ks}")
    for ks in range(4):
        e(f"s_waitcnt lgkmcnt({3-ks})")
        e(f"v_mfma_f32_16x16x32_bf16 v[20:23], v[{80+4*ks}:{83+4*ks}], v[{112+4*ks}:{115+4*ks}], {'0' if ks == 0 else 'v[20:23]'}")
    e("s_nop 7\nv_min_u32 v20, -2, v20\nbuffer_store_dword v20, v33, s[12:15], s60 offen sc1")
    fstamp(S)
    e("s_cmp_ge_u32 s79, 256\ns_cbranch_scc1 L_glu")
    poll("L_p3", ["buffer_load_dwordx4 v[48:51], v44, s[12:15], s62 offen sc1"], [f"v{i}" for i in range(48, 52)], slp=s3sleep)
    e("s_nop 3")
    red4()
    a.rbf("v48"); e("v_add_f32 v48, v48, v39"); a.rbf("v48")
    e(f"v_min_u32 v39, -2, v48\nds_write_b32 v6, v39 offset:{L_HG}\ns_waitcnt lgkmcnt(0)\ns_barrier\ns_cmp_lg_u32 s3, 0\ns_cbranch_scc1 L_nohp")
    e(f"ds_read_b128 v[48:51], v7 offset:{L_HG}\ns_waitcnt lgkmcnt(0)\nbuffer_store_dwordx4 v[48:51], v37, s[12:15], s55 offen sc1\nL_nohp:")
    fstamp(S)
    e(f"L_glu:\ns_cmp_ge_u32 s78, {NG}\ns_cbranch_scc1 L_s5")
    poll("L_p4", ["buffer_load_dwordx4 v[48:51], v46, s[12:15], s73 offen sc1", "buffer_load_dwordx4 v[52:55], v46, s[12:15], s73 offen offset:16 sc1"], [f"v{i}" for i in range(48, 56)], slp=hsleep)
    fstamp(S)
    ln8(48, 56)
    e(f"ds_write_b128 v47, v[48:51] offset:{L_HN}")
    e("s_mov_b64 exec, -1\ns_waitcnt lgkmcnt(0)\ns_barrier")
    if gst: fstamp(S)
    for ks in range(12): e(f"ds_read_b128 v[{64+4*ks}:{67+4*ks}], v43 offset:{L_HN+64*ks}")
    for ks in range(12, 16): e(f"ds_read_b128 v[{224+4*(ks-12)}:{227+4*(ks-12)}], v43 offset:{L_HN+64*ks}")
    for ks in range(16):
        e(f"s_waitcnt lgkmcnt({15-ks})")
        c = "0" if ks < 2 else f"v[{20+4*(ks&1)}:{23+4*(ks&1)}]"
        ar = 64 + 4 * ks if ks < 12 else 224 + 4 * (ks - 12)
        e(f"v_mfma_f32_16x16x32_bf16 v[{20+4*(ks&1)}:{23+4*(ks&1)}], v[{ar}:{ar+3}], v[{128+4*ks}:{131+4*ks}], {c}")
    e("s_mov_b64 exec, 0xffff\ns_nop 6")
    for r in range(4): e(f"v_add_f32 v{20+r}, v{20+r}, v{24+r}\nds_write_b32 v40, v{20+r} offset:{L_AC+128*r}")
    e("s_mov_b64 exec, -1\ns_waitcnt lgkmcnt(0)\ns_barrier")
    if gst: fstamp(S)
    e(f"ds_read_b64 v[20:21], v41 offset:{L_AC}\nds_read_b64 v[22:23], v41 offset:{L_AC+512}\ns_waitcnt lgkmcnt(1)")
    e("v_cvt_pk_bf16_f32 v20, v20, v21\nv_and_b32 v21, 0xffff0000, v20\nv_lshlrev_b32 v20, 16, v20\nv_mul_f32 v21, 0xbfb8aa3b, v21\nv_mul_f32 v20, 0xbfb8aa3b, v20\nv_exp_f32 v21, v21\nv_exp_f32 v20, v20")
    e("s_waitcnt lgkmcnt(0)\nv_cvt_pk_bf16_f32 v22, v22, v23\nv_add_f32 v21, 1.0, v21\nv_add_f32 v20, 1.0, v20\nv_rcp_f32 v21, v21\nv_rcp_f32 v20, v20\nv_and_b32 v23, 0xffff0000, v22\nv_lshlrev_b32 v22, 16, v22")
    e("v_cvt_pk_bf16_f32 v20, v20, v21\nv_and_b32 v21, 0xffff0000, v20\nv_lshlrev_b32 v20, 16, v20\nv_mul_f32 v21, v21, v23\nv_mul_f32 v20, v20, v22\nv_cvt_pk_bf16_f32 v36, v20, v21\ns_nop 1")
    for q in range(4): e(f"v_mov_b32_dpp v{32+q}, v36 quad_perm:[{q},{q},{q},{q}] row_mask:0xf bank_mask:0xf")
    e("s_nop 1")
    for j in range(8):
        e(f"v_mfma_f32_16x16x32_bf16 v[{64+4*j}:{67+4*j}], v[32:35], v[{192+4*j}:{195+4*j}], 0")
    e("s_nop 0")
    for j in range(4): e(f"v_min_u32 v{96+j}, -2, v{64+4*j}")
    e("s_nop 0\nbuffer_store_dwordx4 v[96:99], v42, s[12:15], s59 offen sc1")
    for j in range(4, 8): e(f"v_min_u32 v{96+j}, -2, v{64+4*j}")
    e("buffer_store_dwordx4 v[100:103], v42, s[12:15], s59 offen offset:256 sc1")
    fstamp(S)
    e("L_s5:\ns_cmp_ge_u32 s79, 256\ns_cbranch_scc1 L_fin")
    for j in range(8): e(f"v_mov_b32 v{48+j}, 0")
    e(f"s_mov_b32 exec_lo, -1\ns_mov_b32 exec_hi, {(1 << (NG - 32)) - 1:#x}")
    poll("L_p6", ["buffer_load_dwordx4 v[48:51], v45, s[12:15], s63 offen sc1", "buffer_load_dwordx4 v[52:55], v45, s[12:15], s63 offen offset:16 sc1"], [f"v{i}" for i in range(48, 56)], slp=s5sleep)
    e("s_nop 3")
    for i in range(4): e(f"v_permlane32_swap_b32 v{48+i}, v{52+i}")
    e("s_nop 1")
    for i in range(4): e(f"v_add_f32 v{48+i}, v{48+i}, v{52+i}")
    e("s_nop 0")
    red4()
    a.rbf("v48"); e("v_add_f32 v48, v48, v39\nv_cvt_pk_bf16_f32 v48, v48, v48\ns_mov_b32 exec_lo, 0x1111\ns_mov_b32 exec_hi, 0x1111")
    e("buffer_store_short v48, v38, s[16:19], s67 offen")
    fstamp(S)
    e("L_fin:")
    e("s_cmp_lg_u32 s3, 0\ns_cbranch_scc1 L_end")
    e("s_cmp_lg_u32 s58, 0\ns_cbranch_scc1 L_noep\ns_mov_b64 exec, 1\nv_mov_b32 v48, s56\nv_mov_b32 v49, s57\nv_mov_b32 v50, 0\nbuffer_store_dwordx2 v[48:49], v50, s[12:15], s76 offen sc1\nL_noep:")
    fstamp_store(S, 65536)
    e("L_end:\ns_endpgm")
    e('.section .rodata,"a"\n.p2align 6')
    a.descriptor(KN, 256, 96, accum=256)
    return a.text()

if __name__ == "__main__":
    import os, json
    os.makedirs("v11", exist_ok=True)
    names = []
    for spec in sys.argv[1:]:
        kw = {}
        if spec != "base":
            for p in spec.split(","):
                k, v = p.split("=")
                kw[k] = v.replace("+", " ") if k in ("wf", "wqf", "kf", "vf") else int(v)
        fn = "v11/v11_" + spec.replace(",", "_").replace("=", "") + ".s"
        open(fn, "w").write(gen(**kw))
        names.append(fn)
    print(" ".join(names))
    base = ["work/bench.py", "work/fst9.py", "sequential_preLN__mha_block_cached__glu_gated_glu__decode_np.py", "cdna_kernels/cdna_launch.py", "cdna_kernels/cdna_unwritten_srd_check.py", "work/pair/pair_NS10.s"]
    print(json.dumps(base + ["work/" + f for f in names]))
```

```python
import sys
from asmlib import *
WSZ = 0x40000000
WS_O, WS_Y, WS_H, WS_D, WS_Q, WS_EP, WS_TK, WS_QB, WS_ST = 0x000000, 0x080000, 0x100000, 0x110000, 0x180000, 0x280000, 0x290000, 0x2a0000, 0x300000
NG = 56
LOG2E = "0x3fb8aa3b"
L_XD = 0
L_QP = 8192
L_OA = 10240
L_ML = 14336
L_PR = 14368
L_HN = 14400
L_AC = 18560
L_ON = 0
L_HG = 1152
L_QP2 = 19584
L_OB = L_QP2 + 2048
L_MLB = L_OB + 4096
L_TR = L_MLB + 64
L_GU = L_TR + 16384
LDS_BYTES = L_GU + 65536

def gen(stamps=0, sleep=2, wf="nt", wqf="", prio=3, lsleep=4, thr=32, NS=10, qsleep=4, kfirst=0, hexit=0, dyn=1, s5sleep=3, s3sleep=3, hsleep=3,
        gst=0, D=8, kf="nt", vf="nt", GT=24, wsleep=2, abl=0, steal=1, cpf=1, cpf2=1):
    NM4 = 4 * (32 - 2 * NS)
    a = Asm(); e = a.e
    KN = NAME + "_kernel"
    e(HEADER_COMMENT.rstrip("\n"))
    e(f"; @launch grid=(256,1,1) block=(512,1,1) lds={LDS_BYTES}")
    e('.amdgcn_target "amdgcn-amd-amdhsa--gfx950"\n.text')
    a.kernel_begin(KN)
    def fstamp(reg="v62"):
        if stamps:
            e(f"s_memrealtime s[68:69]\ns_waitcnt lgkmcnt(0)\nv_writelane_b32 {reg}, s68, m0\ns_add_u32 m0, m0, 1")
    def fstamp_store(reg, off):
        if stamps:
            e(f"s_mov_b64 exec, -1\nv_and_b32 v2, 63, v0\nv_lshlrev_b32 v2, 2, v2\ns_lshl_b32 s41, s2, 8\ns_add_u32 s41, s41, {WS_ST+off}\nbuffer_store_dword {reg}, v2, s[12:15], s41 offen sc1")
    def allsum(v, t, op="add"):
        e("s_nop 1")
        for ctl in ("quad_perm:[1,0,3,2]", "quad_perm:[2,3,0,1]", "row_half_mirror", "row_mirror"):
            e(f"v_{op}_f32_dpp {v}, {v}, {v} {ctl} row_mask:0xf bank_mask:0xf\ns_nop 1")
        e(f"v_mov_b32 {t}, {v}\ns_nop 1\nv_permlane16_swap_b32 {v}, {t}\ns_nop 1\nv_{op}_f32 {v}, {v}, {t}\nv_mov_b32 {t}, {v}\ns_nop 1\nv_permlane32_swap_b32 {v}, {t}\ns_nop 1\nv_{op}_f32 {v}, {v}, {t}")
    def ln8(X, T):
        s1, s2, t1, t2, u = (f"v{T+i}" for i in range(5))
        e(f"v_readfirstlane_b32 s40, v{X}\ns_nop 1")
        e(f"v_subrev_f32 {s1}, s40, v{X}\nv_mul_f32 {s2}, {s1}, {s1}")
        for i in range(1, 8):
            e(f"v_subrev_f32 {u}, s40, v{X+i}\nv_add_f32 {s1}, {s1}, {u}\nv_fmac_f32 {s2}, {u}, {u}")
        e("s_nop 0")
        for ctl in ("quad_perm:[1,0,3,2]", "quad_perm:[2,3,0,1]", "row_half_mirror", "row_mirror"):
            e(f"v_add_f32_dpp {s1}, {s1}, {s1} {ctl} row_mask:0xf bank_mask:0xf\nv_add_f32_dpp {s2}, {s2}, {s2} {ctl} row_mask:0xf bank_mask:0xf\ns_nop 0")
        for sw in ("v_permlane16_swap_b32", "v_permlane32_swap_b32"):
            e(f"v_mov_b32 {t1}, {s1}\nv_mov_b32 {t2}, {s2}\ns_nop 0\n{sw} {s1}, {t1}\n{sw} {s2}, {t2}\ns_nop 0\nv_add_f32 {s1}, {s1}, {t1}\nv_add_f32 {s2}, {s2}, {t2}")
        e(f"v_mul_f32 {s1}, 0x3b000000, {s1}\nv_mul_f32 {s2}, 0x3b000000, {s2}\nv_fma_f32 {s2}, -{s1}, {s1}, {s2}\nv_max_f32 {s2}, 0, {s2}\nv_add_f32 {s1}, s40, {s1}")
        a.rbf(s2); a.rbf(s1)
        e(f"v_add_f32 {s2}, 0x3727c5ac, {s2}"); a.rbf(s2)
        e(f"v_sqrt_f32 {s2}, {s2}")
        for i in range(8): e(f"v_sub_f32 v{X+i}, v{X+i}, {s1}")
        a.rbf(s2)
        e(f"v_rcp_f32 {s2}, {s2}")
        for i in range(4): e(f"v_cvt_pk_bf16_f32 v{X+2*i}, v{X+2*i}, v{X+2*i+1}")
        for i in range(4): e(f"v_and_b32 v{X+2*i+1}, 0xffff0000, v{X+2*i}\nv_lshlrev_b32 v{X+2*i}, 16, v{X+2*i}")
        for i in range(8): e(f"v_mul_f32 v{X+i}, v{X+i}, {s2}")
        for i in range(4): e(f"v_cvt_pk_bf16_f32 v{X+i}, v{X+2*i}, v{X+2*i+1}")
    def masks():
        for r in range(4):
            e(f"v_mov_b32 v{8+r}, 0\nv_mov_b32 v28, 0xffff\nv_cmp_eq_u32 vcc, {2*r}, v3\ns_nop 1\nv_cndmask_b32 v{8+r}, v{8+r}, v28, vcc")
            e(f"v_mov_b32 v28, 0xffff0000\nv_cmp_eq_u32 vcc, {2*r+1}, v3\ns_nop 1\nv_cndmask_b32 v{8+r}, v{8+r}, v28, vcc")
    cnt = {12: 0, 24: 0}
    def gsync(off):
        cnt[off] += 1
        L = a.label("L_gs")
        e(f"v_mov_b32 v28, {L_PR}\nv_mov_b32 v29, 1\ns_mov_b64 exec, 1\ns_waitcnt lgkmcnt(0)\nds_add_u32 v28, v29 offset:{off}\n{L}:\nds_read_b32 v29, v28 offset:{off}\ns_waitcnt lgkmcnt(0)\nv_readfirstlane_b32 s43, v29\ns_cmp_lt_u32 s43, {4*cnt[off]}\ns_cbranch_scc1 {L}\ns_mov_b64 exec, -1")
    def poll(label, loads, words, slp=None):
        e(f"s_mov_b32 s66, 0\n{label}:")
        for l in loads: e(l)
        e("s_waitcnt vmcnt(0)")
        w = list(words)
        e(f"v_max_u32 v31, {w[0]}, {w[1]}")
        w = w[2:]
        while len(w) >= 2:
            e(f"v_max3_u32 v31, v31, {w[0]}, {w[1]}"); w = w[2:]
        if w: e(f"v_max_u32 v31, v31, {w[0]}")
        e(f"v_cmp_eq_u32 vcc, -1, v31\ns_cbranch_vccz {label}_ok\ns_mov_b64 exec, vcc\ns_add_u32 s66, s66, 1\ns_cmp_gt_u32 s66, 400000\ns_cbranch_scc1 {label}_ok")
        e(f"s_sleep {slp or sleep}\ns_branch {label}\n{label}_ok:\ns_mov_b64 exec, -1")
    def red4():
        for i in range(2):
            e(f"v_add_f32_dpp v{48+i}, v{48+i}, v{48+i} row_ror:8 row_mask:0xf bank_mask:0x3")
            e(f"v_add_f32_dpp v{48+i}, v{50+i}, v{50+i} row_ror:8 row_mask:0xf bank_mask:0xc")
        e("v_add_f32_dpp v48, v48, v48 row_half_mirror row_mask:0xf bank_mask:0x5\ns_nop 0\nv_add_f32_dpp v48, v49, v49 row_half_mirror row_mask:0xf bank_mask:0xa\ns_nop 1")
        e("v_add_f32_dpp v48, v48, v48 quad_perm:[1,0,3,2] row_mask:0xf bank_mask:0xf\ns_nop 1\nv_add_f32_dpp v48, v48, v48 quad_perm:[2,3,0,1] row_mask:0xf bank_mask:0xf")
        e("v_mov_b32 v49, v48\ns_nop 1\nv_permlane16_swap_b32 v48, v49\ns_nop 1\nv_add_f32 v48, v48, v49")

    e("s_cmp_ge_u32 s2, 256\ns_cbranch_scc1 L_end")
    if stamps: e("s_mov_b32 m0, 0\nv_mov_b32 v62, 0\nv_mov_b32 v63, 0")
    e("s_load_dwordx4 s[4:7], s[0:1], 8")
    e("s_load_dwordx4 s[44:47], s[0:1], 80")
    e("s_load_dwordx2 s[20:21], s[0:1], 0")
    e("s_load_dwordx4 s[24:27], s[0:1], 24")
    e("s_load_dwordx4 s[28:31], s[0:1], 48\ns_load_dwordx4 s[32:35], s[0:1], 64")
    if cpf:
        e("s_getpc_b64 s[90:91]\nL_pc:\nv_lshlrev_b32 v4, 4, v0\nv_add_u32 v5, 8192, v4\nv_add_u32 v6, 16384, v4\nv_min_u32 v6, (L_end-L_pc-16)&0xfffffff0, v6")
        e("global_load_dword v61, v4, s[90:91]\nglobal_load_dword v61, v5, s[90:91]\nglobal_load_dword v61, v6, s[90:91]")
    e("v_and_b32 v1, 63, v0\nv_lshrrev_b32 v2, 6, v0\nv_lshlrev_b32 v1, 4, v1\nv_readfirstlane_b32 s3, v2")
    e("s_mov_b32 s36, 0xaaaaaaaa\ns_mov_b32 s37, 0xaaaaaaaa\ns_mov_b32 s38, 0xcccccccc\ns_mov_b32 s39, 0xcccccccc")
    e("s_lshr_b32 s40, s2, 1\ns_xor_b32 s41, s40, s2\ns_and_b32 s41, s41, 1\ns_and_b32 s48, s40, 1")
    e("s_bfe_u32 s40, s2, 0x10002\ns_lshl_b32 s40, s40, 1\ns_or_b32 s77, s41, s40")
    e("s_lshr_b32 s51, s2, 3\ns_lshl_b32 s51, s51, 2\ns_add_u32 s51, s51, s77\ns_and_b32 s49, s51, 31\ns_lshr_b32 s50, s2, 6")
    e("v_bfe_u32 v2, v0, 4, 2\nv_and_b32 v3, 15, v0")
    e("s_cmp_ge_u32 s3, 4\ns_cbranch_scc1 L_helper")
    fstamp()
    e("s_lshl_b32 s54, s51, 21")
    def setoff(k, dst):
        e(f"s_sub_u32 s40, 127, {k}\ns_cmp_eq_u32 s48, 0\ns_cselect_b32 s40, {k}, s40\ns_lshr_b32 s41, s40, 2\ns_lshl_b32 s41, s41, 16\ns_and_b32 s40, s40, 3\ns_lshl_b32 s40, s40, 12\ns_add_u32 {dst}, s54, s41\ns_add_u32 {dst}, {dst}, s40")
    setoff("s3", "s52")
    e("s_mov_b32 s53, 0x10000\ns_cmp_eq_u32 s48, 0\ns_cselect_b32 s53, s53, 0xffff0000\ns_cselect_b32 s55, 1, 0x10000\ns_cselect_b32 s56, 0, 16\ns_add_u32 s57, s52, s53")
    e("s_waitcnt lgkmcnt(0)\ns_mov_b32 s8, s6\ns_mov_b32 s9, s7")
    a.srd(4, 4, 1 << 28); a.srd(8, 8, 1 << 28); a.srd(12, 46, WSZ)
    RA, RB, RC = 128, 192, 64
    def ld(kind, i, rb, off):
        sr = "s22" if kind == "K" else "s23"
        if i % 4 == 0: e(f"s_add_u32 {sr}, {off}, {(i//4)*16384}")
        e(f"buffer_load_dwordx4 v[{rb+4*i}:{rb+4*i+3}], v1, {'s[4:7]' if kind == 'K' else 's[8:11]'}, {sr} offen offset:{(i%4)*1024} {kf if kind == 'K' else vf}")
    for i in range(16):
        if i == kfirst: e("s_barrier")
        ld("K", i, RA, "s52")
    if stamps >= 2: fstamp()
    for i in range(16): ld("V", i, RB, "s52")
    if stamps >= 2: fstamp()
    for i in range(16): ld("K", i, RC, "s57")
    masks()
    e("v_mov_b32 v20, 0\nv_mov_b32 v21, 0\nv_mov_b32 v22, 0\nv_mov_b32 v23, 0\nv_mov_b32 v24, 0xff7fffff\nv_mov_b32 v25, 0")
    e(f"v_lshlrev_b32 v26, 5, v3\nv_mov_b32 v27, {L_PR}\ns_mov_b32 s65, 0")
    e(f"s_lshl_b32 s40, s51, 8\ns_add_u32 s40, s40, {WS_TK}\ns_add_u32 s74, s46, s40\ns_addc_u32 s75, s47, 0")
    e("v_and_b32 v56, 7, v0\nv_lshl_add_u32 v56, v2, 5, v56\nv_bfe_u32 v29, v0, 3, 1\nv_lshl_add_u32 v56, v29, 7, v56\nv_lshlrev_b32 v56, 2, v56\ns_lshl_b32 s40, s3, 10\nv_add_u32 v56, s40, v56\ns_lshl_b32 s40, s3, 3\nv_mov_b32 v57, s40")
    for r in range(4): e(f"ds_write_b32 v56, v20 offset:{L_OB+32*r}")
    e(f"ds_write_b64 v57, v[24:25] offset:{L_MLB}\nv_add_u32 v56, {L_OA}, v56\nv_add_u32 v57, {L_ML}, v57\nv_mov_b32 v58, v26\ns_mov_b32 s86, 0")
    fstamp()
    e("s_barrier")
    e("ds_read_b32 v31, v27 offset:8")
    for w in range(4):
        rb = (32, 40, 48, 12)[w]
        e(f"ds_read_b128 v[{rb}:{rb+3}], v26 offset:{L_QP+512*w}\nds_read_b128 v[{rb+4}:{rb+7}], v26 offset:{L_QP+512*w+16}")
    e("s_waitcnt lgkmcnt(0)")
    for j in range(8):
        e(f"v_add_f32 v{32+j}, v{32+j}, v{40+j}\nv_add_f32 v{48+j}, v{48+j}, v{12+j}\nv_add_f32 v{32+j}, v{32+j}, v{48+j}")
    for j in range(4): e(f"v_cvt_pk_bf16_f32 v{4+j}, v{32+2*j}, v{33+2*j}")
    e("v_readfirstlane_b32 s71, v31")
    def A(i): return f"v{32+i}"
    assert D == 8
    NU = 2 * NM4
    def kpart(src, wait, issue, n=16):
        fstamp()
        for i in range(n):
            e(f"s_waitcnt vmcnt({wait(i)})")
            for j in range(4):
                e(f"v_dot2_f32_bf16 {A(i)}, v{src+4*i+j}, v{4+j}, {'0' if j == 0 else A(i)}")
            issue(i)
        h = n // 2
        for i in range(h):
            e(f"v_add_f32_dpp {A(i)}, {A(i)}, {A(i)} row_ror:8 row_mask:0xf bank_mask:0x3")
            e(f"v_add_f32_dpp {A(i)}, {A(i+h)}, {A(i+h)} row_ror:8 row_mask:0xf bank_mask:0xc")
        h //= 2
        for i in range(h):
            e(f"v_add_f32_dpp {A(i)}, {A(i)}, {A(i)} row_half_mirror row_mask:0xf bank_mask:0x5")
            e(f"v_add_f32_dpp {A(i)}, {A(i+h)}, {A(i+h)} row_half_mirror row_mask:0xf bank_mask:0xa")
        e(f"v_cndmask_b32 v28, {A(1)}, {A(0)}, s[36:37]\nv_cndmask_b32 v29, {A(0)}, {A(1)}, s[36:37]")
        if n == 16:
            e(f"v_cndmask_b32 v30, {A(3)}, {A(2)}, s[36:37]\nv_cndmask_b32 v31, {A(2)}, {A(3)}, s[36:37]")
            e("v_add_f32_dpp v29, v28, v29 quad_perm:[1,0,3,2] row_mask:0xf bank_mask:0xf")
            e("v_add_f32_dpp v31, v30, v31 quad_perm:[1,0,3,2] row_mask:0xf bank_mask:0xf")
            e("v_cndmask_b32 v28, v31, v29, s[38:39]\nv_cndmask_b32 v30, v29, v31, s[38:39]\ns_nop 0")
            e("v_add_f32_dpp v30, v28, v30 quad_perm:[2,3,0,1] row_mask:0xf bank_mask:0xf")
        else:
            e("s_nop 0\nv_add_f32_dpp v30, v28, v29 quad_perm:[1,0,3,2] row_mask:0xf bank_mask:0xf\ns_nop 1")
            e("v_add_f32_dpp v30, v30, v30 quad_perm:[2,3,0,1] row_mask:0xf bank_mask:0xf")
        a.rbf("v30"); e("v_mul_f32 v30, 0x3db504f3, v30"); a.rbf("v30")
        e("v_max_f32 v28, v30, v24")
        allsum("v28", "v29", "max")
        e(f"v_sub_f32 v29, v24, v28\nv_sub_f32 v30, v30, v28\nv_mul_f32 v29, {LOG2E}, v29\nv_mul_f32 v30, {LOG2E}, v30\nv_exp_f32 v29, v29\nv_exp_f32 v30, v30\nv_mov_b32 v24, v28")
        if n == 16: e("v_fma_f32 v25, v25, v29, v30")
        else: e("v_mul_f32 v25, v25, v29\nv_fmac_f32 v25, 0.5, v30")
        e("v_cvt_pk_bf16_f32 v30, v30, v30")
        for r in range(4): e(f"v_mul_f32 v{20+r}, v{20+r}, v29")
        if n == 16: e("s_add_u32 s65, s65, 1\nv_mov_b32 v26, s65\nds_max_u32 v27, v26")
    def vpart(src, wait, issue, n=16):
        for i in range(n):
            bb = 12 + 4 * (i & 1)
            c = i if n == 16 else (i & 1) | ((i & 6) << 1)
            for r in range(4):
                e(f"v_and_b32_dpp v{bb+r}, v30, v{8+r} row_newbcast:{c} row_mask:0xf bank_mask:0xf")
            e(f"s_waitcnt vmcnt({wait(i)})\ns_nop 0")
            e(f"v_mfma_f32_16x16x32_bf16 v[20:23], v[{src+4*i}:{src+4*i+3}], v[{bb}:{bb+3}], v[20:23]")
            issue(i)
    none = lambda i: None
    def ask(): e("s_mov_b32 s72, s55\ns_atomic_add s72, s[74:75], 0 glc")
    def decode(dst, fail):
        e(f"s_waitcnt lgkmcnt(0)\ns_sub_u32 s72, s72, s71\ns_and_b32 s42, s72, 0xffff\ns_lshr_b32 s43, s72, 16\ns_add_u32 s42, s42, s43\ns_cmp_ge_u32 s42, {NU}\ns_cbranch_scc1 {fail}")
        e(f"s_lshr_b32 s72, s72, s56\ns_and_b32 s43, s72, 1\ns_xor_b32 s43, s43, s48\ns_bfe_u32 s72, s72, 0xf0001\ns_add_u32 s72, s72, {4*NS}")
        setoff("s72", dst)
        e(f"s_lshl_b32 s43, s43, 15\ns_add_u32 {dst}, {dst}, s43")
    def try_sib(tag):
        if steal:
            e(f"s_mov_b32 s87, 0\ns_cmp_lg_u32 s86, 0\ns_cbranch_scc1 L_nosib{tag}\nds_read_b64 v[28:29], v27 offset:20\ns_waitcnt lgkmcnt(0)\nv_readfirstlane_b32 s40, v28\nv_readfirstlane_b32 s71, v29\ns_cmp_lt_u32 s40, 4\ns_cbranch_scc1 L_nosib{tag}")
            e("s_xor_b32 s74, s74, 256\ns_xor_b32 s54, s54, 0x200000")
            ask()
            e(f"s_mov_b32 s87, 1\nL_nosib{tag}:")
    kpart(RA, lambda i: 47, lambda i: ld("V", i, RA, "s57"))
    e("s_add_u32 s52, s57, s53")
    vpart(RB, lambda i: 47 - i + min(i, D), lambda i: ld("K", i, RB, "s52") if i < D else None)
    kpart(RC, lambda i: 31 - i + D, none)
    vpart(RA, lambda i: 15 - i + D, none)
    e("L_task:")
    e(f"s_add_u32 s57, s52, s53\ns_cmp_lt_u32 s65, {NS-1}\ns_cbranch_scc1 L_nt")
    ask()
    e("L_nt:")
    kpart(RB, lambda i: 7, lambda i: ld("K", i + 8, RB, "s52") if i < 8 else ld("V", i - 8, RB, "s52"))
    e(f"s_cmp_lt_u32 s65, {NS}\ns_cbranch_scc1 L_have")
    decode("s57", "L_lastF")
    e("L_have:")
    vpart(RB, lambda i: 7, lambda i: ld("V", i + 8, RB, "s52") if i < 8 else ld("K", i - 8, RB, "s57"))
    e(f"s_mov_b32 s52, s57\ns_cmp_lt_u32 s65, {NS}\ns_cbranch_scc1 L_task")
    e("L_htask:")
    ask()
    kpart(RB, lambda i: 7, lambda i: ld("V", i, RB + 32, "s52"), n=8)
    decode("s57", "L_lastH")
    vpart(RB + 32, lambda i: 7, lambda i: ld("K", i, RB, "s57"), n=8)
    e("s_mov_b32 s52, s57\ns_branch L_htask")
    e("L_lastF:")
    try_sib("F")
    vpart(RB, lambda i: min(7, 15 - i), lambda i: ld("V", i + 8, RB, "s52") if i < 8 else None)
    e("s_branch L_flush\nL_lastH:")
    try_sib("H")
    vpart(RB + 32, lambda i: 7 - i, none, n=8)
    e("L_flush:")
    fstamp()
    allsum("v25", "v29")
    for r in range(4): e(f"ds_write_b32 v56, v{20+r} offset:{32*r}")
    e("ds_write_b64 v57, v[24:25]")
    if steal:
        e("s_cmp_eq_u32 s87, 0\ns_cbranch_scc1 L_done")
        decode("s52", "L_done")
        for i in range(8): ld("K", i, RB, "s52")
        e(f"s_mov_b32 s86, 1\nv_add_u32 v56, {L_OB-L_OA}, v56\nv_add_u32 v57, {L_MLB-L_ML}, v57")
        for w in range(4):
            rb = (32, 40, 48, 12)[w]
            e(f"ds_read_b128 v[{rb}:{rb+3}], v58 offset:{L_QP2+512*w}\nds_read_b128 v[{rb+4}:{rb+7}], v58 offset:{L_QP2+512*w+16}")
        e("s_waitcnt lgkmcnt(0)")
        for j in range(8):
            e(f"v_add_f32 v{32+j}, v{32+j}, v{40+j}\nv_add_f32 v{48+j}, v{48+j}, v{12+j}\nv_add_f32 v{32+j}, v{32+j}, v{48+j}")
        for j in range(4): e(f"v_cvt_pk_bf16_f32 v{4+j}, v{32+2*j}, v{33+2*j}")
        e("v_mov_b32 v20, 0\nv_mov_b32 v21, 0\nv_mov_b32 v22, 0\nv_mov_b32 v23, 0\nv_mov_b32 v24, 0xff7fffff\nv_mov_b32 v25, 0\ns_branch L_htask\nL_done:")
    e("v_mov_b32 v26, 1\ns_mov_b64 exec, 1\ns_waitcnt lgkmcnt(0)\nds_add_u32 v27, v26 offset:16\ns_mov_b64 exec, -1")
    e("L_sfin:")
    if stamps:
        e("s_cmp_lg_u32 s3, 0\ns_cbranch_scc1 L_end")
        fstamp_store("v62", 0)
    e("s_endpgm")
    e("L_helper:")
    S = "v63"
    fstamp(S)
    e("s_sub_u32 s3, s3, 4")
    if prio: e(f"s_setprio {prio}")
    e("s_lshl_b32 s58, s50, 1\ns_add_u32 s58, s58, s48")
    e("v_lshlrev_b32 v26, 13, v2\nv_lshl_add_u32 v26, v3, 4, v26")
    e(f"v_mov_b32 v20, 0\nv_mov_b32 v21, 0\nv_mov_b32 v22, 0\nv_mov_b32 v23, 0\nv_mov_b32 v28, {L_PR}\nds_write_b128 v28, v[20:23]\nds_write_b128 v28, v[20:23] offset:16")
    e("s_lshl_b32 s40, s49, 8\ns_lshl_b32 s41, s58, 19\ns_add_u32 s40, s40, s41\ns_lshl_b32 s41, s3, 17\ns_add_u32 s40, s40, s41")
    e("s_lshl_b32 s41, s3, 10\ns_waitcnt lgkmcnt(0)")
    a.srd(16, 20, 4096)
    e("buffer_load_dwordx4 v[48:51], v1, s[16:19], s41 offen")
    a.srd(16, 24, 512 * 4096 * 2)
    if abl & 8: e("s_mov_b32 s18, 0")
    if kfirst: e("s_barrier")
    for t in range(4):
        e(f"buffer_load_dwordx4 v[{64+4*t}:{67+4*t}], v26, s[16:19], s40 offen {wqf}\ns_add_u32 s40, s40, 0x8000")
    if not kfirst: e("s_barrier")
    a.srd(12, 46, WSZ)
    e(f"s_lshl_b32 s42, s49, 8\ns_add_u32 s76, s42, {WS_EP}\ns_add_u32 s42, s46, s76\ns_addc_u32 s43, s47, 0\ns_load_dwordx2 s[56:57], s[42:43], 0 glc\ns_xor_b32 s42, s42, 256\ns_load_dwordx2 s[82:83], s[42:43], 0 glc")
    e(f"s_lshl_b32 s42, s51, 8\ns_add_u32 s42, s42, {WS_TK}\ns_add_u32 s42, s46, s42\ns_addc_u32 s43, s47, 0\ns_mov_b32 s72, 0\ns_cmp_lg_u32 s3, s50\ns_cbranch_scc1 L_nobase\ns_load_dword s72, s[42:43], 0 glc\nL_nobase:")
    masks()
    e(f"s_lshl_b32 s67, s3, 12\ns_add_u32 s67, s67, {L_TR}\nv_add_u32 v24, s67, v1\nv_mov_b32 v28, {L_PR}")
    e("s_mov_b32 s62, 0x01000100\ns_mov_b32 s63, 0x03020302")
    e("s_lshl_b32 s40, s3, 11\nv_lshlrev_b32 v58, 1, v1\nv_add_u32 v58, s40, v58")
    e("s_lshl_b32 s41, s58, 8\ns_add_u32 s40, s40, s41\nv_lshlrev_b32 v59, 4, v3\nv_lshl_add_u32 v59, v2, 2, v59\nv_add_u32 v59, s40, v59")
    e("s_waitcnt vmcnt(4)")
    fstamp(S)
    for i in range(4):
        e(f"v_lshlrev_b32 v{40+2*i}, 16, v{48+i}\nv_and_b32 v{41+2*i}, 0xffff0000, v{48+i}")
    ln8(40, 52)
    for i in (3, 2, 1, 0): e(f"v_perm_b32 v{41+2*i}, v{40+i}, v{40+i}, s63\nv_perm_b32 v{40+2*i}, v{40+i}, v{40+i}, s62")
    e(f"ds_write_b128 v58, v[40:43] offset:{L_XD}\nds_write_b128 v58, v[44:47] offset:{L_XD+16}")
    for t in range(4): e(f"s_waitcnt vmcnt({3-t})\nds_write_b128 v24, v[{64+4*t}:{67+4*t}] offset:{1024*t}")
    fstamp(S)
    gsync(12)
    e(f"ds_read_b32 v53, v59 offset:{L_XD}")
    for t in range(16): e(f"ds_read_b128 v[{64+4*t}:{67+4*t}], v1 offset:{L_TR+1024*t}")
    e("s_cmp_lg_u32 s3, s50\ns_cbranch_scc1 L_nobase2\nv_mov_b32 v44, s72\nds_write_b32 v28, v44 offset:8\ns_waitcnt lgkmcnt(0)\nL_nobase2:")
    e("s_add_u32 s56, s56, 1\ns_addc_u32 s57, s57, 0\nv_mov_b32 v42, s56\nv_mov_b32 v43, s57\nv_mov_b32 v46, s56\nv_mov_b32 v47, s57")
    e("s_lshl_b32 s40, s49, 2\ns_add_u32 s40, s40, s3\ns_lshl_b32 s40, s40, 3\ns_add_u32 s40, s40, s58\ns_lshl_b32 s40, s40, 10")
    e(f"s_add_u32 s40, s40, {WS_Q}\nv_lshlrev_b32 v52, 8, v2\nv_lshl_add_u32 v52, v3, 4, v52\ns_waitcnt lgkmcnt(15)")
    for t in range(16):
        bb = 12 + 4 * (t & 1)
        for r in range(4):
            e(f"v_and_b32_dpp v{bb+r}, v53, v{8+r} row_newbcast:{t} row_mask:0xf bank_mask:0xf")
        e(f"s_waitcnt lgkmcnt({15-t})\ns_nop 0")
        e(f"v_mfma_f32_16x16x32_bf16 v[20:23], v[{64+4*t}:{67+4*t}], v[{bb}:{bb+3}], v[20:23]")
    e("s_lshl_b32 s61, s49, 2\ns_add_u32 s61, s61, s50\ns_lshl_b32 s61, s61, 3\ns_lshl_b32 s42, s3, 1\ns_add_u32 s61, s61, s42\ns_lshl_b32 s61, s61, 10")
    e(f"s_add_u32 s61, s61, {WS_Q}\ns_mov_b32 exec_lo, 0x00ff00ff\ns_mov_b32 exec_hi, 0x00ff00ff")
    e("v_mov_b32 v40, v20\nv_mov_b32 v41, v21\nv_mov_b32 v44, v22\nv_mov_b32 v45, v23")
    e("buffer_store_dwordx4 v[40:43], v52, s[12:15], s40 offen sc1\nbuffer_store_dwordx4 v[44:47], v52, s[12:15], s40 offen offset:128 sc1")
    e(f"s_lshl_b32 s84, s51, 6\ns_add_u32 s84, s84, {WS_QB}\ns_cmp_lg_u32 s3, s50\ns_cbranch_scc1 L_noqb\ns_cmp_lg_u32 s48, 0\ns_cbranch_scc1 L_noqb\ns_mov_b64 exec, 1\nv_mov_b32 v54, s72\nv_mov_b32 v55, 0\nv_mov_b32 v56, s56\nv_mov_b32 v57, s57\nbuffer_store_dwordx4 v[54:57], v52, s[12:15], s84 offen sc1\nL_noqb:\ns_mov_b64 exec, -1")
    fstamp(S)
    a.srd(16, 26, 4096 * 512 * 2)
    if abl & 1: e("s_mov_b32 s18, 0")
    if abl & 2: e("s_mov_b32 s14, 0")
    e("v_bfe_u32 v27, v0, 3, 3\nv_lshlrev_b32 v27, 10, v27\nv_and_b32 v28, 7, v0\nv_lshl_add_u32 v27, v28, 4, v27")
    e("s_lshl_b32 s40, s49, 17\ns_lshl_b32 s41, s58, 7\ns_add_u32 s40, s40, s41\ns_lshl_b32 s41, s3, 15\ns_add_u32 s40, s40, s41")
    for t in range(4): e(f"buffer_load_dwordx4 v[{96+4*t}:{99+4*t}], v27, s[16:19], s40 offen {wf}\ns_add_u32 s40, s40, 8192")
    e("v_mov_b32 v28, -1\nv_mov_b32 v29, -1\nv_mov_b32 v30, -1\nv_mov_b32 v31, -1\nv_and_b32 v27, 255, v0")
    e(f"s_lshl_b32 s40, s51, 2\ns_add_u32 s40, s40, s48\ns_lshl_b32 s54, s40, 10\ns_add_u32 s54, s54, {WS_O}\ns_xor_b32 s85, s54, 0x1800\nv_lshlrev_b32 v32, 2, v27")
    e("buffer_store_dword v28, v32, s[12:15], s54 offen sc1\nbuffer_store_dword v28, v32, s[12:15], s85 offen sc1")
    e("v_lshlrev_b32 v33, 16, v2\nv_bfe_u32 v34, v0, 3, 1\nv_lshl_add_u32 v33, v34, 10, v33\nv_and_b32 v34, 7, v0\nv_lshl_add_u32 v33, v34, 2, v33")
    e(f"s_lshl_b32 s60, s58, 13\ns_lshl_b32 s40, s3, 11\ns_add_u32 s60, s60, s40\ns_lshl_b32 s40, s49, 5\ns_add_u32 s60, s60, s40\ns_add_u32 s60, s60, {WS_Y}")
    e("buffer_store_dword v28, v33, s[12:15], s60 offen sc1")
    e("s_lshr_b32 s79, s2, 3\ns_sub_u32 s79, s79, 16\ns_lshl_b32 s79, s79, 2\ns_add_u32 s79, s79, s77\ns_lshl_b32 s79, s79, 2\ns_add_u32 s79, s79, s3\ns_cmp_eq_u32 s48, 1\ns_cselect_b32 s79, s79, 0x10000")
    e("v_bfe_u32 v36, v0, 2, 1\nv_bfe_u32 v37, v0, 3, 1\nv_lshl_add_u32 v36, v37, 1, v36\nv_bfe_u32 v37, v0, 5, 1\nv_lshl_add_u32 v36, v37, 2, v36")
    e("v_and_b32 v37, 3, v0\nv_bfe_u32 v38, v0, 4, 1\nv_lshl_add_u32 v37, v38, 2, v37\nv_lshlrev_b32 v37, 13, v37\nv_lshl_add_u32 v37, v36, 2, v37")
    e(f"s_lshl_b32 s55, s79, 5\ns_add_u32 s55, s55, {WS_H}\ns_cmp_lt_u32 s79, 256\ns_cselect_b32 s55, s55, 0x40000000\nbuffer_store_dword v28, v37, s[12:15], s55 offen sc1")
    e(f"s_lshl_b32 s59, s2, 13\ns_add_u32 s59, s59, {WS_D}\ns_cmp_lt_u32 s2, {NG}\ns_cselect_b32 s59, s59, 0x40000000\ns_add_u32 s40, s59, 4096\nv_lshlrev_b32 v27, 4, v27")
    e("buffer_store_dwordx4 v[28:31], v27, s[12:15], s59 offen sc1\nbuffer_store_dwordx4 v[28:31], v27, s[12:15], s40 offen sc1")
    a.srd(16, 20, 4096)
    e("v_lshlrev_b32 v38, 1, v36\ns_lshl_b32 s40, s79, 4\nbuffer_load_ushort v39, v38, s[16:19], s40 offen")
    e("v_and_b32 v52, 7, v0\nv_and_b32 v53, 63, v0\nv_lshlrev_b32 v53, 1, v53\nv_sub_u32 v52, v53, v52\nv_lshlrev_b32 v52, 2, v52\ns_lshl_b32 s40, s3, 9\nv_add_u32 v52, s40, v52")
    if abl & 2: e("s_mov_b32 s14, 0x40000000")
    if abl & 4: e("s_waitcnt vmcnt(0)\ns_branch L_pq_ok")
    e("s_mov_b32 s66, 0\nL_pq:")
    e("buffer_load_dwordx4 v[64:67], v1, s[12:15], s61 offen sc1\nbuffer_load_dwordx4 v[68:71], v1, s[12:15], s61 offen offset:1024 sc1\ns_waitcnt vmcnt(0)")
    e("v_xor_b32 v72, s56, v66\nv_xor_b32 v73, s57, v67\nv_xor_b32 v74, s56, v70\nv_xor_b32 v75, s57, v71\nv_or3_b32 v72, v72, v73, v74\nv_or_b32 v72, v72, v75")
    e(f"v_cmp_ne_u32 vcc, 0, v72\ns_cbranch_vccz L_pq_ok\ns_mov_b64 exec, vcc\ns_add_u32 s66, s66, 1\ns_cmp_gt_u32 s66, 400000\ns_cbranch_scc1 L_pq_ok\ns_sleep {qsleep}\ns_branch L_pq\nL_pq_ok:\ns_mov_b64 exec, -1")
    e(f"v_add_f32 v64, v64, v68\nv_add_f32 v65, v65, v69\nds_write_b32 v52, v64 offset:{L_QP}\nds_write_b32 v52, v65 offset:{L_QP+32}\ns_waitcnt lgkmcnt(0)")
    fstamp(S)
    e("s_barrier")
    if hexit == 1: e("s_endpgm")
    e(f"v_lshlrev_b32 v39, 16, v39\nv_mov_b32 v28, {L_PR}\nv_mov_b32 v29, 1\ns_mov_b64 exec, 1\nds_add_rtn_u32 v29, v28, v29 offset:4\ns_waitcnt lgkmcnt(0)\ns_mov_b64 exec, -1\nv_readfirstlane_b32 s70, v29")
    e(f"v_bfe_u32 v25, v0, 2, 2\nv_lshlrev_b32 v25, 7, v25\nv_lshl_add_u32 v25, v2, 10, v25\nv_and_b32 v28, 3, v0\nv_lshl_add_u32 v25, v28, 3, v25\ns_lshl_b32 s41, s3, 5\ns_add_u32 s41, s41, {L_TR}\nv_add_u32 v25, s41, v25")
    for t in range(4): e(f"ds_write_b128 v24, v[{96+4*t}:{99+4*t}] offset:{1024*t}")
    gsync(12)
    for ks in range(4):
        for hh in range(2):
            e(f"ds_read_b64_tr_b16 v[{112+4*ks+2*hh}:{113+4*ks+2*hh}], v25 offset:{4096*ks+512*hh}")
    def wait_progress(lbl, sreg):
        e(f"v_mov_b32 v28, {L_PR}\n{lbl}:\nds_read_b32 v29, v28\ns_waitcnt lgkmcnt(0)\nv_readfirstlane_b32 s40, v29\ns_cmp_ge_u32 s40, {sreg}\ns_cbranch_scc1 {lbl}_ok\ns_sleep 32\ns_branch {lbl}\n{lbl}_ok:")
    def glu_loads():
        a.srd(16, 32, 512 * 1792 * 2)
        e("v_lshlrev_b32 v26, 13, v2\nv_lshl_add_u32 v26, v3, 3, v26\ns_lshl_b32 s40, s78, 15\ns_lshl_b32 s41, s3, 8\ns_add_u32 s40, s40, s41")
        for ee in range(8):
            if ee == 4: e("s_add_u32 s40, s40, 4096")
            e(f"buffer_load_dwordx2 v[{64+4*ee}:{65+4*ee}], v26, s[16:19], s40 offen offset:{(ee%4)*1024} {wf}")
            e(f"buffer_load_dwordx2 v[{66+4*ee}:{67+4*ee}], v26, s[16:19], s40 offen offset:{(ee%4)*1024+128} {wf}")
        e("s_cmp_lt_u32 s3, 2\ns_cselect_b32 s42, s28, s30\ns_cselect_b32 s43, s29, s31")
        a.srd(16, 42, 512 * 1792 * 2)
        e("v_bfe_u32 v26, v0, 2, 4\nv_mul_u32_u24 v26, 3584, v26\nv_and_b32 v28, 3, v0\nv_lshl_add_u32 v26, v28, 4, v26")
        e(f"s_lshl_b32 s40, s78, 6\ns_and_b32 s41, s3, 1\ns_mul_i32 s41, s41, {256*3584}\ns_add_u32 s40, s40, s41")
        for t in range(16): e(f"buffer_load_dwordx4 v[{128+4*t}:{131+4*t}], v26, s[16:19], s40 offen {wf}\ns_add_u32 s40, s40, {16*3584}")
    e(f"s_lshr_b32 s78, s51, 1\ns_and_b32 s40, s51, 1\ns_or_b32 s40, s40, s48\ns_cmp_eq_u32 s40, 0\ns_cselect_b32 s78, s78, 255\ns_cmp_ge_u32 s78, {NG}\ns_cbranch_scc1 L_nogw")
    glu_loads()
    e("s_mov_b32 s80, 0x05040100\ns_mov_b32 s81, 0x07060302")
    e(f"s_lshl_b32 s41, s3, 14\ns_add_u32 s41, s41, {L_GU}\nv_add_u32 v24, s41, v1")
    e(f"v_bfe_u32 v25, v0, 2, 2\nv_lshlrev_b32 v25, 6, v25\nv_lshl_add_u32 v25, v2, 9, v25\nv_and_b32 v28, 3, v0\nv_lshl_add_u32 v25, v28, 3, v25")
    e(f"s_lshr_b32 s41, s3, 1\ns_lshl_b32 s41, s41, 15\ns_and_b32 s42, s3, 1\ns_lshl_b32 s42, s42, 5\ns_add_u32 s41, s41, s42\ns_add_u32 s41, s41, {L_GU}\nv_add_u32 v25, s41, v25")
    e("s_waitcnt vmcnt(16)")
    for j in range(8):
        for q in range(4):
            e(f"v_perm_b32 v{192+4*j+q}, v{64+4*(2*q+1)+(j>>1)}, v{64+4*(2*q)+(j>>1)}, {'s80' if j%2==0 else 's81'}")
    for t in range(16): e(f"s_waitcnt vmcnt({15-t})\nds_write_b128 v24, v[{128+4*t}:{131+4*t}] offset:{1024*t}")
    gsync(12)
    for ks in range(16):
        for hh in range(2):
            e(f"ds_read_b64_tr_b16 v[{128+4*ks+2*hh}:{129+4*ks+2*hh}], v25 offset:{2048*ks+256*hh}")
    e(f"s_and_b32 s40, s78, 7\ns_lshl_b32 s40, s40, 13\ns_lshl_b32 s41, s3, 11\ns_add_u32 s73, s40, s41\ns_add_u32 s73, s73, {WS_H}\nv_lshlrev_b32 v46, 1, v1")
    e(f"s_mul_i32 s40, s3, 1040\nv_add_u32 v47, s40, v1\nv_and_b32 v43, 3, v0\nv_mul_u32_u24 v43, 1040, v43\nv_lshl_add_u32 v43, v2, 4, v43")
    e("v_lshlrev_b32 v40, 2, v3\ns_lshr_b32 s40, s3, 1\ns_lshl_b32 s40, s40, 9\ns_and_b32 s41, s3, 1\ns_lshl_b32 s41, s41, 6\ns_add_u32 s40, s40, s41\nv_add_u32 v40, s40, v40")
    e("v_bfe_u32 v41, v0, 2, 2\nv_lshlrev_b32 v41, 7, v41\nv_lshl_add_u32 v41, v2, 5, v41\nv_and_b32 v61, 3, v0\nv_lshl_add_u32 v41, v61, 3, v41")
    e(f"v_lshlrev_b32 v42, 11, v2\nv_lshl_add_u32 v42, v3, 4, v42\ns_lshl_b32 s59, s78, 13\ns_lshl_b32 s40, s3, 9\ns_add_u32 s59, s59, s40\ns_add_u32 s59, s59, {WS_D}")
    e("L_nogw:")
    if steal:
        wait_progress("L_sw", 3)
        e(f"s_add_u32 s82, s82, 1\ns_addc_u32 s83, s83, 0\ns_xor_b32 s61, s61, 0x8000\ns_xor_b32 s84, s84, 64\nv_mov_b32 v29, 0\ns_mov_b32 s66, 0\nL_ps:")
        e("buffer_load_dwordx4 v[64:67], v1, s[12:15], s61 offen sc1\nbuffer_load_dwordx4 v[68:71], v1, s[12:15], s61 offen offset:1024 sc1\nbuffer_load_dwordx4 v[76:79], v29, s[12:15], s84 offen sc1\ns_waitcnt vmcnt(0)")
        e("v_xor_b32 v72, s82, v66\nv_xor_b32 v73, s83, v67\nv_xor_b32 v74, s82, v70\nv_xor_b32 v75, s83, v71\nv_or3_b32 v72, v72, v73, v74\nv_xor_b32 v73, s82, v78\nv_xor_b32 v74, s83, v79\nv_or3_b32 v72, v72, v73, v74\nv_or_b32 v72, v72, v75")
        e(f"v_cmp_ne_u32 vcc, 0, v72\ns_cbranch_vccz L_ps_ok\ns_add_u32 s66, s66, 1\ns_cmp_gt_u32 s66, 1000\ns_cbranch_scc1 L_ps_no\ns_sleep 16\ns_branch L_ps\nL_ps_ok:")
        e(f"v_add_f32 v64, v64, v68\nv_add_f32 v65, v65, v69\nds_write_b32 v52, v64 offset:{L_QP2}\nds_write_b32 v52, v65 offset:{L_QP2+32}\nv_mov_b32 v28, {L_PR}\nds_write_b32 v28, v76 offset:24\nv_mov_b32 v29, 1\ns_mov_b64 exec, 1\ns_waitcnt lgkmcnt(0)\nds_add_u32 v28, v29 offset:20\ns_mov_b64 exec, -1\nL_ps_no:")
    e("s_cmp_lg_u32 s70, 3\ns_cbranch_scc1 L_noinit\ns_bfe_u32 s41, s2, 0x20003\ns_add_u32 s41, s41, 1")
    wait_progress("L_iw", "s41")
    e("s_mov_b32 s64, 1\ns_atomic_add s64, s[44:45], 0\nL_noinit:")
    e("v_lshlrev_b32 v34, 10, v2\nv_lshl_add_u32 v35, v3, 5, v34")
    e(f"s_lshl_b32 s40, s49, 12\ns_lshl_b32 s41, s3, 17\ns_add_u32 s88, s40, s41\ns_add_u32 s88, s88, {WS_O}")
    e("v_lshlrev_b32 v4, 4, v3\nv_lshl_add_u32 v4, v2, 2, v4\nv_bfe_u32 v5, v0, 4, 1\nv_bfe_u32 v6, v0, 5, 1\nv_lshlrev_b32 v4, 4, v3\nv_lshl_add_u32 v4, v6, 3, v4\nv_lshl_add_u32 v4, v5, 2, v4\ns_mul_i32 s40, s3, 272\nv_add_u32 v4, s40, v4")
    e("v_bfe_u32 v5, v0, 2, 2\nv_mul_u32_u24 v5, 272, v5\nv_lshl_add_u32 v5, v2, 4, v5")
    e("s_lshl_b32 s40, s3, 5\nv_lshlrev_b32 v6, 2, v36\nv_add_u32 v6, s40, v6\nv_and_b32 v7, 7, v0\nv_lshlrev_b32 v7, 4, v7\nv_bfe_u32 v37, v0, 3, 3\nv_lshl_add_u32 v37, v37, 13, v7")
    e(f"s_lshl_b32 s62, s79, 10\ns_add_u32 s62, s62, {WS_Y}\nv_and_b32 v44, 31, v0\nv_lshlrev_b32 v44, 5, v44\nv_bfe_u32 v45, v0, 5, 1\nv_lshl_add_u32 v44, v45, 4, v44")
    e(f"v_lshlrev_b32 v45, 9, v1\ns_lshl_b32 s63, s79, 5\ns_add_u32 s63, s63, {WS_D}\ns_lshl_b32 s67, s79, 4")
    wait_progress("L_w2", NS - 2)
    if cpf and cpf2:
        e("v_and_b32 v28, 255, v0\nv_lshlrev_b32 v28, 4, v28\nv_add_u32 v29, (L_lastF-L_pc)&0xffffff80, v28\nv_add_u32 v28, (L_wf-L_pc)&0xffffff80, v28\nv_min_u32 v28, (L_end-L_pc-16)&0xfffffff0, v28")
        e("global_load_dword v61, v28, s[90:91]\nglobal_load_dword v61, v29, s[90:91]")
    e("v_lshrrev_b32 v28, 1, v1\nv_mov_b32 v29, 0")
    a.srd(16, 44, 256)
    e("s_mov_b32 s66, 0\nL_initchk:\nbuffer_load_dword v31, v29, s[16:19], 0 offen sc1\ns_waitcnt vmcnt(0)\nv_readfirstlane_b32 s64, v31\ns_cmp_ge_u32 s64, 256\ns_cbranch_scc1 L_initok\ns_add_u32 s66, s66, 1\ns_cmp_gt_u32 s66, 200000\ns_cbranch_scc1 L_initok\ns_sleep 8\ns_branch L_initchk\nL_initok:")
    if hexit == 2: e("s_endpgm")
    e(f"s_setprio 0\nv_mov_b32 v27, {L_PR}\nL_wf:\nds_read_b32 v30, v27 offset:16\ns_waitcnt lgkmcnt(0)\nv_readfirstlane_b32 s40, v30\ns_cmp_ge_u32 s40, 4\ns_cbranch_scc1 L_wf_ok\ns_sleep {wsleep}\ns_branch L_wf\nL_wf_ok:\ns_setprio {prio}")
    e(f"v_lshrrev_b32 v28, 1, v1\ns_cmp_eq_u32 s3, 0\ns_cselect_b32 s54, s54, s85\ns_mov_b32 s40, {L_OB}\ns_cselect_b32 s40, {L_OA}, s40\nv_add_u32 v30, s40, v28\ns_mov_b32 s40, {L_MLB}\ns_cselect_b32 s40, {L_ML}, s40\nv_mov_b32 v29, s40")
    a.srd(16, 34, 4096)
    fstamp(S)
    e("s_cmp_ge_u32 s3, 2\ns_cbranch_scc1 L_st2")
    e("ds_read_b128 v[48:51], v29\nds_read_b128 v[52:55], v29 offset:16")
    for w in range(4): e(f"ds_read_b64 v[{64+2*w}:{65+2*w}], v30 offset:{1024*w}")
    e("s_waitcnt lgkmcnt(4)\nv_max_f32 v56, v48, v50\nv_max3_f32 v56, v56, v52, v54")
    for w in range(4): e(f"v_sub_f32 v{58+w}, v{48+2*w}, v56")
    for w in range(4): e(f"v_mul_f32 v{58+w}, {LOG2E}, v{58+w}")
    for w in range(4): e(f"v_exp_f32 v{58+w}, v{58+w}")
    e("s_waitcnt lgkmcnt(0)\nv_mul_f32 v57, v58, v49\nv_mul_f32 v64, v64, v58\nv_mul_f32 v65, v65, v58")
    for w in range(1, 4): e(f"v_fmac_f32 v57, v{58+w}, v{49+2*w}\nv_fmac_f32 v64, v{64+2*w}, v{58+w}\nv_fmac_f32 v65, v{65+2*w}, v{58+w}")
    e("v_min_u32 v64, -2, v64\nv_min_u32 v65, -2, v65\nv_min_u32 v56, -2, v56\nv_min_u32 v57, -2, v57")
    e("buffer_store_dwordx2 v[64:65], v28, s[12:15], s54 offen sc1\ns_mov_b64 exec, 1\nbuffer_store_dwordx2 v[56:57], v28, s[12:15], s54 offen offset:512 sc1\ns_mov_b64 exec, -1")
    fstamp(S)
    e("L_st2:")
    poll("L_p1", ["buffer_load_dwordx4 v[64:67], v35, s[12:15], s88 offen sc1", "buffer_load_dwordx4 v[68:71], v35, s[12:15], s88 offen offset:16 sc1",
                  "buffer_load_dwordx2 v[56:57], v34, s[12:15], s88 offen offset:512 sc1"], [f"v{i}" for i in range(64, 72)] + ["v56", "v57"], slp=lsleep)
    e("v_mov_b32 v58, v56\nv_mov_b32 v59, v56\ns_nop 1\nv_permlane16_swap_b32 v58, v59\ns_nop 0\nv_max_f32 v58, v58, v59\nv_mov_b32 v59, v58\ns_nop 1\nv_permlane32_swap_b32 v58, v59\ns_nop 0\nv_max_f32 v58, v58, v59")
    e(f"v_sub_f32 v56, v56, v58\nv_mul_f32 v56, {LOG2E}, v56\nv_exp_f32 v56, v56\ns_nop 0\nv_mul_f32 v57, v57, v56")
    for k in range(8): e(f"v_mul_f32 v{64+k}, v{64+k}, v56")
    e("v_mov_b32 v59, v57\ns_nop 0")
    for k in range(4): e(f"v_permlane32_swap_b32 v{64+k}, v{68+k}")
    e("v_permlane16_swap_b32 v57, v59")
    for k in range(4): e(f"v_add_f32 v{64+k}, v{64+k}, v{68+k}")
    e("v_add_f32 v57, v57, v59\nv_mov_b32 v59, v57\nv_permlane16_swap_b32 v64, v66\nv_permlane16_swap_b32 v65, v67\nv_permlane32_swap_b32 v57, v59\ns_nop 0")
    e("v_add_f32 v57, v57, v59\nv_rcp_f32 v57, v57\nv_add_f32 v64, v64, v66\nv_add_f32 v65, v65, v67\nv_mul_f32 v64, v64, v57\nv_mul_f32 v65, v65, v57")
    e(f"v_cvt_pk_bf16_f32 v64, v64, v65\nds_write_b32 v4, v64 offset:{L_ON}\ns_waitcnt lgkmcnt(0)\ns_barrier")
    for ks in range(4): e(f"ds_read_b128 v[{80+4*ks}:{83+4*ks}], v5 offset:{L_ON+64*ks}")
    for ks in range(4):
        e(f"s_waitcnt lgkmcnt({3-ks})")
        e(f"v_mfma_f32_16x16x32_bf16 v[20:23], v[{80+4*ks}:{83+4*ks}], v[{112+4*ks}:{115+4*ks}], {'0' if ks == 0 else 'v[20:23]'}")
    e("s_nop 7\nv_min_u32 v20, -2, v20\nbuffer_store_dword v20, v33, s[12:15], s60 offen sc1")
    fstamp(S)
    e("s_cmp_ge_u32 s79, 256\ns_cbranch_scc1 L_glu")
    poll("L_p3", ["buffer_load_dwordx4 v[48:51], v44, s[12:15], s62 offen sc1"], [f"v{i}" for i in range(48, 52)], slp=s3sleep)
    e("s_nop 3")
    red4()
    a.rbf("v48"); e("v_add_f32 v48, v48, v39"); a.rbf("v48")
    e(f"v_min_u32 v39, -2, v48\nds_write_b32 v6, v39 offset:{L_HG}\ns_waitcnt lgkmcnt(0)\ns_barrier\ns_cmp_lg_u32 s3, 0\ns_cbranch_scc1 L_nohp")
    e(f"ds_read_b128 v[48:51], v7 offset:{L_HG}\ns_waitcnt lgkmcnt(0)\nbuffer_store_dwordx4 v[48:51], v37, s[12:15], s55 offen sc1\nL_nohp:")
    fstamp(S)
    e(f"L_glu:\ns_cmp_ge_u32 s78, {NG}\ns_cbranch_scc1 L_s5")
    poll("L_p4", ["buffer_load_dwordx4 v[48:51], v46, s[12:15], s73 offen sc1", "buffer_load_dwordx4 v[52:55], v46, s[12:15], s73 offen offset:16 sc1"], [f"v{i}" for i in range(48, 56)], slp=hsleep)
    fstamp(S)
    ln8(48, 56)
    e(f"ds_write_b128 v47, v[48:51] offset:{L_HN}")
    e("s_mov_b64 exec, -1\ns_waitcnt lgkmcnt(0)\ns_barrier")
    if gst: fstamp(S)
    for ks in range(12): e(f"ds_read_b128 v[{64+4*ks}:{67+4*ks}], v43 offset:{L_HN+64*ks}")
    for ks in range(12, 16): e(f"ds_read_b128 v[{224+4*(ks-12)}:{227+4*(ks-12)}], v43 offset:{L_HN+64*ks}")
    for ks in range(16):
        e(f"s_waitcnt lgkmcnt({15-ks})")
        c = "0" if ks < 2 else f"v[{20+4*(ks&1)}:{23+4*(ks&1)}]"
        ar = 64 + 4 * ks if ks < 12 else 224 + 4 * (ks - 12)
        e(f"v_mfma_f32_16x16x32_bf16 v[{20+4*(ks&1)}:{23+4*(ks&1)}], v[{ar}:{ar+3}], v[{128+4*ks}:{131+4*ks}], {c}")
    e("s_mov_b64 exec, 0xffff\ns_nop 6")
    for r in range(4): e(f"v_add_f32 v{20+r}, v{20+r}, v{24+r}\nds_write_b32 v40, v{20+r} offset:{L_AC+128*r}")
    e("s_mov_b64 exec, -1\ns_waitcnt lgkmcnt(0)\ns_barrier")
    if gst: fstamp(S)
    e(f"ds_read_b64 v[20:21], v41 offset:{L_AC}\nds_read_b64 v[22:23], v41 offset:{L_AC+512}\ns_waitcnt lgkmcnt(1)")
    e("v_cvt_pk_bf16_f32 v20, v20, v21\nv_and_b32 v21, 0xffff0000, v20\nv_lshlrev_b32 v20, 16, v20\nv_mul_f32 v21, 0xbfb8aa3b, v21\nv_mul_f32 v20, 0xbfb8aa3b, v20\nv_exp_f32 v21, v21\nv_exp_f32 v20, v20")
    e("s_waitcnt lgkmcnt(0)\nv_cvt_pk_bf16_f32 v22, v22, v23\nv_add_f32 v21, 1.0, v21\nv_add_f32 v20, 1.0, v20\nv_rcp_f32 v21, v21\nv_rcp_f32 v20, v20\nv_and_b32 v23, 0xffff0000, v22\nv_lshlrev_b32 v22, 16, v22")
    e("v_cvt_pk_bf16_f32 v20, v20, v21\nv_and_b32 v21, 0xffff0000, v20\nv_lshlrev_b32 v20, 16, v20\nv_mul_f32 v21, v21, v23\nv_mul_f32 v20, v20, v22\nv_cvt_pk_bf16_f32 v36, v20, v21\ns_nop 1")
    for q in range(4): e(f"v_mov_b32_dpp v{32+q}, v36 quad_perm:[{q},{q},{q},{q}] row_mask:0xf bank_mask:0xf")
    e("s_nop 1")
    for j in range(8):
        e(f"v_mfma_f32_16x16x32_bf16 v[{64+4*j}:{67+4*j}], v[32:35], v[{192+4*j}:{195+4*j}], 0")
    e("s_nop 0")
    for j in range(4): e(f"v_min_u32 v{96+j}, -2, v{64+4*j}")
    e("s_nop 0\nbuffer_store_dwordx4 v[96:99], v42, s[12:15], s59 offen sc1")
    for j in range(4, 8): e(f"v_min_u32 v{96+j}, -2, v{64+4*j}")
    e("buffer_store_dwordx4 v[100:103], v42, s[12:15], s59 offen offset:256 sc1")
    fstamp(S)
    e("L_s5:\ns_cmp_ge_u32 s79, 256\ns_cbranch_scc1 L_fin")
    for j in range(8): e(f"v_mov_b32 v{48+j}, 0")
    e(f"s_mov_b32 exec_lo, -1\ns_mov_b32 exec_hi, {(1 << (NG - 32)) - 1:#x}")
    poll("L_p6", ["buffer_load_dwordx4 v[48:51], v45, s[12:15], s63 offen sc1", "buffer_load_dwordx4 v[52:55], v45, s[12:15], s63 offen offset:16 sc1"], [f"v{i}" for i in range(48, 56)], slp=s5sleep)
    e("s_nop 3")
    for i in range(4): e(f"v_permlane32_swap_b32 v{48+i}, v{52+i}")
    e("s_nop 1")
    for i in range(4): e(f"v_add_f32 v{48+i}, v{48+i}, v{52+i}")
    e("s_nop 0")
    red4()
    a.rbf("v48"); e("v_add_f32 v48, v48, v39\nv_cvt_pk_bf16_f32 v48, v48, v48\ns_mov_b32 exec_lo, 0x1111\ns_mov_b32 exec_hi, 0x1111")
    e("buffer_store_short v48, v38, s[16:19], s67 offen")
    fstamp(S)
    e("L_fin:")
    e("s_cmp_lg_u32 s3, 0\ns_cbranch_scc1 L_end")
    e("s_cmp_lg_u32 s58, 0\ns_cbranch_scc1 L_noep\ns_mov_b64 exec, 1\nv_mov_b32 v48, s56\nv_mov_b32 v49, s57\nv_mov_b32 v50, 0\nbuffer_store_dwordx2 v[48:49], v50, s[12:15], s76 offen sc1\nL_noep:")
    fstamp_store(S, 65536)
    e("L_end:\ns_endpgm")
    e('.section .rodata,"a"\n.p2align 6')
    a.descriptor(KN, 256, 96, accum=256)
    return a.text()

if __name__ == "__main__":
    import os, json
    os.makedirs("v12", exist_ok=True)
    names = []
    for spec in sys.argv[1:]:
        kw = {}
        if spec != "base":
            for p in spec.split(","):
                k, v = p.split("=")
                kw[k] = v.replace("+", " ") if k in ("wf", "wqf", "kf", "vf") else int(v)
        fn = "v12/v12_" + spec.replace(",", "_").replace("=", "") + ".s"
        open(fn, "w").write(gen(**kw))
        names.append(fn)
    print(" ".join(names))
    base = ["work/bench.py", "work/fst9.py", "sequential_preLN__mha_block_cached__glu_gated_glu__decode_np.py", "cdna_kernels/cdna_launch.py", "cdna_kernels/cdna_unwritten_srd_check.py", "work/pair/pair_NS10.s"]
    print(json.dumps(base + ["work/" + f for f in names]))
```

```python
import sys
from asmlib import *
WSZ = 0x40000000
WS_O, WS_Y, WS_H, WS_D, WS_Q, WS_EP, WS_TK, WS_KD, WS_ST, WS_SG = 0x000000, 0x080000, 0x100000, 0x110000, 0x180000, 0x280000, 0x290000, 0x2a0000, 0x300000, 0x400000
NG = 56
LOG2E = "0x3fb8aa3b"
L_XD = 0
L_QP = 8192
L_OA = 10240
L_ML = 14336
L_PX = 19584
L_PR = 14368
L_HN = 14400
L_AC = 18560
L_ON = 0
L_HG = 1152
L_QP2 = 19584
L_OB = L_QP2 + 2048
L_MLB = L_OB + 4096
L_SC = L_MLB + 64
L_TR = L_SC + 4 * 18 * 256
L_GU = L_TR + 16384
LDS_BYTES = L_GU + 65536

def gen(stamps=0, sleep=2, wf="nt", wqf="", prio=3, lsleep=4, thr=32, NS=12, qsleep=4, kfirst=0, hexit=0, dyn=1, s5sleep=3, s3sleep=3, hsleep=3,
        gst=0, D=16, kf="nt", vf="nt", GT=24, wsleep=2, abl=0, steal=1, cpf=0, cpf2=0, comp=2, asc=0, dbgt=0):
    NM4 = 4 * (32 - 2 * NS)
    a = Asm(); e = a.e
    KN = NAME + "_kernel"
    e(HEADER_COMMENT.rstrip("\n"))
    e(f"; @launch grid=(256,1,1) block=(512,1,1) lds={LDS_BYTES}")
    e('.amdgcn_target "amdgcn-amd-amdhsa--gfx950"\n.text')
    a.kernel_begin(KN)
    def fstamp(reg="v62"):
        if stamps:
            e(f"s_memrealtime s[68:69]\ns_waitcnt lgkmcnt(0)\nv_writelane_b32 {reg}, s68, m0\ns_add_u32 m0, m0, 1")
    def fstamp_store(reg, off):
        if stamps:
            e(f"s_mov_b64 exec, -1\nv_and_b32 v2, 63, v0\nv_lshlrev_b32 v2, 2, v2\ns_lshl_b32 s41, s2, 8\ns_add_u32 s41, s41, {WS_ST+off}\nbuffer_store_dword {reg}, v2, s[12:15], s41 offen sc1")
    def dstamp(word, inv=False):
        if dbgt:
            e("s_memrealtime s[94:95]\ns_waitcnt lgkmcnt(0)")
            if inv: e("s_not_b32 s94, s94")
            e(f"s_atomic_umax s94, s[44:45], {4*word}")
    def allsum(v, t, op="add"):
        e("s_nop 1")
        for ctl in ("quad_perm:[1,0,3,2]", "quad_perm:[2,3,0,1]", "row_half_mirror", "row_mirror"):
            e(f"v_{op}_f32_dpp {v}, {v}, {v} {ctl} row_mask:0xf bank_mask:0xf\ns_nop 1")
        e(f"v_mov_b32 {t}, {v}\ns_nop 1\nv_permlane16_swap_b32 {v}, {t}\ns_nop 1\nv_{op}_f32 {v}, {v}, {t}\nv_mov_b32 {t}, {v}\ns_nop 1\nv_permlane32_swap_b32 {v}, {t}\ns_nop 1\nv_{op}_f32 {v}, {v}, {t}")
    def ln8(X, T):
        s1, s2, t1, t2, u = (f"v{T+i}" for i in range(5))
        e(f"v_readfirstlane_b32 s40, v{X}\ns_nop 1")
        e(f"v_subrev_f32 {s1}, s40, v{X}\nv_mul_f32 {s2}, {s1}, {s1}")
        for i in range(1, 8):
            e(f"v_subrev_f32 {u}, s40, v{X+i}\nv_add_f32 {s1}, {s1}, {u}\nv_fmac_f32 {s2}, {u}, {u}")
        e("s_nop 0")
        for ctl in ("quad_perm:[1,0,3,2]", "quad_perm:[2,3,0,1]", "row_half_mirror", "row_mirror"):
            e(f"v_add_f32_dpp {s1}, {s1}, {s1} {ctl} row_mask:0xf bank_mask:0xf\nv_add_f32_dpp {s2}, {s2}, {s2} {ctl} row_mask:0xf bank_mask:0xf\ns_nop 0")
        for sw in ("v_permlane16_swap_b32", "v_permlane32_swap_b32"):
            e(f"v_mov_b32 {t1}, {s1}\nv_mov_b32 {t2}, {s2}\ns_nop 0\n{sw} {s1}, {t1}\n{sw} {s2}, {t2}\ns_nop 0\nv_add_f32 {s1}, {s1}, {t1}\nv_add_f32 {s2}, {s2}, {t2}")
        e(f"v_mul_f32 {s1}, 0x3b000000, {s1}\nv_mul_f32 {s2}, 0x3b000000, {s2}\nv_fma_f32 {s2}, -{s1}, {s1}, {s2}\nv_max_f32 {s2}, 0, {s2}\nv_add_f32 {s1}, s40, {s1}")
        a.rbf(s2); a.rbf(s1)
        e(f"v_add_f32 {s2}, 0x3727c5ac, {s2}"); a.rbf(s2)
        e(f"v_sqrt_f32 {s2}, {s2}")
        for i in range(8): e(f"v_sub_f32 v{X+i}, v{X+i}, {s1}")
        a.rbf(s2)
        e(f"v_rcp_f32 {s2}, {s2}")
        for i in range(4): e(f"v_cvt_pk_bf16_f32 v{X+2*i}, v{X+2*i}, v{X+2*i+1}")
        for i in range(4): e(f"v_and_b32 v{X+2*i+1}, 0xffff0000, v{X+2*i}\nv_lshlrev_b32 v{X+2*i}, 16, v{X+2*i}")
        for i in range(8): e(f"v_mul_f32 v{X+i}, v{X+i}, {s2}")
        for i in range(4): e(f"v_cvt_pk_bf16_f32 v{X+i}, v{X+2*i}, v{X+2*i+1}")
    def masks():
        for r in range(4):
            e(f"v_mov_b32 v{8+r}, 0\nv_mov_b32 v28, 0xffff\nv_cmp_eq_u32 vcc, {2*r}, v3\ns_nop 1\nv_cndmask_b32 v{8+r}, v{8+r}, v28, vcc")
            e(f"v_mov_b32 v28, 0xffff0000\nv_cmp_eq_u32 vcc, {2*r+1}, v3\ns_nop 1\nv_cndmask_b32 v{8+r}, v{8+r}, v28, vcc")
    cnt = {12: 0, 24: 0}
    def gsync(off):
        cnt[off] += 1
        L = a.label("L_gs")
        e(f"v_mov_b32 v28, {L_PR}\nv_mov_b32 v29, 1\ns_mov_b64 exec, 1\ns_waitcnt lgkmcnt(0)\nds_add_u32 v28, v29 offset:{off}\n{L}:\nds_read_b32 v29, v28 offset:{off}\ns_waitcnt lgkmcnt(0)\nv_readfirstlane_b32 s43, v29\ns_cmp_lt_u32 s43, {4*cnt[off]}\ns_cbranch_scc1 {L}\ns_mov_b64 exec, -1")
    def poll(label, loads, words, slp=None):
        e(f"s_mov_b32 s66, 0\n{label}:")
        for l in loads: e(l)
        e("s_waitcnt vmcnt(0)")
        w = list(words)
        e(f"v_max_u32 v31, {w[0]}, {w[1]}")
        w = w[2:]
        while len(w) >= 2:
            e(f"v_max3_u32 v31, v31, {w[0]}, {w[1]}"); w = w[2:]
        if w: e(f"v_max_u32 v31, v31, {w[0]}")
        e(f"v_cmp_eq_u32 vcc, -1, v31\ns_cbranch_vccz {label}_ok\ns_mov_b64 exec, vcc\ns_add_u32 s66, s66, 1\ns_cmp_gt_u32 s66, 400000\ns_cbranch_scc1 {label}_ok")
        e(f"s_sleep {slp or sleep}\ns_branch {label}\n{label}_ok:\ns_mov_b64 exec, -1")
    def red4():
        for i in range(2):
            e(f"v_add_f32_dpp v{48+i}, v{48+i}, v{48+i} row_ror:8 row_mask:0xf bank_mask:0x3")
            e(f"v_add_f32_dpp v{48+i}, v{50+i}, v{50+i} row_ror:8 row_mask:0xf bank_mask:0xc")
        e("v_add_f32_dpp v48, v48, v48 row_half_mirror row_mask:0xf bank_mask:0x5\ns_nop 0\nv_add_f32_dpp v48, v49, v49 row_half_mirror row_mask:0xf bank_mask:0xa\ns_nop 1")
        e("v_add_f32_dpp v48, v48, v48 quad_perm:[1,0,3,2] row_mask:0xf bank_mask:0xf\ns_nop 1\nv_add_f32_dpp v48, v48, v48 quad_perm:[2,3,0,1] row_mask:0xf bank_mask:0xf")
        e("v_mov_b32 v49, v48\ns_nop 1\nv_permlane16_swap_b32 v48, v49\ns_nop 1\nv_add_f32 v48, v48, v49")

    e("s_cmp_ge_u32 s2, 256\ns_cbranch_scc1 L_end")
    if stamps: e("s_mov_b32 m0, 0\nv_mov_b32 v62, 0\nv_mov_b32 v63, 0")
    e("s_load_dwordx4 s[4:7], s[0:1], 8")
    e("s_load_dwordx4 s[44:47], s[0:1], 80")
    e("s_load_dwordx2 s[20:21], s[0:1], 0")
    e("s_load_dwordx4 s[24:27], s[0:1], 24")
    e("s_load_dwordx4 s[28:31], s[0:1], 48\ns_load_dwordx4 s[32:35], s[0:1], 64")
    if cpf:
        e("s_getpc_b64 s[90:91]\nL_pc:\nv_lshlrev_b32 v4, 4, v0\nv_add_u32 v5, 8192, v4\nv_add_u32 v6, 16384, v4\nv_min_u32 v6, (L_end-L_pc-16)&0xfffffff0, v6")
        e("global_load_dword v61, v4, s[90:91]\nglobal_load_dword v61, v5, s[90:91]\nglobal_load_dword v61, v6, s[90:91]")
    e("v_and_b32 v1, 63, v0\nv_lshrrev_b32 v2, 6, v0\nv_lshlrev_b32 v1, 4, v1\nv_readfirstlane_b32 s3, v2")
    e("s_mov_b32 s36, 0xaaaaaaaa\ns_mov_b32 s37, 0xaaaaaaaa\ns_mov_b32 s38, 0xcccccccc\ns_mov_b32 s39, 0xcccccccc")
    e("s_lshr_b32 s40, s2, 1\ns_xor_b32 s41, s40, s2\ns_and_b32 s41, s41, 1\ns_and_b32 s48, s40, 1")
    e("s_bfe_u32 s40, s2, 0x10002\ns_lshl_b32 s40, s40, 1\ns_or_b32 s77, s41, s40")
    e("s_lshr_b32 s51, s2, 3\ns_lshl_b32 s51, s51, 2\ns_add_u32 s51, s51, s77\ns_and_b32 s49, s51, 31\ns_lshr_b32 s50, s2, 6")
    e("v_bfe_u32 v2, v0, 4, 2\nv_and_b32 v3, 15, v0")
    e("s_cmp_ge_u32 s3, 4\ns_cbranch_scc1 L_helper")
    fstamp()
    e("s_lshl_b32 s54, s51, 21")
    def setoff(k, dst):
        e(f"s_sub_u32 s40, 127, {k}\ns_cmp_eq_u32 s48, 0\ns_cselect_b32 s40, {k}, s40\ns_lshr_b32 s41, s40, 2\ns_lshl_b32 s41, s41, 16\ns_and_b32 s42, s40, 3\ns_lshl_b32 s42, s42, 12\ns_add_u32 {dst}, s54, s41\ns_add_u32 {dst}, {dst}, s42")
    setoff("s3", "s52")
    e("s_mov_b32 s57, s52\ns_mov_b32 s53, 0x10000\ns_cmp_eq_u32 s48, 0\ns_cselect_b32 s53, s53, 0xffff0000\ns_cselect_b32 s55, 1, 0x10000\ns_cselect_b32 s56, 0, 16")
    e("s_waitcnt lgkmcnt(0)\ns_mov_b32 s8, s6\ns_mov_b32 s9, s7")
    a.srd(4, 4, 1 << 28); a.srd(12, 46, WSZ)
    RA, RB, RC = 128, 192, 64
    def ld(i, rb):
        if i % 4 == 0: e(f"s_add_u32 s22, s52, {(i//4)*16384}")
        e(f"buffer_load_dwordx4 v[{rb+4*i}:{rb+4*i+3}], v1, s[4:7], s22 offen offset:{(i%4)*1024} {kf}")
    for blk, rb in enumerate((RA, RB, RC)):
        for i in range(16):
            if blk == 0 and i == kfirst: e("s_barrier")
            ld(i, rb)
        e("s_add_u32 s52, s52, s53")
        if stamps >= 2 and blk < 2: fstamp()
    masks()
    e("v_mov_b32 v20, 0\nv_mov_b32 v21, 0\nv_mov_b32 v22, 0\nv_mov_b32 v23, 0\nv_mov_b32 v24, 0xff7fffff\nv_mov_b32 v25, 0")
    e(f"v_lshlrev_b32 v26, 5, v3\nv_mov_b32 v27, {L_PR}\ns_mov_b32 s65, 0")
    e(f"v_and_b32 v56, 7, v0\nv_lshl_add_u32 v56, v2, 5, v56\nv_bfe_u32 v29, v0, 3, 1\nv_lshl_add_u32 v56, v29, 7, v56\nv_lshlrev_b32 v56, 2, v56\ns_lshl_b32 s40, s3, 10\nv_add_u32 v56, s40, v56\ns_lshl_b32 s40, s3, 3\nv_mov_b32 v57, s40")
    for r in range(4): e(f"ds_write_b32 v56, v20 offset:{L_OB+32*r}")
    e(f"ds_write_b64 v57, v[24:25] offset:{L_MLB}\nv_add_u32 v56, {L_OA}, v56\nv_add_u32 v57, {L_ML}, v57\ns_mov_b32 s87, 0")
    e(f"s_mul_i32 s40, s3, {18*256}\nv_lshrrev_b32 v60, 2, v1\nv_add_u32 v58, s40, v60\nv_mov_b32 v59, v58")
    e(f"s_lshl_b32 s40, s51, 8\ns_add_u32 s40, s40, {WS_TK}\ns_add_u32 s74, s46, s40\ns_addc_u32 s75, s47, 0\ns_lshl_b32 s73, s51, 15\ns_add_u32 s73, s73, {WS_SG}\nv_mov_b32 v61, {L_PX}")
    fstamp()
    e("s_barrier")
    e("ds_read_b64 v[28:29], v61")
    for w in range(4):
        rb = (32, 40, 48, 12)[w]
        e(f"ds_read_b128 v[{rb}:{rb+3}], v26 offset:{L_QP+512*w}\nds_read_b128 v[{rb+4}:{rb+7}], v26 offset:{L_QP+512*w+16}")
    e("s_waitcnt lgkmcnt(0)")
    for j in range(8):
        e(f"v_add_f32 v{32+j}, v{32+j}, v{40+j}\nv_add_f32 v{48+j}, v{48+j}, v{12+j}\nv_add_f32 v{32+j}, v{32+j}, v{48+j}")
    for j in range(4): e(f"v_cvt_pk_bf16_f32 v{4+j}, v{32+2*j}, v{33+2*j}")
    e("v_readfirstlane_b32 s71, v28\nv_readfirstlane_b32 s70, v29")
    def A(i): return f"v{32+i}"
    def kblk(src, wait, issue, glob=False):
        fstamp()
        for i in range(16):
            e(f"s_waitcnt vmcnt({wait(i)})")
            for j in range(4):
                e(f"v_dot2_f32_bf16 {A(i)}, v{src+4*i+j}, v{4+j}, {'0' if j == 0 else A(i)}")
            issue(i)
        for i in range(8):
            e(f"v_add_f32_dpp {A(i)}, {A(i)}, {A(i)} row_ror:8 row_mask:0xf bank_mask:0x3")
            e(f"v_add_f32_dpp {A(i)}, {A(i+8)}, {A(i+8)} row_ror:8 row_mask:0xf bank_mask:0xc")
        for i in range(4):
            e(f"v_add_f32_dpp {A(i)}, {A(i)}, {A(i)} row_half_mirror row_mask:0xf bank_mask:0x5")
            e(f"v_add_f32_dpp {A(i)}, {A(i+4)}, {A(i+4)} row_half_mirror row_mask:0xf bank_mask:0xa")
        e(f"v_cndmask_b32 v28, {A(1)}, {A(0)}, s[36:37]\nv_cndmask_b32 v29, {A(0)}, {A(1)}, s[36:37]")
        e(f"v_cndmask_b32 v30, {A(3)}, {A(2)}, s[36:37]\nv_cndmask_b32 v31, {A(2)}, {A(3)}, s[36:37]")
        e("v_add_f32_dpp v29, v28, v29 quad_perm:[1,0,3,2] row_mask:0xf bank_mask:0xf")
        e("v_add_f32_dpp v31, v30, v31 quad_perm:[1,0,3,2] row_mask:0xf bank_mask:0xf")
        e("v_cndmask_b32 v28, v31, v29, s[38:39]\nv_cndmask_b32 v30, v29, v31, s[38:39]\ns_nop 0")
        e("v_add_f32_dpp v30, v28, v30 quad_perm:[2,3,0,1] row_mask:0xf bank_mask:0xf")
        a.rbf("v30"); e("v_mul_f32 v30, 0x3db504f3, v30"); a.rbf("v30")
        e("v_max_f32 v24, v30, v24")
        if glob: e("buffer_store_dword v30, v60, s[12:15], s58 offen sc1")
        else:
            e(f"ds_write_b32 v58, v30 offset:{L_SC}\nv_add_u32 v58, 256, v58")
            e("s_add_u32 s65, s65, 1\nv_mov_b32 v26, s65\nds_max_u32 v27, v26")
    def vblk(src, wait, issue, pre):
        fstamp()
        e(f"v_sub_f32 v30, v31, v24\nv_mul_f32 v30, {LOG2E}, v30\nv_exp_f32 v30, v30")
        pre()
        e("s_nop 0\nv_add_f32 v25, v25, v30\nv_cvt_pk_bf16_f32 v30, v30, v30\ns_nop 1")
        for i in range(16):
            bb = 12 + 4 * (i & 1)
            for r in range(4):
                e(f"v_and_b32_dpp v{bb+r}, v30, v{8+r} row_newbcast:{i} row_mask:0xf bank_mask:0xf")
            e(f"s_waitcnt vmcnt({wait(i)})\ns_nop 0")
            e(f"v_mfma_f32_16x16x32_bf16 v[20:23], v[{src+4*i}:{src+4*i+3}], v[{bb}:{bb+3}], v[20:23]")
            issue(i)
    none = lambda i: None
    def ask(off): e(f"s_mov_b32 s72, s55\ns_atomic_add s72, s[74:75], {off} glc")
    def decode(base, fail):
        e(f"s_waitcnt lgkmcnt(0)\ns_sub_u32 s72, s72, {base}\ns_and_b32 s42, s72, 0xffff\ns_lshr_b32 s43, s72, 16\ns_add_u32 s42, s42, s43\ns_cmp_ge_u32 s42, {NM4}\ns_cbranch_scc1 {fail}")
        e(f"s_lshr_b32 s72, s72, s56\ns_and_b32 s72, s72, 0xffff\ns_add_u32 s72, s72, {4*NS}")
        setoff("s72", "s52")
        e("s_lshl_b32 s59, s40, 8\ns_add_u32 s59, s59, s73")
    kblk(RA, lambda i: 47, lambda i: ld(i, RA))
    kblk(RB, lambda i: 47 - i, none)
    kblk(RC, lambda i: 31 - i, none)
    e(f"L_k:\ns_add_u32 s52, s52, s53\ns_cmp_lg_u32 s65, {NS-2}\ns_cbranch_scc1 L_k2")
    ask(0)
    e("L_k2:")
    kblk(RA, lambda i: 15, lambda i: ld(i, RA))
    e(f"s_cmp_lt_u32 s65, {NS-1}\ns_cbranch_scc1 L_k\ns_mov_b32 s86, 0")
    decode("s71", "L_kl0")
    ask(0)
    e("s_mov_b32 s86, 1\ns_branch L_kl1\nL_kl0:\ns_mov_b32 s52, s57\ns_mov_b32 s4, s8\ns_mov_b32 s5, s9\nL_kl1:")
    kblk(RA, lambda i: 15, lambda i: ld(i, RA))
    e("s_cmp_eq_u32 s86, 0\ns_cbranch_scc1 L_kdone")
    e("L_kd:\ns_mov_b32 s58, s59\ns_mov_b32 s86, 0")
    decode("s71", "L_kd0")
    ask(0)
    e("s_mov_b32 s86, 1\ns_branch L_kd1\nL_kd0:\ns_mov_b32 s52, s57\ns_mov_b32 s4, s8\ns_mov_b32 s5, s9\nL_kd1:")
    kblk(RA, lambda i: 15, lambda i: ld(i, RA), glob=True)
    e("s_cmp_lg_u32 s86, 0\ns_cbranch_scc1 L_kd\nL_kdone:")
    allsum("v24", "v29", "max")
    e(f"s_lshl_b32 s40, s3, 2\nv_add_u32 v28, s40, v61\nds_write_b32 v28, v24 offset:16\ns_waitcnt lgkmcnt(0)\nds_read_b32 v31, v59 offset:{L_SC}\nv_add_u32 v59, 256, v59\ns_mov_b32 s64, 0")
    def pre_own(): e(f"ds_read_b32 v31, v59 offset:{L_SC}\nv_add_u32 v59, 256, v59")
    e(f"L_v:\ns_add_u32 s52, s52, s53\ns_waitcnt lgkmcnt(0)\ns_cmp_lg_u32 s64, {NS-2}\ns_cbranch_scc1 L_v2")
    e("L_vw:\nds_read_b128 v[32:35], v61\nds_read_b128 v[36:39], v61 offset:16\ns_waitcnt lgkmcnt(0)\nv_readfirstlane_b32 s40, v34\ns_cmp_lg_u32 s40, 0\ns_cbranch_scc1 L_vw1\ns_sleep 8\ns_branch L_vw\nL_vw1:")
    e(f"v_max3_f32 v35, v35, v36, v37\nv_max3_f32 v35, v35, v38, v39\nv_sub_f32 v29, v24, v35\nv_mul_f32 v29, {LOG2E}, v29\nv_exp_f32 v29, v29\nv_mov_b32 v24, v35\nv_mul_f32 v25, v25, v29")
    for r in range(4): e(f"v_mul_f32 v{20+r}, v{20+r}, v29")
    ask(4)
    e("L_v2:")
    vblk(RA, lambda i: 15, lambda i: ld(i, RA), pre_own)
    e("s_add_u32 s64, s64, 1\ns_add_u32 s65, s65, 1\nv_mov_b32 v26, s65\nds_max_u32 v27, v26\ns_cmp_lg_u32 s64, 1\ns_cbranch_scc1 L_v3")
    e("v_mov_b32 v26, 1\ns_mov_b64 exec, 1\nds_add_u32 v27, v26 offset:20\ns_mov_b64 exec, -1\nL_v3:")
    e(f"s_cmp_lt_u32 s64, {NS-1}\ns_cbranch_scc1 L_v")
    e("L_vd:")
    decode("s70", "L_vlast")
    ask(4)
    def pre_sh(): e("buffer_load_dword v31, v60, s[12:15], s59 offen sc1")
    vblk(RA, lambda i: 15, lambda i: ld(i, RA), pre_sh)
    e("s_waitcnt vmcnt(16)\ns_branch L_vd\nL_vlast:")
    if steal:
        e("s_mov_b32 s86, 0\ns_cmp_lg_u32 s87, 0\ns_cbranch_scc1 L_nosib\nds_read_b128 v[48:51], v61 offset:32\ns_waitcnt lgkmcnt(0)\nv_readfirstlane_b32 s40, v48\nv_readfirstlane_b32 s70, v50\ns_cmp_eq_u32 s40, 0\ns_cbranch_scc1 L_nosib")
        e("s_xor_b32 s74, s74, 256\ns_xor_b32 s54, s54, 0x200000\ns_xor_b32 s73, s73, 0x8000")
        ask(4)
        e("s_mov_b32 s86, 1\nL_nosib:")
    vblk(RA, lambda i: 15 - i, none, lambda: None)
    fstamp()
    allsum("v25", "v29")
    for r in range(4): e(f"ds_write_b32 v56, v{20+r} offset:{32*r}")
    e("ds_write_b64 v57, v[24:25]")
    if steal:
        e("s_cmp_eq_u32 s86, 0\ns_cbranch_scc1 L_done")
        decode("s70", "L_done")
        pre_sh()
        for i in range(16): ld(i, RA)
        e(f"s_mov_b32 s87, 1\nv_add_u32 v56, {L_OB-L_OA}, v56\nv_add_u32 v57, {L_MLB-L_ML}, v57")
        ask(4)
        e("v_mov_b32 v20, 0\nv_mov_b32 v21, 0\nv_mov_b32 v22, 0\nv_mov_b32 v23, 0\nv_mov_b32 v24, v49\nv_mov_b32 v25, 0\ns_waitcnt vmcnt(16)\ns_branch L_vd\nL_done:")
    e("v_mov_b32 v26, 1\ns_mov_b64 exec, 1\ns_waitcnt lgkmcnt(0)\nds_add_u32 v27, v26 offset:16\ns_mov_b64 exec, -1")
    e("L_sfin:")
    if stamps:
        e("s_cmp_lg_u32 s3, 0\ns_cbranch_scc1 L_end")
        fstamp_store("v62", 0)
    e("s_endpgm")
    e("L_helper:")
    S = "v63"
    fstamp(S)
    e("s_sub_u32 s3, s3, 4")
    if prio: e(f"s_setprio {prio}")
    e("s_lshl_b32 s58, s50, 1\ns_add_u32 s58, s58, s48")
    e("v_lshlrev_b32 v26, 13, v2\nv_lshl_add_u32 v26, v3, 4, v26")
    e(f"v_mov_b32 v20, 0\nv_mov_b32 v21, 0\nv_mov_b32 v22, 0\nv_mov_b32 v23, 0\nv_mov_b32 v28, {L_PR}\nds_write_b128 v28, v[20:23]\nds_write_b128 v28, v[20:23] offset:16")
    e("s_lshl_b32 s40, s49, 8\ns_lshl_b32 s41, s58, 19\ns_add_u32 s40, s40, s41\ns_lshl_b32 s41, s3, 17\ns_add_u32 s40, s40, s41")
    e("s_lshl_b32 s41, s3, 10\ns_waitcnt lgkmcnt(0)")
    if dbgt:
        e("s_cmp_lg_u32 s3, 0\ns_cbranch_scc1 L_d0"); dstamp(2, True); e("L_d0:")
    a.srd(16, 20, 4096)
    e("buffer_load_dwordx4 v[48:51], v1, s[16:19], s41 offen")
    a.srd(16, 24, 512 * 4096 * 2)
    if abl & 8: e("s_mov_b32 s18, 0")
    if kfirst: e("s_barrier")
    for t in range(4):
        e(f"buffer_load_dwordx4 v[{64+4*t}:{67+4*t}], v26, s[16:19], s40 offen {wqf}\ns_add_u32 s40, s40, 0x8000")
    if not kfirst: e("s_barrier")
    a.srd(12, 46, WSZ)
    e(f"s_lshl_b32 s42, s49, 8\ns_add_u32 s76, s42, {WS_EP}\ns_add_u32 s42, s46, s76\ns_addc_u32 s43, s47, 0\ns_load_dwordx2 s[56:57], s[42:43], 0 glc\ns_xor_b32 s42, s42, 256\ns_load_dwordx2 s[82:83], s[42:43], 0 glc")
    e(f"s_lshl_b32 s42, s51, 8\ns_add_u32 s42, s42, {WS_TK}\ns_add_u32 s42, s46, s42\ns_addc_u32 s43, s47, 0\ns_mov_b32 s72, 0\ns_mov_b32 s73, 0\ns_cmp_lg_u32 s3, s50\ns_cbranch_scc1 L_nobase\ns_load_dwordx2 s[72:73], s[42:43], 0 glc\nL_nobase:")
    masks()
    e(f"s_lshl_b32 s67, s3, 12\ns_add_u32 s67, s67, {L_TR}\nv_add_u32 v24, s67, v1\nv_mov_b32 v28, {L_PR}")
    e("s_mov_b32 s62, 0x01000100\ns_mov_b32 s63, 0x03020302")
    e("s_lshl_b32 s40, s3, 11\nv_lshlrev_b32 v58, 1, v1\nv_add_u32 v58, s40, v58")
    e("s_lshl_b32 s41, s58, 8\ns_add_u32 s40, s40, s41\nv_lshlrev_b32 v59, 4, v3\nv_lshl_add_u32 v59, v2, 2, v59\nv_add_u32 v59, s40, v59")
    e("s_waitcnt vmcnt(4)")
    fstamp(S)
    for i in range(4):
        e(f"v_lshlrev_b32 v{40+2*i}, 16, v{48+i}\nv_and_b32 v{41+2*i}, 0xffff0000, v{48+i}")
    ln8(40, 52)
    for i in (3, 2, 1, 0): e(f"v_perm_b32 v{41+2*i}, v{40+i}, v{40+i}, s63\nv_perm_b32 v{40+2*i}, v{40+i}, v{40+i}, s62")
    e(f"ds_write_b128 v58, v[40:43] offset:{L_XD}\nds_write_b128 v58, v[44:47] offset:{L_XD+16}")
    for t in range(4): e(f"s_waitcnt vmcnt({3-t})\nds_write_b128 v24, v[{64+4*t}:{67+4*t}] offset:{1024*t}")
    fstamp(S)
    gsync(12)
    e(f"ds_read_b32 v53, v59 offset:{L_XD}")
    for t in range(16): e(f"ds_read_b128 v[{64+4*t}:{67+4*t}], v1 offset:{L_TR+1024*t}")
    e(f"s_cmp_lg_u32 s3, s50\ns_cbranch_scc1 L_nobase2\nv_mov_b32 v44, s72\nv_mov_b32 v45, s73\nv_mov_b32 v46, 0\nv_mov_b32 v47, 0\nv_mov_b32 v54, {L_PX}\nds_write_b128 v54, v[44:47]\nds_write_b32 v54, v46 offset:32\ns_waitcnt lgkmcnt(0)\nL_nobase2:")
    e("s_add_u32 s56, s56, 1\ns_addc_u32 s57, s57, 0\nv_mov_b32 v42, s56\nv_mov_b32 v43, s57\nv_mov_b32 v46, s56\nv_mov_b32 v47, s57")
    e("s_lshl_b32 s40, s49, 2\ns_add_u32 s40, s40, s3\ns_lshl_b32 s40, s40, 3\ns_add_u32 s40, s40, s58\ns_lshl_b32 s40, s40, 10")
    e(f"s_add_u32 s40, s40, {WS_Q}\nv_lshlrev_b32 v52, 8, v2\nv_lshl_add_u32 v52, v3, 4, v52\ns_waitcnt lgkmcnt(15)")
    for t in range(16):
        bb = 12 + 4 * (t & 1)
        for r in range(4):
            e(f"v_and_b32_dpp v{bb+r}, v53, v{8+r} row_newbcast:{t} row_mask:0xf bank_mask:0xf")
        e(f"s_waitcnt lgkmcnt({15-t})\ns_nop 0")
        e(f"v_mfma_f32_16x16x32_bf16 v[20:23], v[{64+4*t}:{67+4*t}], v[{bb}:{bb+3}], v[20:23]")
    e("s_lshl_b32 s61, s49, 2\ns_add_u32 s61, s61, s50\ns_lshl_b32 s61, s61, 3\ns_lshl_b32 s42, s3, 1\ns_add_u32 s61, s61, s42\ns_lshl_b32 s61, s61, 10")
    e(f"s_add_u32 s61, s61, {WS_Q}\ns_mov_b32 exec_lo, 0x00ff00ff\ns_mov_b32 exec_hi, 0x00ff00ff")
    e("v_mov_b32 v40, v20\nv_mov_b32 v41, v21\nv_mov_b32 v44, v22\nv_mov_b32 v45, v23")
    e("buffer_store_dwordx4 v[40:43], v52, s[12:15], s40 offen sc1\nbuffer_store_dwordx4 v[44:47], v52, s[12:15], s40 offen offset:128 sc1")
    e("s_mov_b64 exec, -1")
    fstamp(S)
    a.srd(16, 26, 4096 * 512 * 2)
    if abl & 1: e("s_mov_b32 s18, 0")
    if abl & 2: e("s_mov_b32 s14, 0")
    e("v_bfe_u32 v27, v0, 3, 3\nv_lshlrev_b32 v27, 10, v27\nv_and_b32 v28, 7, v0\nv_lshl_add_u32 v27, v28, 4, v27")
    e("s_lshl_b32 s40, s49, 17\ns_lshl_b32 s41, s58, 7\ns_add_u32 s40, s40, s41\ns_lshl_b32 s41, s3, 15\ns_add_u32 s40, s40, s41")
    for t in range(4): e(f"buffer_load_dwordx4 v[{96+4*t}:{99+4*t}], v27, s[16:19], s40 offen {wf}\ns_add_u32 s40, s40, 8192")
    e("v_mov_b32 v28, -1\nv_mov_b32 v29, -1\nv_mov_b32 v30, -1\nv_mov_b32 v31, -1\nv_and_b32 v27, 255, v0")
    e(f"s_lshl_b32 s40, s51, 2\ns_add_u32 s40, s40, s48\ns_lshl_b32 s54, s40, 10\ns_add_u32 s54, s54, {WS_O}\ns_xor_b32 s85, s54, 0x1800\nv_lshlrev_b32 v32, 2, v27")
    e("buffer_store_dword v28, v32, s[12:15], s54 offen sc1\nbuffer_store_dword v28, v32, s[12:15], s85 offen sc1")
    e("v_lshlrev_b32 v33, 16, v2\nv_bfe_u32 v34, v0, 3, 1\nv_lshl_add_u32 v33, v34, 10, v33\nv_and_b32 v34, 7, v0\nv_lshl_add_u32 v33, v34, 2, v33")
    e(f"s_lshl_b32 s60, s58, 13\ns_lshl_b32 s40, s3, 11\ns_add_u32 s60, s60, s40\ns_lshl_b32 s40, s49, 5\ns_add_u32 s60, s60, s40\ns_add_u32 s60, s60, {WS_Y}")
    e("buffer_store_dword v28, v33, s[12:15], s60 offen sc1")
    e("s_lshr_b32 s79, s2, 3\ns_sub_u32 s79, s79, 16\ns_lshl_b32 s79, s79, 2\ns_add_u32 s79, s79, s77\ns_lshl_b32 s79, s79, 2\ns_add_u32 s79, s79, s3\ns_cmp_eq_u32 s48, 1\ns_cselect_b32 s79, s79, 0x10000")
    e("v_bfe_u32 v36, v0, 2, 1\nv_bfe_u32 v37, v0, 3, 1\nv_lshl_add_u32 v36, v37, 1, v36\nv_bfe_u32 v37, v0, 5, 1\nv_lshl_add_u32 v36, v37, 2, v36")
    e("v_and_b32 v37, 3, v0\nv_bfe_u32 v38, v0, 4, 1\nv_lshl_add_u32 v37, v38, 2, v37\nv_lshlrev_b32 v37, 13, v37\nv_lshl_add_u32 v37, v36, 2, v37")
    e(f"s_lshl_b32 s55, s79, 5\ns_add_u32 s55, s55, {WS_H}\ns_cmp_lt_u32 s79, 256\ns_cselect_b32 s55, s55, 0x40000000\nbuffer_store_dword v28, v37, s[12:15], s55 offen sc1")
    e(f"s_lshl_b32 s59, s2, 13\ns_add_u32 s59, s59, {WS_D}\ns_cmp_lt_u32 s2, {NG}\ns_cselect_b32 s59, s59, 0x40000000\ns_add_u32 s40, s59, 4096\nv_lshlrev_b32 v27, 4, v27")
    e("buffer_store_dwordx4 v[28:31], v27, s[12:15], s59 offen sc1\nbuffer_store_dwordx4 v[28:31], v27, s[12:15], s40 offen sc1")
    a.srd(16, 20, 4096)
    e("v_lshlrev_b32 v38, 1, v36\ns_lshl_b32 s40, s79, 4\nbuffer_load_ushort v39, v38, s[16:19], s40 offen")
    e("v_and_b32 v52, 7, v0\nv_and_b32 v53, 63, v0\nv_lshlrev_b32 v53, 1, v53\nv_sub_u32 v52, v53, v52\nv_lshlrev_b32 v52, 2, v52\ns_lshl_b32 s40, s3, 9\nv_add_u32 v52, s40, v52")
    if abl & 2: e("s_mov_b32 s14, 0x40000000")
    if abl & 4: e("s_waitcnt vmcnt(0)\ns_branch L_pq_ok")
    e("s_mov_b32 s66, 0\nL_pq:")
    e("buffer_load_dwordx4 v[64:67], v1, s[12:15], s61 offen sc1\nbuffer_load_dwordx4 v[68:71], v1, s[12:15], s61 offen offset:1024 sc1\ns_waitcnt vmcnt(0)")
    e("v_xor_b32 v72, s56, v66\nv_xor_b32 v73, s57, v67\nv_xor_b32 v74, s56, v70\nv_xor_b32 v75, s57, v71\nv_or3_b32 v72, v72, v73, v74\nv_or_b32 v72, v72, v75")
    e(f"v_cmp_ne_u32 vcc, 0, v72\ns_cbranch_vccz L_pq_ok\ns_mov_b64 exec, vcc\ns_add_u32 s66, s66, 1\ns_cmp_gt_u32 s66, 400000\ns_cbranch_scc1 L_pq_ok\ns_sleep {qsleep}\ns_branch L_pq\nL_pq_ok:\ns_mov_b64 exec, -1")
    e(f"v_add_f32 v64, v64, v68\nv_add_f32 v65, v65, v69\nds_write_b32 v52, v64 offset:{L_QP}\nds_write_b32 v52, v65 offset:{L_QP+32}\ns_waitcnt lgkmcnt(0)")
    fstamp(S)
    e("s_barrier")
    if hexit == 1: e("s_endpgm")
    e(f"v_lshlrev_b32 v39, 16, v39\nv_mov_b32 v28, {L_PR}\nv_mov_b32 v29, 1\ns_mov_b64 exec, 1\nds_add_rtn_u32 v29, v28, v29 offset:4\ns_waitcnt lgkmcnt(0)\ns_mov_b64 exec, -1\nv_readfirstlane_b32 s70, v29")
    e(f"v_bfe_u32 v25, v0, 2, 2\nv_lshlrev_b32 v25, 7, v25\nv_lshl_add_u32 v25, v2, 10, v25\nv_and_b32 v28, 3, v0\nv_lshl_add_u32 v25, v28, 3, v25\ns_lshl_b32 s41, s3, 5\ns_add_u32 s41, s41, {L_TR}\nv_add_u32 v25, s41, v25")
    for t in range(4): e(f"ds_write_b128 v24, v[{96+4*t}:{99+4*t}] offset:{1024*t}")
    gsync(12)
    for ks in range(4):
        for hh in range(2):
            e(f"ds_read_b64_tr_b16 v[{112+4*ks+2*hh}:{113+4*ks+2*hh}], v25 offset:{4096*ks+512*hh}")
    def wait_progress(lbl, sreg):
        e(f"v_mov_b32 v28, {L_PR}\n{lbl}:\nds_read_b32 v29, v28\ns_waitcnt lgkmcnt(0)\nv_readfirstlane_b32 s40, v29\ns_cmp_ge_u32 s40, {sreg}\ns_cbranch_scc1 {lbl}_ok\ns_sleep 32\ns_branch {lbl}\n{lbl}_ok:")
    def glu_loads():
        a.srd(16, 32, 512 * 1792 * 2)
        e("v_lshlrev_b32 v26, 13, v2\nv_lshl_add_u32 v26, v3, 3, v26\ns_lshl_b32 s40, s78, 15\ns_lshl_b32 s41, s3, 8\ns_add_u32 s40, s40, s41")
        for ee in range(8):
            if ee == 4: e("s_add_u32 s40, s40, 4096")
            e(f"buffer_load_dwordx2 v[{64+4*ee}:{65+4*ee}], v26, s[16:19], s40 offen offset:{(ee%4)*1024} {wf}")
            e(f"buffer_load_dwordx2 v[{66+4*ee}:{67+4*ee}], v26, s[16:19], s40 offen offset:{(ee%4)*1024+128} {wf}")
        e("s_cmp_lt_u32 s3, 2\ns_cselect_b32 s42, s28, s30\ns_cselect_b32 s43, s29, s31")
        a.srd(16, 42, 512 * 1792 * 2)
        e("v_bfe_u32 v26, v0, 2, 4\nv_mul_u32_u24 v26, 3584, v26\nv_and_b32 v28, 3, v0\nv_lshl_add_u32 v26, v28, 4, v26")
        e(f"s_lshl_b32 s40, s78, 6\ns_and_b32 s41, s3, 1\ns_mul_i32 s41, s41, {256*3584}\ns_add_u32 s40, s40, s41")
        for t in range(16): e(f"buffer_load_dwordx4 v[{128+4*t}:{131+4*t}], v26, s[16:19], s40 offen {wf}\ns_add_u32 s40, s40, {16*3584}")
    e(f"s_lshr_b32 s78, s51, 1\ns_and_b32 s40, s51, 1\ns_or_b32 s40, s40, s48\ns_cmp_eq_u32 s40, 0\ns_cselect_b32 s78, s78, 255\ns_cmp_ge_u32 s78, {NG}\ns_cbranch_scc1 L_nogw")
    glu_loads()
    e("s_mov_b32 s80, 0x05040100\ns_mov_b32 s81, 0x07060302")
    e(f"s_lshl_b32 s41, s3, 14\ns_add_u32 s41, s41, {L_GU}\nv_add_u32 v24, s41, v1")
    e(f"v_bfe_u32 v25, v0, 2, 2\nv_lshlrev_b32 v25, 6, v25\nv_lshl_add_u32 v25, v2, 9, v25\nv_and_b32 v28, 3, v0\nv_lshl_add_u32 v25, v28, 3, v25")
    e(f"s_lshr_b32 s41, s3, 1\ns_lshl_b32 s41, s41, 15\ns_and_b32 s42, s3, 1\ns_lshl_b32 s42, s42, 5\ns_add_u32 s41, s41, s42\ns_add_u32 s41, s41, {L_GU}\nv_add_u32 v25, s41, v25")
    e("s_waitcnt vmcnt(16)")
    for j in range(8):
        for q in range(4):
            e(f"v_perm_b32 v{192+4*j+q}, v{64+4*(2*q+1)+(j>>1)}, v{64+4*(2*q)+(j>>1)}, {'s80' if j%2==0 else 's81'}")
    for t in range(16): e(f"s_waitcnt vmcnt({15-t})\nds_write_b128 v24, v[{128+4*t}:{131+4*t}] offset:{1024*t}")
    gsync(12)
    for ks in range(16):
        for hh in range(2):
            e(f"ds_read_b64_tr_b16 v[{128+4*ks+2*hh}:{129+4*ks+2*hh}], v25 offset:{2048*ks+256*hh}")
    e(f"s_and_b32 s40, s78, 7\ns_lshl_b32 s40, s40, 13\ns_lshl_b32 s41, s3, 11\ns_add_u32 s73, s40, s41\ns_add_u32 s73, s73, {WS_H}\nv_lshlrev_b32 v46, 1, v1")
    e(f"s_mul_i32 s40, s3, 1040\nv_add_u32 v47, s40, v1\nv_and_b32 v43, 3, v0\nv_mul_u32_u24 v43, 1040, v43\nv_lshl_add_u32 v43, v2, 4, v43")
    e("v_lshlrev_b32 v40, 2, v3\ns_lshr_b32 s40, s3, 1\ns_lshl_b32 s40, s40, 9\ns_and_b32 s41, s3, 1\ns_lshl_b32 s41, s41, 6\ns_add_u32 s40, s40, s41\nv_add_u32 v40, s40, v40")
    e("v_bfe_u32 v41, v0, 2, 2\nv_lshlrev_b32 v41, 7, v41\nv_lshl_add_u32 v41, v2, 5, v41\nv_and_b32 v61, 3, v0\nv_lshl_add_u32 v41, v61, 3, v41")
    e(f"v_lshlrev_b32 v42, 11, v2\nv_lshl_add_u32 v42, v3, 4, v42\ns_lshl_b32 s59, s78, 13\ns_lshl_b32 s40, s3, 9\ns_add_u32 s59, s59, s40\ns_add_u32 s59, s59, {WS_D}")
    e("L_nogw:")
    e("s_cmp_lg_u32 s70, 3\ns_cbranch_scc1 L_noinit\ns_bfe_u32 s41, s2, 0x20003\ns_add_u32 s41, s41, 1")
    wait_progress("L_iw", "s41")
    e("s_mov_b32 s64, 1\ns_atomic_add s64, s[44:45], 0\nL_noinit:")
    e("v_lshlrev_b32 v34, 10, v2\nv_lshl_add_u32 v35, v3, 5, v34")
    e(f"s_lshl_b32 s40, s49, 12\ns_lshl_b32 s41, s3, 17\ns_add_u32 s88, s40, s41\ns_add_u32 s88, s88, {WS_O}")
    e("v_lshlrev_b32 v4, 4, v3\nv_lshl_add_u32 v4, v2, 2, v4\nv_bfe_u32 v5, v0, 4, 1\nv_bfe_u32 v6, v0, 5, 1\nv_lshlrev_b32 v4, 4, v3\nv_lshl_add_u32 v4, v6, 3, v4\nv_lshl_add_u32 v4, v5, 2, v4\ns_mul_i32 s40, s3, 272\nv_add_u32 v4, s40, v4")
    e("v_bfe_u32 v5, v0, 2, 2\nv_mul_u32_u24 v5, 272, v5\nv_lshl_add_u32 v5, v2, 4, v5")
    e("s_lshl_b32 s40, s3, 5\nv_lshlrev_b32 v6, 2, v36\nv_add_u32 v6, s40, v6\nv_and_b32 v7, 7, v0\nv_lshlrev_b32 v7, 4, v7\nv_bfe_u32 v37, v0, 3, 3\nv_lshl_add_u32 v37, v37, 13, v7")
    e(f"s_lshl_b32 s62, s79, 10\ns_add_u32 s62, s62, {WS_Y}\nv_and_b32 v44, 31, v0\nv_lshlrev_b32 v44, 5, v44\nv_bfe_u32 v45, v0, 5, 1\nv_lshl_add_u32 v44, v45, 4, v44")
    e(f"v_lshlrev_b32 v45, 9, v1\ns_lshl_b32 s63, s79, 5\ns_add_u32 s63, s63, {WS_D}\ns_lshl_b32 s67, s79, 4")
    e(f"s_cmp_lg_u32 s3, 1\ns_cbranch_scc1 L_nokd\nv_mov_b32 v28, {L_PR}\nL_kw:\nds_read_b32 v29, v28 offset:20\ns_waitcnt lgkmcnt(0)\nv_readfirstlane_b32 s40, v29\ns_cmp_ge_u32 s40, 4\ns_cbranch_scc1 L_kw1\ns_sleep 16\ns_branch L_kw\nL_kw1:")
    dstamp(3); dstamp(6, True)
    e(f"v_mov_b32 v28, {L_PX}\nds_read_b128 v[48:51], v28 offset:16\nds_read_b32 v52, v28 offset:4\ns_lshl_b32 s40, s51, 1\ns_add_u32 s40, s40, s48\ns_lshl_b32 s40, s40, 6\ns_add_u32 s40, s40, {WS_KD}\nv_mov_b32 v29, 0\ns_waitcnt lgkmcnt(0)")
    e("v_max_f32 v48, v48, v49\nv_max3_f32 v48, v48, v50, v51\nv_mov_b32 v49, v52\nv_mov_b32 v50, s56\nv_mov_b32 v51, s57\ns_mov_b64 exec, 1\nbuffer_store_dwordx4 v[48:51], v29, s[12:15], s40 offen sc1\ns_xor_b32 s40, s40, 64\ns_mov_b32 s66, 0")
    e("L_kp:\nbuffer_load_dwordx4 v[52:55], v29, s[12:15], s40 offen sc1\ns_waitcnt vmcnt(0)\nv_xor_b32 v54, s56, v54\nv_xor_b32 v55, s57, v55\nv_or_b32 v54, v54, v55\nv_cmp_ne_u32 vcc, 0, v54\ns_cbranch_vccz L_kp1\ns_add_u32 s66, s66, 1\ns_cmp_gt_u32 s66, 400000\ns_cbranch_scc1 L_kp1\ns_sleep 8\ns_branch L_kp")
    e("L_kp1:\nv_mov_b32 v53, v52\nv_mov_b32 v52, 1\nds_write_b64 v28, v[52:53] offset:8\ns_mov_b64 exec, -1\nL_nokd:")
    if steal:
        e("s_cmp_lg_u32 s3, 2\ns_cbranch_scc1 L_nosk")
        wait_progress("L_sw", NS + 4)
        e(f"s_add_u32 s82, s82, 1\ns_addc_u32 s83, s83, 0\ns_xor_b32 s40, s51, 1\ns_lshl_b32 s41, s40, 7\ns_add_u32 s41, s41, {WS_KD}\nv_mov_b32 v29, 0\nv_mov_b32 v28, {L_PX}\ns_mov_b64 exec, 1\ns_mov_b32 s66, 0")
        e("L_sp:\nbuffer_load_dwordx4 v[48:51], v29, s[12:15], s41 offen sc1\nbuffer_load_dwordx4 v[52:55], v29, s[12:15], s41 offen offset:64 sc1\ns_waitcnt vmcnt(0)")
        e("v_xor_b32 v50, s82, v50\nv_xor_b32 v51, s83, v51\nv_xor_b32 v54, s82, v54\nv_xor_b32 v55, s83, v55\nv_or3_b32 v50, v50, v51, v54\nv_or_b32 v50, v50, v55\nv_cmp_ne_u32 vcc, 0, v50\ns_cbranch_vccz L_sp1\ns_add_u32 s66, s66, 1\ns_cmp_gt_u32 s66, 64\ns_cbranch_scc1 L_sp2\ns_sleep 32\ns_branch L_sp")
        e("L_sp1:\nv_max_f32 v50, v48, v52\nv_mov_b32 v48, 1\nds_write_b32 v28, v50 offset:36\nds_write_b32 v28, v49 offset:40\ns_waitcnt lgkmcnt(0)\nds_write_b32 v28, v48 offset:32\nL_sp2:\ns_mov_b64 exec, -1\nL_nosk:")
    wait_progress("L_w2", NS + 3)
    if cpf and cpf2:
        e("v_and_b32 v28, 255, v0\nv_lshlrev_b32 v28, 4, v28\nv_add_u32 v29, (L_lastF-L_pc)&0xffffff80, v28\nv_add_u32 v28, (L_wf-L_pc)&0xffffff80, v28\nv_min_u32 v28, (L_end-L_pc-16)&0xfffffff0, v28")
        e("global_load_dword v61, v28, s[90:91]\nglobal_load_dword v61, v29, s[90:91]")
    e("v_lshrrev_b32 v28, 1, v1\nv_mov_b32 v29, 0")
    a.srd(16, 44, 256)
    e("s_mov_b32 s66, 0\nL_initchk:\nbuffer_load_dword v31, v29, s[16:19], 0 offen sc1\ns_waitcnt vmcnt(0)\nv_readfirstlane_b32 s64, v31\ns_cmp_ge_u32 s64, 256\ns_cbranch_scc1 L_initok\ns_add_u32 s66, s66, 1\ns_cmp_gt_u32 s66, 200000\ns_cbranch_scc1 L_initok\ns_sleep 8\ns_branch L_initchk\nL_initok:")
    if hexit == 2: e("s_endpgm")
    e(f"s_setprio 0\nv_mov_b32 v27, {L_PR}\nL_wf:\nds_read_b32 v30, v27 offset:16\ns_waitcnt lgkmcnt(0)\nv_readfirstlane_b32 s40, v30\ns_cmp_ge_u32 s40, 4\ns_cbranch_scc1 L_wf_ok\ns_sleep {wsleep}\ns_branch L_wf\nL_wf_ok:\ns_setprio {prio}")
    e(f"v_lshrrev_b32 v28, 1, v1\ns_cmp_eq_u32 s3, 0\ns_cselect_b32 s54, s54, s85\ns_mov_b32 s40, {L_OB}\ns_cselect_b32 s40, {L_OA}, s40\nv_add_u32 v30, s40, v28\ns_mov_b32 s40, {L_MLB}\ns_cselect_b32 s40, {L_ML}, s40\nv_mov_b32 v29, s40")
    a.srd(16, 34, 4096)
    fstamp(S)
    if dbgt:
        e("s_cmp_lg_u32 s3, 3\ns_cbranch_scc1 L_d1"); dstamp(4); dstamp(7, True); e("L_d1:")
    e("s_cmp_ge_u32 s3, 2\ns_cbranch_scc1 L_st2")
    e("ds_read_b128 v[48:51], v29\nds_read_b128 v[52:55], v29 offset:16")
    for w in range(4): e(f"ds_read_b64 v[{64+2*w}:{65+2*w}], v30 offset:{1024*w}")
    e("s_waitcnt lgkmcnt(4)\nv_max_f32 v56, v48, v50\nv_max3_f32 v56, v56, v52, v54")
    for w in range(4): e(f"v_sub_f32 v{58+w}, v{48+2*w}, v56")
    for w in range(4): e(f"v_mul_f32 v{58+w}, {LOG2E}, v{58+w}")
    for w in range(4): e(f"v_exp_f32 v{58+w}, v{58+w}")
    e("s_waitcnt lgkmcnt(0)\nv_mul_f32 v57, v58, v49\nv_mul_f32 v64, v64, v58\nv_mul_f32 v65, v65, v58")
    for w in range(1, 4): e(f"v_fmac_f32 v57, v{58+w}, v{49+2*w}\nv_fmac_f32 v64, v{64+2*w}, v{58+w}\nv_fmac_f32 v65, v{65+2*w}, v{58+w}")
    e("v_min_u32 v64, -2, v64\nv_min_u32 v65, -2, v65\nv_min_u32 v56, -2, v56\nv_min_u32 v57, -2, v57")
    e("buffer_store_dwordx2 v[64:65], v28, s[12:15], s54 offen sc1\ns_mov_b64 exec, 1\nbuffer_store_dwordx2 v[56:57], v28, s[12:15], s54 offen offset:512 sc1\ns_mov_b64 exec, -1")
    fstamp(S)
    e("L_st2:")
    poll("L_p1", ["buffer_load_dwordx4 v[64:67], v35, s[12:15], s88 offen sc1", "buffer_load_dwordx4 v[68:71], v35, s[12:15], s88 offen offset:16 sc1",
                  "buffer_load_dwordx2 v[56:57], v34, s[12:15], s88 offen offset:512 sc1"], [f"v{i}" for i in range(64, 72)] + ["v56", "v57"], slp=lsleep)
    e("v_mov_b32 v58, v56\nv_mov_b32 v59, v56\ns_nop 1\nv_permlane16_swap_b32 v58, v59\ns_nop 0\nv_max_f32 v58, v58, v59\nv_mov_b32 v59, v58\ns_nop 1\nv_permlane32_swap_b32 v58, v59\ns_nop 0\nv_max_f32 v58, v58, v59")
    e(f"v_sub_f32 v56, v56, v58\nv_mul_f32 v56, {LOG2E}, v56\nv_exp_f32 v56, v56\ns_nop 0\nv_mul_f32 v57, v57, v56")
    for k in range(8): e(f"v_mul_f32 v{64+k}, v{64+k}, v56")
    e("v_mov_b32 v59, v57\ns_nop 0")
    for k in range(4): e(f"v_permlane32_swap_b32 v{64+k}, v{68+k}")
    e("v_permlane16_swap_b32 v57, v59")
    for k in range(4): e(f"v_add_f32 v{64+k}, v{64+k}, v{68+k}")
    e("v_add_f32 v57, v57, v59\nv_mov_b32 v59, v57\nv_permlane16_swap_b32 v64, v66\nv_permlane16_swap_b32 v65, v67\nv_permlane32_swap_b32 v57, v59\ns_nop 0")
    e("v_add_f32 v57, v57, v59\nv_rcp_f32 v57, v57\nv_add_f32 v64, v64, v66\nv_add_f32 v65, v65, v67\nv_mul_f32 v64, v64, v57\nv_mul_f32 v65, v65, v57")
    e(f"v_cvt_pk_bf16_f32 v64, v64, v65\nds_write_b32 v4, v64 offset:{L_ON}\ns_waitcnt lgkmcnt(0)\ns_barrier")
    for ks in range(4): e(f"ds_read_b128 v[{80+4*ks}:{83+4*ks}], v5 offset:{L_ON+64*ks}")
    for ks in range(4):
        e(f"s_waitcnt lgkmcnt({3-ks})")
        e(f"v_mfma_f32_16x16x32_bf16 v[20:23], v[{80+4*ks}:{83+4*ks}], v[{112+4*ks}:{115+4*ks}], {'0' if ks == 0 else 'v[20:23]'}")
    e("s_nop 7\nv_min_u32 v20, -2, v20\nbuffer_store_dword v20, v33, s[12:15], s60 offen sc1")
    fstamp(S)
    e("s_cmp_ge_u32 s79, 256\ns_cbranch_scc1 L_glu")
    poll("L_p3", ["buffer_load_dwordx4 v[48:51], v44, s[12:15], s62 offen sc1"], [f"v{i}" for i in range(48, 52)], slp=s3sleep)
    e("s_nop 3")
    red4()
    a.rbf("v48"); e("v_add_f32 v48, v48, v39"); a.rbf("v48")
    e(f"v_min_u32 v39, -2, v48\nds_write_b32 v6, v39 offset:{L_HG}\ns_waitcnt lgkmcnt(0)\ns_barrier\ns_cmp_lg_u32 s3, 0\ns_cbranch_scc1 L_nohp")
    e(f"ds_read_b128 v[48:51], v7 offset:{L_HG}\ns_waitcnt lgkmcnt(0)\nbuffer_store_dwordx4 v[48:51], v37, s[12:15], s55 offen sc1\nL_nohp:")
    fstamp(S)
    e(f"L_glu:\ns_cmp_ge_u32 s78, {NG}\ns_cbranch_scc1 L_s5")
    poll("L_p4", ["buffer_load_dwordx4 v[48:51], v46, s[12:15], s73 offen sc1", "buffer_load_dwordx4 v[52:55], v46, s[12:15], s73 offen offset:16 sc1"], [f"v{i}" for i in range(48, 56)], slp=hsleep)
    fstamp(S)
    ln8(48, 56)
    e(f"ds_write_b128 v47, v[48:51] offset:{L_HN}")
    e("s_mov_b64 exec, -1\ns_waitcnt lgkmcnt(0)\ns_barrier")
    if gst: fstamp(S)
    for ks in range(12): e(f"ds_read_b128 v[{64+4*ks}:{67+4*ks}], v43 offset:{L_HN+64*ks}")
    for ks in range(12, 16): e(f"ds_read_b128 v[{224+4*(ks-12)}:{227+4*(ks-12)}], v43 offset:{L_HN+64*ks}")
    for ks in range(16):
        e(f"s_waitcnt lgkmcnt({15-ks})")
        c = "0" if ks < 2 else f"v[{20+4*(ks&1)}:{23+4*(ks&1)}]"
        ar = 64 + 4 * ks if ks < 12 else 224 + 4 * (ks - 12)
        e(f"v_mfma_f32_16x16x32_bf16 v[{20+4*(ks&1)}:{23+4*(ks&1)}], v[{ar}:{ar+3}], v[{128+4*ks}:{131+4*ks}], {c}")
    e("s_mov_b64 exec, 0xffff\ns_nop 6")
    for r in range(4): e(f"v_add_f32 v{20+r}, v{20+r}, v{24+r}\nds_write_b32 v40, v{20+r} offset:{L_AC+128*r}")
    e("s_mov_b64 exec, -1\ns_waitcnt lgkmcnt(0)\ns_barrier")
    if gst: fstamp(S)
    e(f"ds_read_b64 v[20:21], v41 offset:{L_AC}\nds_read_b64 v[22:23], v41 offset:{L_AC+512}\ns_waitcnt lgkmcnt(1)")
    e("v_cvt_pk_bf16_f32 v20, v20, v21\nv_and_b32 v21, 0xffff0000, v20\nv_lshlrev_b32 v20, 16, v20\nv_mul_f32 v21, 0xbfb8aa3b, v21\nv_mul_f32 v20, 0xbfb8aa3b, v20\nv_exp_f32 v21, v21\nv_exp_f32 v20, v20")
    e("s_waitcnt lgkmcnt(0)\nv_cvt_pk_bf16_f32 v22, v22, v23\nv_add_f32 v21, 1.0, v21\nv_add_f32 v20, 1.0, v20\nv_rcp_f32 v21, v21\nv_rcp_f32 v20, v20\nv_and_b32 v23, 0xffff0000, v22\nv_lshlrev_b32 v22, 16, v22")
    e("v_cvt_pk_bf16_f32 v20, v20, v21\nv_and_b32 v21, 0xffff0000, v20\nv_lshlrev_b32 v20, 16, v20\nv_mul_f32 v21, v21, v23\nv_mul_f32 v20, v20, v22\nv_cvt_pk_bf16_f32 v36, v20, v21\ns_nop 1")
    for q in range(4): e(f"v_mov_b32_dpp v{32+q}, v36 quad_perm:[{q},{q},{q},{q}] row_mask:0xf bank_mask:0xf")
    e("s_nop 1")
    for j in range(8):
        e(f"v_mfma_f32_16x16x32_bf16 v[{64+4*j}:{67+4*j}], v[32:35], v[{192+4*j}:{195+4*j}], 0")
    e("s_nop 0")
    for j in range(4): e(f"v_min_u32 v{96+j}, -2, v{64+4*j}")
    e("s_nop 0\nbuffer_store_dwordx4 v[96:99], v42, s[12:15], s59 offen sc1")
    for j in range(4, 8): e(f"v_min_u32 v{96+j}, -2, v{64+4*j}")
    e("buffer_store_dwordx4 v[100:103], v42, s[12:15], s59 offen offset:256 sc1")
    fstamp(S)
    e("L_s5:\ns_cmp_ge_u32 s79, 256\ns_cbranch_scc1 L_fin")
    for j in range(8): e(f"v_mov_b32 v{48+j}, 0")
    e(f"s_mov_b32 exec_lo, -1\ns_mov_b32 exec_hi, {(1 << (NG - 32)) - 1:#x}")
    poll("L_p6", ["buffer_load_dwordx4 v[48:51], v45, s[12:15], s63 offen sc1", "buffer_load_dwordx4 v[52:55], v45, s[12:15], s63 offen offset:16 sc1"], [f"v{i}" for i in range(48, 56)], slp=s5sleep)
    e("s_nop 3")
    for i in range(4): e(f"v_permlane32_swap_b32 v{48+i}, v{52+i}")
    e("s_nop 1")
    for i in range(4): e(f"v_add_f32 v{48+i}, v{48+i}, v{52+i}")
    e("s_nop 0")
    red4()
    a.rbf("v48"); e("v_add_f32 v48, v48, v39\nv_cvt_pk_bf16_f32 v48, v48, v48\ns_mov_b32 exec_lo, 0x1111\ns_mov_b32 exec_hi, 0x1111")
    e("buffer_store_short v48, v38, s[16:19], s67 offen")
    dstamp(5)
    fstamp(S)
    e("L_fin:")
    e("s_cmp_lg_u32 s3, 0\ns_cbranch_scc1 L_end")
    e("s_cmp_lg_u32 s58, 0\ns_cbranch_scc1 L_noep\ns_mov_b64 exec, 1\nv_mov_b32 v48, s56\nv_mov_b32 v49, s57\nv_mov_b32 v50, 0\nbuffer_store_dwordx2 v[48:49], v50, s[12:15], s76 offen sc1\nL_noep:")
    fstamp_store(S, 65536)
    e("L_end:\ns_endpgm")
    e('.section .rodata,"a"\n.p2align 6')
    a.descriptor(KN, 256, 96, accum=256)
    return a.text()

if __name__ == "__main__":
    import os, json
    os.makedirs("v15", exist_ok=True)
    names = []
    for spec in sys.argv[1:]:
        kw = {}
        if spec != "base":
            for p in spec.split(","):
                k, v = p.split("=")
                kw[k] = v.replace("+", " ") if k in ("wf", "wqf", "kf", "vf") else int(v)
        fn = "v15/v15_" + spec.replace(",", "_").replace("=", "") + ".s"
        open(fn, "w").write(gen(**kw))
        names.append(fn)
    print(" ".join(names))
    base = ["work/bench.py", "work/fst9.py", "sequential_preLN__mha_block_cached__glu_gated_glu__decode_np.py", "cdna_kernels/cdna_launch.py", "cdna_kernels/cdna_unwritten_srd_check.py", "work/pair/pair_NS10.s"]
    print(json.dumps(base + ["work/" + f for f in names]))
```

```python
import sys
from asmlib import *
WSZ = 0x40000000
WS_O, WS_Y, WS_H, WS_D, WS_Q, WS_EP, WS_TK, WS_KD, WS_ST, WS_SG = 0x000000, 0x080000, 0x100000, 0x110000, 0x180000, 0x280000, 0x290000, 0x2a0000, 0x300000, 0x400000
NG = 56
LOG2E = "0x3fb8aa3b"
L_XD = 0
L_QP = 8192
L_OA = 10240
L_ML = 14336
L_PX = 19584
L_PR = 14368
L_HN = 14400
L_AC = 18560
L_ON = 0
L_HG = 1152
L_QP2 = 19584
L_OB = L_QP2 + 2048
L_MLB = L_OB + 4096
L_SC = L_MLB + 64
L_TR = L_SC + 4 * 18 * 256
L_GU = L_TR + 16384
LDS_BYTES = L_GU + 65536

def gen(stamps=0, sleep=2, wf="nt", wqf="", prio=3, lsleep=4, thr=32, NS=12, qsleep=4, kfirst=0, hexit=0, dyn=1, s5sleep=3, s3sleep=3, hsleep=3,
        gst=0, D=16, kf="nt", vf="nt", GT=24, wsleep=2, abl=0, steal=1, cpf=0, cpf2=0, comp=2, asc=0):
    NM4 = 4 * (32 - 2 * NS)
    a = Asm(); e = a.e
    KN = NAME + "_kernel"
    e(HEADER_COMMENT.rstrip("\n"))
    e(f"; @launch grid=(256,1,1) block=(512,1,1) lds={LDS_BYTES}")
    e('.amdgcn_target "amdgcn-amd-amdhsa--gfx950"\n.text')
    a.kernel_begin(KN)
    def fstamp(reg="v62"):
        if stamps:
            e(f"s_memrealtime s[68:69]\ns_waitcnt lgkmcnt(0)\nv_writelane_b32 {reg}, s68, m0\ns_add_u32 m0, m0, 1")
    def fstamp_store(reg, off):
        if stamps:
            e(f"s_mov_b64 exec, -1\nv_and_b32 v2, 63, v0\nv_lshlrev_b32 v2, 2, v2\ns_lshl_b32 s41, s2, 8\ns_add_u32 s41, s41, {WS_ST+off}\nbuffer_store_dword {reg}, v2, s[12:15], s41 offen sc1")
    def allsum(v, t, op="add"):
        e("s_nop 1")
        for ctl in ("quad_perm:[1,0,3,2]", "quad_perm:[2,3,0,1]", "row_half_mirror", "row_mirror"):
            e(f"v_{op}_f32_dpp {v}, {v}, {v} {ctl} row_mask:0xf bank_mask:0xf\ns_nop 1")
        e(f"v_mov_b32 {t}, {v}\ns_nop 1\nv_permlane16_swap_b32 {v}, {t}\ns_nop 1\nv_{op}_f32 {v}, {v}, {t}\nv_mov_b32 {t}, {v}\ns_nop 1\nv_permlane32_swap_b32 {v}, {t}\ns_nop 1\nv_{op}_f32 {v}, {v}, {t}")
    def ln8(X, T):
        s1, s2, t1, t2, u = (f"v{T+i}" for i in range(5))
        e(f"v_readfirstlane_b32 s40, v{X}\ns_nop 1")
        e(f"v_subrev_f32 {s1}, s40, v{X}\nv_mul_f32 {s2}, {s1}, {s1}")
        for i in range(1, 8):
            e(f"v_subrev_f32 {u}, s40, v{X+i}\nv_add_f32 {s1}, {s1}, {u}\nv_fmac_f32 {s2}, {u}, {u}")
        e("s_nop 0")
        for ctl in ("quad_perm:[1,0,3,2]", "quad_perm:[2,3,0,1]", "row_half_mirror", "row_mirror"):
            e(f"v_add_f32_dpp {s1}, {s1}, {s1} {ctl} row_mask:0xf bank_mask:0xf\nv_add_f32_dpp {s2}, {s2}, {s2} {ctl} row_mask:0xf bank_mask:0xf\ns_nop 0")
        for sw in ("v_permlane16_swap_b32", "v_permlane32_swap_b32"):
            e(f"v_mov_b32 {t1}, {s1}\nv_mov_b32 {t2}, {s2}\ns_nop 0\n{sw} {s1}, {t1}\n{sw} {s2}, {t2}\ns_nop 0\nv_add_f32 {s1}, {s1}, {t1}\nv_add_f32 {s2}, {s2}, {t2}")
        e(f"v_mul_f32 {s1}, 0x3b000000, {s1}\nv_mul_f32 {s2}, 0x3b000000, {s2}\nv_fma_f32 {s2}, -{s1}, {s1}, {s2}\nv_max_f32 {s2}, 0, {s2}\nv_add_f32 {s1}, s40, {s1}")
        a.rbf(s2); a.rbf(s1)
        e(f"v_add_f32 {s2}, 0x3727c5ac, {s2}"); a.rbf(s2)
        e(f"v_sqrt_f32 {s2}, {s2}")
        for i in range(8): e(f"v_sub_f32 v{X+i}, v{X+i}, {s1}")
        a.rbf(s2)
        e(f"v_rcp_f32 {s2}, {s2}")
        for i in range(4): e(f"v_cvt_pk_bf16_f32 v{X+2*i}, v{X+2*i}, v{X+2*i+1}")
        for i in range(4): e(f"v_and_b32 v{X+2*i+1}, 0xffff0000, v{X+2*i}\nv_lshlrev_b32 v{X+2*i}, 16, v{X+2*i}")
        for i in range(8): e(f"v_mul_f32 v{X+i}, v{X+i}, {s2}")
        for i in range(4): e(f"v_cvt_pk_bf16_f32 v{X+i}, v{X+2*i}, v{X+2*i+1}")
    def masks():
        for r in range(4):
            e(f"v_mov_b32 v{8+r}, 0\nv_mov_b32 v28, 0xffff\nv_cmp_eq_u32 vcc, {2*r}, v3\ns_nop 1\nv_cndmask_b32 v{8+r}, v{8+r}, v28, vcc")
            e(f"v_mov_b32 v28, 0xffff0000\nv_cmp_eq_u32 vcc, {2*r+1}, v3\ns_nop 1\nv_cndmask_b32 v{8+r}, v{8+r}, v28, vcc")
    cnt = {12: 0, 24: 0}
    def gsync(off):
        cnt[off] += 1
        L = a.label("L_gs")
        e(f"v_mov_b32 v28, {L_PR}\nv_mov_b32 v29, 1\ns_mov_b64 exec, 1\ns_waitcnt lgkmcnt(0)\nds_add_u32 v28, v29 offset:{off}\n{L}:\nds_read_b32 v29, v28 offset:{off}\ns_waitcnt lgkmcnt(0)\nv_readfirstlane_b32 s43, v29\ns_cmp_lt_u32 s43, {4*cnt[off]}\ns_cbranch_scc1 {L}\ns_mov_b64 exec, -1")
    def poll(label, loads, words, slp=None):
        e(f"s_mov_b32 s66, 0\n{label}:")
        for l in loads: e(l)
        e("s_waitcnt vmcnt(0)")
        w = list(words)
        e(f"v_max_u32 v31, {w[0]}, {w[1]}")
        w = w[2:]
        while len(w) >= 2:
            e(f"v_max3_u32 v31, v31, {w[0]}, {w[1]}"); w = w[2:]
        if w: e(f"v_max_u32 v31, v31, {w[0]}")
        e(f"v_cmp_eq_u32 vcc, -1, v31\ns_cbranch_vccz {label}_ok\ns_mov_b64 exec, vcc\ns_add_u32 s66, s66, 1\ns_cmp_gt_u32 s66, 400000\ns_cbranch_scc1 {label}_ok")
        e(f"s_sleep {slp or sleep}\ns_branch {label}\n{label}_ok:\ns_mov_b64 exec, -1")
    def red4():
        for i in range(2):
            e(f"v_add_f32_dpp v{48+i}, v{48+i}, v{48+i} row_ror:8 row_mask:0xf bank_mask:0x3")
            e(f"v_add_f32_dpp v{48+i}, v{50+i}, v{50+i} row_ror:8 row_mask:0xf bank_mask:0xc")
        e("v_add_f32_dpp v48, v48, v48 row_half_mirror row_mask:0xf bank_mask:0x5\ns_nop 0\nv_add_f32_dpp v48, v49, v49 row_half_mirror row_mask:0xf bank_mask:0xa\ns_nop 1")
        e("v_add_f32_dpp v48, v48, v48 quad_perm:[1,0,3,2] row_mask:0xf bank_mask:0xf\ns_nop 1\nv_add_f32_dpp v48, v48, v48 quad_perm:[2,3,0,1] row_mask:0xf bank_mask:0xf")
        e("v_mov_b32 v49, v48\ns_nop 1\nv_permlane16_swap_b32 v48, v49\ns_nop 1\nv_add_f32 v48, v48, v49")

    e("s_cmp_ge_u32 s2, 256\ns_cbranch_scc1 L_end")
    if stamps: e("s_mov_b32 m0, 0\nv_mov_b32 v62, 0\nv_mov_b32 v63, 0")
    e("s_load_dwordx4 s[4:7], s[0:1], 8")
    e("s_load_dwordx4 s[44:47], s[0:1], 80")
    e("s_load_dwordx2 s[20:21], s[0:1], 0")
    e("s_load_dwordx4 s[24:27], s[0:1], 24")
    e("s_load_dwordx4 s[28:31], s[0:1], 48\ns_load_dwordx4 s[32:35], s[0:1], 64")
    if cpf:
        e("s_getpc_b64 s[90:91]\nL_pc:\nv_lshlrev_b32 v4, 4, v0\nv_add_u32 v5, 8192, v4\nv_add_u32 v6, 16384, v4\nv_min_u32 v6, (L_end-L_pc-16)&0xfffffff0, v6")
        e("global_load_dword v61, v4, s[90:91]\nglobal_load_dword v61, v5, s[90:91]\nglobal_load_dword v61, v6, s[90:91]")
    e("v_and_b32 v1, 63, v0\nv_lshrrev_b32 v2, 6, v0\nv_lshlrev_b32 v1, 4, v1\nv_readfirstlane_b32 s3, v2")
    e("s_mov_b32 s36, 0xaaaaaaaa\ns_mov_b32 s37, 0xaaaaaaaa\ns_mov_b32 s38, 0xcccccccc\ns_mov_b32 s39, 0xcccccccc")
    e("s_lshr_b32 s40, s2, 1\ns_xor_b32 s41, s40, s2\ns_and_b32 s41, s41, 1\ns_and_b32 s48, s40, 1")
    e("s_bfe_u32 s40, s2, 0x10002\ns_lshl_b32 s40, s40, 1\ns_or_b32 s77, s41, s40")
    e("s_lshr_b32 s51, s2, 3\ns_lshl_b32 s51, s51, 2\ns_add_u32 s51, s51, s77\ns_and_b32 s49, s51, 31\ns_lshr_b32 s50, s2, 6")
    e("v_bfe_u32 v2, v0, 4, 2\nv_and_b32 v3, 15, v0")
    e("s_cmp_ge_u32 s3, 4\ns_cbranch_scc1 L_helper")
    fstamp()
    e("s_lshl_b32 s54, s51, 21")
    def setoff(k, dst):
        e(f"s_sub_u32 s40, 127, {k}\ns_cmp_eq_u32 s48, 0\ns_cselect_b32 s40, {k}, s40\ns_lshr_b32 s41, s40, 2\ns_lshl_b32 s41, s41, 16\ns_and_b32 s42, s40, 3\ns_lshl_b32 s42, s42, 12\ns_add_u32 {dst}, s54, s41\ns_add_u32 {dst}, {dst}, s42")
    setoff("s3", "s52")
    e("s_mov_b32 s57, s52\ns_mov_b32 s53, 0x10000\ns_cmp_eq_u32 s48, 0\ns_cselect_b32 s53, s53, 0xffff0000\ns_cselect_b32 s55, 1, 0x10000\ns_cselect_b32 s56, 0, 16")
    e("s_waitcnt lgkmcnt(0)\ns_mov_b32 s8, s6\ns_mov_b32 s9, s7")
    a.srd(4, 4, 1 << 28); a.srd(12, 46, WSZ)
    RA, RB, RC = 128, 192, 64
    def ld(i, rb):
        if i % 4 == 0: e(f"s_add_u32 s22, s52, {(i//4)*16384}")
        e(f"buffer_load_dwordx4 v[{rb+4*i}:{rb+4*i+3}], v1, s[4:7], s22 offen offset:{(i%4)*1024} {kf}")
    for blk, rb in enumerate((RA, RB, RC)):
        for i in range(16):
            if blk == 0 and i == kfirst: e("s_barrier")
            ld(i, rb)
        e("s_add_u32 s52, s52, s53")
        if stamps >= 2 and blk < 2: fstamp()
    masks()
    e("v_mov_b32 v20, 0\nv_mov_b32 v21, 0\nv_mov_b32 v22, 0\nv_mov_b32 v23, 0\nv_mov_b32 v24, 0xff7fffff\nv_mov_b32 v25, 0")
    e(f"v_lshlrev_b32 v26, 5, v3\nv_mov_b32 v27, {L_PR}\ns_mov_b32 s65, 0")
    e(f"v_and_b32 v56, 7, v0\nv_lshl_add_u32 v56, v2, 5, v56\nv_bfe_u32 v29, v0, 3, 1\nv_lshl_add_u32 v56, v29, 7, v56\nv_lshlrev_b32 v56, 2, v56\ns_lshl_b32 s40, s3, 10\nv_add_u32 v56, s40, v56\ns_lshl_b32 s40, s3, 3\nv_mov_b32 v57, s40")
    for r in range(4): e(f"ds_write_b32 v56, v20 offset:{L_OB+32*r}")
    e(f"ds_write_b64 v57, v[24:25] offset:{L_MLB}\nv_add_u32 v56, {L_OA}, v56\nv_add_u32 v57, {L_ML}, v57\ns_mov_b32 s87, 0")
    e(f"s_mul_i32 s40, s3, {18*256}\nv_lshrrev_b32 v60, 2, v1\nv_add_u32 v58, s40, v60\nv_mov_b32 v59, v58")
    e(f"s_lshl_b32 s40, s51, 8\ns_add_u32 s40, s40, {WS_TK}\ns_add_u32 s74, s46, s40\ns_addc_u32 s75, s47, 0\ns_lshl_b32 s73, s51, 15\ns_add_u32 s73, s73, {WS_SG}\nv_mov_b32 v61, {L_PX}")
    fstamp()
    e("s_barrier")
    e("ds_read_b64 v[28:29], v61")
    for w in range(4):
        rb = (32, 40, 48, 12)[w]
        e(f"ds_read_b128 v[{rb}:{rb+3}], v26 offset:{L_QP+512*w}\nds_read_b128 v[{rb+4}:{rb+7}], v26 offset:{L_QP+512*w+16}")
    e("s_waitcnt lgkmcnt(0)")
    for j in range(8):
        e(f"v_add_f32 v{32+j}, v{32+j}, v{40+j}\nv_add_f32 v{48+j}, v{48+j}, v{12+j}\nv_add_f32 v{32+j}, v{32+j}, v{48+j}")
    for j in range(4): e(f"v_cvt_pk_bf16_f32 v{4+j}, v{32+2*j}, v{33+2*j}")
    e("v_readfirstlane_b32 s71, v28\nv_readfirstlane_b32 s70, v29")
    def A(i): return f"v{32+i}"
    def kblk(src, wait, issue, glob=False):
        fstamp()
        for i in range(16):
            e(f"s_waitcnt vmcnt({wait(i)})")
            for j in range(4):
                e(f"v_dot2_f32_bf16 {A(i)}, v{src+4*i+j}, v{4+j}, {'0' if j == 0 else A(i)}")
            issue(i)
        for i in range(8):
            e(f"v_add_f32_dpp {A(i)}, {A(i)}, {A(i)} row_ror:8 row_mask:0xf bank_mask:0x3")
            e(f"v_add_f32_dpp {A(i)}, {A(i+8)}, {A(i+8)} row_ror:8 row_mask:0xf bank_mask:0xc")
        for i in range(4):
            e(f"v_add_f32_dpp {A(i)}, {A(i)}, {A(i)} row_half_mirror row_mask:0xf bank_mask:0x5")
            e(f"v_add_f32_dpp {A(i)}, {A(i+4)}, {A(i+4)} row_half_mirror row_mask:0xf bank_mask:0xa")
        e(f"v_cndmask_b32 v28, {A(1)}, {A(0)}, s[36:37]\nv_cndmask_b32 v29, {A(0)}, {A(1)}, s[36:37]")
        e(f"v_cndmask_b32 v30, {A(3)}, {A(2)}, s[36:37]\nv_cndmask_b32 v31, {A(2)}, {A(3)}, s[36:37]")
        e("v_add_f32_dpp v29, v28, v29 quad_perm:[1,0,3,2] row_mask:0xf bank_mask:0xf")
        e("v_add_f32_dpp v31, v30, v31 quad_perm:[1,0,3,2] row_mask:0xf bank_mask:0xf")
        e("v_cndmask_b32 v28, v31, v29, s[38:39]\nv_cndmask_b32 v30, v29, v31, s[38:39]\ns_nop 0")
        e("v_add_f32_dpp v30, v28, v30 quad_perm:[2,3,0,1] row_mask:0xf bank_mask:0xf")
        a.rbf("v30"); e("v_mul_f32 v30, 0x3db504f3, v30"); a.rbf("v30")
        e("v_max_f32 v24, v30, v24")
        if glob: e("buffer_store_dword v30, v60, s[12:15], s58 offen sc1")
        else:
            e(f"ds_write_b32 v58, v30 offset:{L_SC}\nv_add_u32 v58, 256, v58")
            e("s_add_u32 s65, s65, 1\nv_mov_b32 v26, s65\nds_max_u32 v27, v26")
    def vblk(src, wait, issue, pre):
        fstamp()
        e(f"v_sub_f32 v30, v31, v24\nv_mul_f32 v30, {LOG2E}, v30\nv_exp_f32 v30, v30")
        pre()
        e("s_nop 0\nv_add_f32 v25, v25, v30\nv_cvt_pk_bf16_f32 v30, v30, v30\ns_nop 1")
        for i in range(16):
            bb = 12 + 4 * (i & 1)
            for r in range(4):
                e(f"v_and_b32_dpp v{bb+r}, v30, v{8+r} row_newbcast:{i} row_mask:0xf bank_mask:0xf")
            e(f"s_waitcnt vmcnt({wait(i)})\ns_nop 0")
            e(f"v_mfma_f32_16x16x32_bf16 v[20:23], v[{src+4*i}:{src+4*i+3}], v[{bb}:{bb+3}], v[20:23]")
            issue(i)
    none = lambda i: None
    def ask(off): e(f"s_mov_b32 s72, s55\ns_atomic_add s72, s[74:75], {off} glc")
    def decode(base, fail):
        e(f"s_waitcnt lgkmcnt(0)\ns_sub_u32 s72, s72, {base}\ns_and_b32 s42, s72, 0xffff\ns_lshr_b32 s43, s72, 16\ns_add_u32 s42, s42, s43\ns_cmp_ge_u32 s42, {NM4}\ns_cbranch_scc1 {fail}")
        e(f"s_lshr_b32 s72, s72, s56\ns_and_b32 s72, s72, 0xffff\ns_add_u32 s72, s72, {4*NS}")
        setoff("s72", "s52")
        e("s_lshl_b32 s59, s40, 8\ns_add_u32 s59, s59, s73")
    kblk(RA, lambda i: 47, lambda i: ld(i, RA))
    kblk(RB, lambda i: 47 - i, none)
    kblk(RC, lambda i: 31 - i, none)
    e(f"L_k:\ns_add_u32 s52, s52, s53\ns_cmp_lg_u32 s65, {NS-2}\ns_cbranch_scc1 L_k2")
    ask(0)
    e("L_k2:")
    kblk(RA, lambda i: 15, lambda i: ld(i, RA))
    e(f"s_cmp_lt_u32 s65, {NS-1}\ns_cbranch_scc1 L_k\ns_mov_b32 s86, 0")
    decode("s71", "L_kl0")
    ask(0)
    e("s_mov_b32 s86, 1\ns_branch L_kl1\nL_kl0:\ns_mov_b32 s52, s57\ns_mov_b32 s4, s8\ns_mov_b32 s5, s9\nL_kl1:")
    kblk(RA, lambda i: 15, lambda i: ld(i, RA))
    e("s_cmp_eq_u32 s86, 0\ns_cbranch_scc1 L_kdone")
    e("L_kd:\ns_mov_b32 s58, s59\ns_mov_b32 s86, 0")
    decode("s71", "L_kd0")
    ask(0)
    e("s_mov_b32 s86, 1\ns_branch L_kd1\nL_kd0:\ns_mov_b32 s52, s57\ns_mov_b32 s4, s8\ns_mov_b32 s5, s9\nL_kd1:")
    kblk(RA, lambda i: 15, lambda i: ld(i, RA), glob=True)
    e("s_cmp_lg_u32 s86, 0\ns_cbranch_scc1 L_kd\nL_kdone:")
    allsum("v24", "v29", "max")
    e(f"s_lshl_b32 s40, s3, 2\nv_add_u32 v28, s40, v61\nds_write_b32 v28, v24 offset:16\ns_waitcnt lgkmcnt(0)\nds_read_b32 v31, v59 offset:{L_SC}\nv_add_u32 v59, 256, v59\ns_mov_b32 s64, 0")
    def pre_own(): e(f"ds_read_b32 v31, v59 offset:{L_SC}\nv_add_u32 v59, 256, v59")
    e(f"L_v:\ns_add_u32 s52, s52, s53\ns_waitcnt lgkmcnt(0)\ns_cmp_lg_u32 s64, {NS-2}\ns_cbranch_scc1 L_v2")
    e("L_vw:\nds_read_b128 v[32:35], v61\nds_read_b128 v[36:39], v61 offset:16\ns_waitcnt lgkmcnt(0)\nv_readfirstlane_b32 s40, v34\ns_cmp_lg_u32 s40, 0\ns_cbranch_scc1 L_vw1\ns_sleep 8\ns_branch L_vw\nL_vw1:")
    e(f"v_max3_f32 v35, v35, v36, v37\nv_max3_f32 v35, v35, v38, v39\nv_sub_f32 v29, v24, v35\nv_mul_f32 v29, {LOG2E}, v29\nv_exp_f32 v29, v29\nv_mov_b32 v24, v35\nv_mul_f32 v25, v25, v29")
    for r in range(4): e(f"v_mul_f32 v{20+r}, v{20+r}, v29")
    ask(4)
    e("L_v2:")
    vblk(RA, lambda i: 15, lambda i: ld(i, RA), pre_own)
    e("s_add_u32 s64, s64, 1\ns_add_u32 s65, s65, 1\nv_mov_b32 v26, s65\nds_max_u32 v27, v26\ns_cmp_lg_u32 s64, 1\ns_cbranch_scc1 L_v3")
    e("v_mov_b32 v26, 1\ns_mov_b64 exec, 1\nds_add_u32 v27, v26 offset:20\ns_mov_b64 exec, -1\nL_v3:")
    e(f"s_cmp_lt_u32 s64, {NS-1}\ns_cbranch_scc1 L_v")
    e("L_vd:")
    decode("s70", "L_vlast")
    ask(4)
    def pre_sh(): e("buffer_load_dword v31, v60, s[12:15], s59 offen sc1")
    vblk(RA, lambda i: 15, lambda i: ld(i, RA), pre_sh)
    e("s_waitcnt vmcnt(16)\ns_branch L_vd\nL_vlast:")
    if steal:
        e("s_mov_b32 s86, 0\ns_cmp_lg_u32 s87, 0\ns_cbranch_scc1 L_nosib\nds_read_b128 v[48:51], v61 offset:32\ns_waitcnt lgkmcnt(0)\nv_readfirstlane_b32 s40, v48\nv_readfirstlane_b32 s70, v50\ns_cmp_eq_u32 s40, 0\ns_cbranch_scc1 L_nosib")
        e("s_xor_b32 s74, s74, 256\ns_xor_b32 s54, s54, 0x200000\ns_xor_b32 s73, s73, 0x8000")
        ask(4)
        e("s_mov_b32 s86, 1\nL_nosib:")
    vblk(RA, lambda i: 15 - i, none, lambda: None)
    fstamp()
    allsum("v25", "v29")
    for r in range(4): e(f"ds_write_b32 v56, v{20+r} offset:{32*r}")
    e("ds_write_b64 v57, v[24:25]")
    if steal:
        e("s_cmp_eq_u32 s86, 0\ns_cbranch_scc1 L_done")
        decode("s70", "L_done")
        pre_sh()
        for i in range(16): ld(i, RA)
        e(f"s_mov_b32 s87, 1\nv_add_u32 v56, {L_OB-L_OA}, v56\nv_add_u32 v57, {L_MLB-L_ML}, v57")
        ask(4)
        e("v_mov_b32 v20, 0\nv_mov_b32 v21, 0\nv_mov_b32 v22, 0\nv_mov_b32 v23, 0\nv_mov_b32 v24, v49\nv_mov_b32 v25, 0\ns_waitcnt vmcnt(16)\ns_branch L_vd\nL_done:")
    e("v_mov_b32 v26, 1\ns_mov_b64 exec, 1\ns_waitcnt lgkmcnt(0)\nds_add_u32 v27, v26 offset:16\ns_mov_b64 exec, -1")
    e("L_sfin:")
    if stamps:
        e("s_cmp_lg_u32 s3, 0\ns_cbranch_scc1 L_end")
        fstamp_store("v62", 0)
    e("s_endpgm")
    e("L_helper:")
    S = "v63"
    fstamp(S)
    e("s_sub_u32 s3, s3, 4")
    if prio: e(f"s_setprio {prio}")
    e("s_lshl_b32 s58, s50, 1\ns_add_u32 s58, s58, s48")
    e("v_lshlrev_b32 v26, 13, v2\nv_lshl_add_u32 v26, v3, 4, v26")
    e(f"v_mov_b32 v20, 0\nv_mov_b32 v21, 0\nv_mov_b32 v22, 0\nv_mov_b32 v23, 0\nv_mov_b32 v28, {L_PR}\nds_write_b128 v28, v[20:23]\nds_write_b128 v28, v[20:23] offset:16")
    e("s_lshl_b32 s40, s49, 8\ns_lshl_b32 s41, s58, 19\ns_add_u32 s40, s40, s41\ns_lshl_b32 s41, s3, 17\ns_add_u32 s40, s40, s41")
    e("s_lshl_b32 s41, s3, 10\ns_waitcnt lgkmcnt(0)")
    a.srd(16, 20, 4096)
    e("buffer_load_dwordx4 v[48:51], v1, s[16:19], s41 offen")
    a.srd(16, 24, 512 * 4096 * 2)
    if abl & 8: e("s_mov_b32 s18, 0")
    if kfirst: e("s_barrier")
    for t in range(4):
        e(f"buffer_load_dwordx4 v[{64+4*t}:{67+4*t}], v26, s[16:19], s40 offen {wqf}\ns_add_u32 s40, s40, 0x8000")
    if not kfirst: e("s_barrier")
    a.srd(12, 46, WSZ)
    e(f"s_lshl_b32 s42, s49, 8\ns_add_u32 s76, s42, {WS_EP}\ns_add_u32 s42, s46, s76\ns_addc_u32 s43, s47, 0\ns_load_dwordx2 s[56:57], s[42:43], 0 glc\ns_xor_b32 s42, s42, 256\ns_load_dwordx2 s[82:83], s[42:43], 0 glc")
    e(f"s_lshl_b32 s42, s51, 8\ns_add_u32 s42, s42, {WS_TK}\ns_add_u32 s42, s46, s42\ns_addc_u32 s43, s47, 0\ns_mov_b32 s72, 0\ns_mov_b32 s73, 0\ns_cmp_lg_u32 s3, s50\ns_cbranch_scc1 L_nobase\ns_load_dwordx2 s[72:73], s[42:43], 0 glc\nL_nobase:")
    masks()
    e(f"s_lshl_b32 s67, s3, 12\ns_add_u32 s67, s67, {L_TR}\nv_add_u32 v24, s67, v1\nv_mov_b32 v28, {L_PR}")
    e("s_mov_b32 s62, 0x01000100\ns_mov_b32 s63, 0x03020302")
    e("s_lshl_b32 s40, s3, 11\nv_lshlrev_b32 v58, 1, v1\nv_add_u32 v58, s40, v58")
    e("s_lshl_b32 s41, s58, 8\ns_add_u32 s40, s40, s41\nv_lshlrev_b32 v59, 4, v3\nv_lshl_add_u32 v59, v2, 2, v59\nv_add_u32 v59, s40, v59")
    e("s_waitcnt vmcnt(4)")
    fstamp(S)
    for i in range(4):
        e(f"v_lshlrev_b32 v{40+2*i}, 16, v{48+i}\nv_and_b32 v{41+2*i}, 0xffff0000, v{48+i}")
    ln8(40, 52)
    for i in (3, 2, 1, 0): e(f"v_perm_b32 v{41+2*i}, v{40+i}, v{40+i}, s63\nv_perm_b32 v{40+2*i}, v{40+i}, v{40+i}, s62")
    e(f"ds_write_b128 v58, v[40:43] offset:{L_XD}\nds_write_b128 v58, v[44:47] offset:{L_XD+16}")
    for t in range(4): e(f"s_waitcnt vmcnt({3-t})\nds_write_b128 v24, v[{64+4*t}:{67+4*t}] offset:{1024*t}")
    fstamp(S)
    gsync(12)
    e(f"ds_read_b32 v53, v59 offset:{L_XD}")
    for t in range(16): e(f"ds_read_b128 v[{64+4*t}:{67+4*t}], v1 offset:{L_TR+1024*t}")
    e(f"s_cmp_lg_u32 s3, s50\ns_cbranch_scc1 L_nobase2\nv_mov_b32 v44, s72\nv_mov_b32 v45, s73\nv_mov_b32 v46, 0\nv_mov_b32 v47, 0\nv_mov_b32 v54, {L_PX}\nds_write_b128 v54, v[44:47]\nds_write_b32 v54, v46 offset:32\ns_waitcnt lgkmcnt(0)\nL_nobase2:")
    e("s_add_u32 s56, s56, 1\ns_addc_u32 s57, s57, 0\nv_mov_b32 v42, s56\nv_mov_b32 v43, s57\nv_mov_b32 v46, s56\nv_mov_b32 v47, s57")
    e("s_lshl_b32 s40, s49, 2\ns_add_u32 s40, s40, s3\ns_lshl_b32 s40, s40, 3\ns_add_u32 s40, s40, s58\ns_lshl_b32 s40, s40, 10")
    e(f"s_add_u32 s40, s40, {WS_Q}\nv_lshlrev_b32 v52, 8, v2\nv_lshl_add_u32 v52, v3, 4, v52\ns_waitcnt lgkmcnt(15)")
    for t in range(16):
        bb = 12 + 4 * (t & 1)
        for r in range(4):
            e(f"v_and_b32_dpp v{bb+r}, v53, v{8+r} row_newbcast:{t} row_mask:0xf bank_mask:0xf")
        e(f"s_waitcnt lgkmcnt({15-t})\ns_nop 0")
        e(f"v_mfma_f32_16x16x32_bf16 v[20:23], v[{64+4*t}:{67+4*t}], v[{bb}:{bb+3}], v[20:23]")
    e("s_lshl_b32 s61, s49, 2\ns_add_u32 s61, s61, s50\ns_lshl_b32 s61, s61, 3\ns_lshl_b32 s42, s3, 1\ns_add_u32 s61, s61, s42\ns_lshl_b32 s61, s61, 10")
    e(f"s_add_u32 s61, s61, {WS_Q}\ns_mov_b32 exec_lo, 0x00ff00ff\ns_mov_b32 exec_hi, 0x00ff00ff")
    e("v_mov_b32 v40, v20\nv_mov_b32 v41, v21\nv_mov_b32 v44, v22\nv_mov_b32 v45, v23")
    e("buffer_store_dwordx4 v[40:43], v52, s[12:15], s40 offen sc1\nbuffer_store_dwordx4 v[44:47], v52, s[12:15], s40 offen offset:128 sc1")
    e("s_mov_b64 exec, -1")
    fstamp(S)
    a.srd(16, 26, 4096 * 512 * 2)
    if abl & 1: e("s_mov_b32 s18, 0")
    if abl & 2: e("s_mov_b32 s14, 0")
    e("v_bfe_u32 v27, v0, 3, 3\nv_lshlrev_b32 v27, 10, v27\nv_and_b32 v28, 7, v0\nv_lshl_add_u32 v27, v28, 4, v27")
    e("s_lshl_b32 s40, s49, 17\ns_lshl_b32 s41, s58, 7\ns_add_u32 s40, s40, s41\ns_lshl_b32 s41, s3, 15\ns_add_u32 s40, s40, s41")
    for t in range(4): e(f"buffer_load_dwordx4 v[{96+4*t}:{99+4*t}], v27, s[16:19], s40 offen {wf}\ns_add_u32 s40, s40, 8192")
    e("v_mov_b32 v28, -1\nv_mov_b32 v29, -1\nv_mov_b32 v30, -1\nv_mov_b32 v31, -1\nv_and_b32 v27, 255, v0")
    e(f"s_lshl_b32 s40, s51, 2\ns_add_u32 s40, s40, s48\ns_lshl_b32 s54, s40, 10\ns_add_u32 s54, s54, {WS_O}\ns_xor_b32 s85, s54, 0x1800\nv_lshlrev_b32 v32, 2, v27")
    e("buffer_store_dword v28, v32, s[12:15], s54 offen sc1\nbuffer_store_dword v28, v32, s[12:15], s85 offen sc1")
    e("v_lshlrev_b32 v33, 16, v2\nv_bfe_u32 v34, v0, 3, 1\nv_lshl_add_u32 v33, v34, 10, v33\nv_and_b32 v34, 7, v0\nv_lshl_add_u32 v33, v34, 2, v33")
    e(f"s_lshl_b32 s60, s58, 13\ns_lshl_b32 s40, s3, 11\ns_add_u32 s60, s60, s40\ns_lshl_b32 s40, s49, 5\ns_add_u32 s60, s60, s40\ns_add_u32 s60, s60, {WS_Y}")
    e("buffer_store_dword v28, v33, s[12:15], s60 offen sc1")
    e("s_lshr_b32 s79, s2, 3\ns_sub_u32 s79, s79, 16\ns_lshl_b32 s79, s79, 2\ns_add_u32 s79, s79, s77\ns_lshl_b32 s79, s79, 2\ns_add_u32 s79, s79, s3\ns_cmp_eq_u32 s48, 1\ns_cselect_b32 s79, s79, 0x10000")
    e("v_bfe_u32 v36, v0, 2, 1\nv_bfe_u32 v37, v0, 3, 1\nv_lshl_add_u32 v36, v37, 1, v36\nv_bfe_u32 v37, v0, 5, 1\nv_lshl_add_u32 v36, v37, 2, v36")
    e("v_and_b32 v37, 3, v0\nv_bfe_u32 v38, v0, 4, 1\nv_lshl_add_u32 v37, v38, 2, v37\nv_lshlrev_b32 v37, 13, v37\nv_lshl_add_u32 v37, v36, 2, v37")
    e(f"s_lshl_b32 s55, s79, 5\ns_add_u32 s55, s55, {WS_H}\ns_cmp_lt_u32 s79, 256\ns_cselect_b32 s55, s55, 0x40000000\nbuffer_store_dword v28, v37, s[12:15], s55 offen sc1")
    e(f"s_lshl_b32 s59, s2, 13\ns_add_u32 s59, s59, {WS_D}\ns_cmp_lt_u32 s2, {NG}\ns_cselect_b32 s59, s59, 0x40000000\ns_add_u32 s40, s59, 4096\nv_lshlrev_b32 v27, 4, v27")
    e("buffer_store_dwordx4 v[28:31], v27, s[12:15], s59 offen sc1\nbuffer_store_dwordx4 v[28:31], v27, s[12:15], s40 offen sc1")
    a.srd(16, 20, 4096)
    e("v_lshlrev_b32 v38, 1, v36\ns_lshl_b32 s40, s79, 4\nbuffer_load_ushort v39, v38, s[16:19], s40 offen")
    e("v_and_b32 v52, 7, v0\nv_and_b32 v53, 63, v0\nv_lshlrev_b32 v53, 1, v53\nv_sub_u32 v52, v53, v52\nv_lshlrev_b32 v52, 2, v52\ns_lshl_b32 s40, s3, 9\nv_add_u32 v52, s40, v52")
    if abl & 2: e("s_mov_b32 s14, 0x40000000")
    if abl & 4: e("s_waitcnt vmcnt(0)\ns_branch L_pq_ok")
    e("s_mov_b32 s66, 0\nL_pq:")
    e("buffer_load_dwordx4 v[64:67], v1, s[12:15], s61 offen sc1\nbuffer_load_dwordx4 v[68:71], v1, s[12:15], s61 offen offset:1024 sc1\ns_waitcnt vmcnt(0)")
    e("v_xor_b32 v72, s56, v66\nv_xor_b32 v73, s57, v67\nv_xor_b32 v74, s56, v70\nv_xor_b32 v75, s57, v71\nv_or3_b32 v72, v72, v73, v74\nv_or_b32 v72, v72, v75")
    e(f"v_cmp_ne_u32 vcc, 0, v72\ns_cbranch_vccz L_pq_ok\ns_mov_b64 exec, vcc\ns_add_u32 s66, s66, 1\ns_cmp_gt_u32 s66, 400000\ns_cbranch_scc1 L_pq_ok\ns_sleep {qsleep}\ns_branch L_pq\nL_pq_ok:\ns_mov_b64 exec, -1")
    e(f"v_add_f32 v64, v64, v68\nv_add_f32 v65, v65, v69\nds_write_b32 v52, v64 offset:{L_QP}\nds_write_b32 v52, v65 offset:{L_QP+32}\ns_waitcnt lgkmcnt(0)")
    fstamp(S)
    e("s_barrier")
    if hexit == 1: e("s_endpgm")
    e(f"v_lshlrev_b32 v39, 16, v39\nv_mov_b32 v28, {L_PR}\nv_mov_b32 v29, 1\ns_mov_b64 exec, 1\nds_add_rtn_u32 v29, v28, v29 offset:4\ns_waitcnt lgkmcnt(0)\ns_mov_b64 exec, -1\nv_readfirstlane_b32 s70, v29")
    e(f"v_bfe_u32 v25, v0, 2, 2\nv_lshlrev_b32 v25, 7, v25\nv_lshl_add_u32 v25, v2, 10, v25\nv_and_b32 v28, 3, v0\nv_lshl_add_u32 v25, v28, 3, v25\ns_lshl_b32 s41, s3, 5\ns_add_u32 s41, s41, {L_TR}\nv_add_u32 v25, s41, v25")
    for t in range(4): e(f"ds_write_b128 v24, v[{96+4*t}:{99+4*t}] offset:{1024*t}")
    gsync(12)
    for ks in range(4):
        for hh in range(2):
            e(f"ds_read_b64_tr_b16 v[{112+4*ks+2*hh}:{113+4*ks+2*hh}], v25 offset:{4096*ks+512*hh}")
    def wait_progress(lbl, sreg):
        e(f"v_mov_b32 v28, {L_PR}\n{lbl}:\nds_read_b32 v29, v28\ns_waitcnt lgkmcnt(0)\nv_readfirstlane_b32 s40, v29\ns_cmp_ge_u32 s40, {sreg}\ns_cbranch_scc1 {lbl}_ok\ns_sleep 32\ns_branch {lbl}\n{lbl}_ok:")
    def glu_loads():
        a.srd(16, 32, 512 * 1792 * 2)
        e("v_lshlrev_b32 v26, 13, v2\nv_lshl_add_u32 v26, v3, 3, v26\ns_lshl_b32 s40, s78, 15\ns_lshl_b32 s41, s3, 8\ns_add_u32 s40, s40, s41")
        for ee in range(8):
            if ee == 4: e("s_add_u32 s40, s40, 4096")
            e(f"buffer_load_dwordx2 v[{64+4*ee}:{65+4*ee}], v26, s[16:19], s40 offen offset:{(ee%4)*1024} {wf}")
            e(f"buffer_load_dwordx2 v[{66+4*ee}:{67+4*ee}], v26, s[16:19], s40 offen offset:{(ee%4)*1024+128} {wf}")
        e("s_cmp_lt_u32 s3, 2\ns_cselect_b32 s42, s28, s30\ns_cselect_b32 s43, s29, s31")
        a.srd(16, 42, 512 * 1792 * 2)
        e("v_bfe_u32 v26, v0, 2, 4\nv_mul_u32_u24 v26, 3584, v26\nv_and_b32 v28, 3, v0\nv_lshl_add_u32 v26, v28, 4, v26")
        e(f"s_lshl_b32 s40, s78, 6\ns_and_b32 s41, s3, 1\ns_mul_i32 s41, s41, {256*3584}\ns_add_u32 s40, s40, s41")
        for t in range(16): e(f"buffer_load_dwordx4 v[{128+4*t}:{131+4*t}], v26, s[16:19], s40 offen {wf}\ns_add_u32 s40, s40, {16*3584}")
    e(f"s_lshr_b32 s78, s51, 1\ns_and_b32 s40, s51, 1\ns_or_b32 s40, s40, s48\ns_cmp_eq_u32 s40, 0\ns_cselect_b32 s78, s78, 255\ns_cmp_ge_u32 s78, {NG}\ns_cbranch_scc1 L_nogw")
    glu_loads()
    e("s_mov_b32 s80, 0x05040100\ns_mov_b32 s81, 0x07060302")
    e(f"s_lshl_b32 s41, s3, 14\ns_add_u32 s41, s41, {L_GU}\nv_add_u32 v24, s41, v1")
    e(f"v_bfe_u32 v25, v0, 2, 2\nv_lshlrev_b32 v25, 6, v25\nv_lshl_add_u32 v25, v2, 9, v25\nv_and_b32 v28, 3, v0\nv_lshl_add_u32 v25, v28, 3, v25")
    e(f"s_lshr_b32 s41, s3, 1\ns_lshl_b32 s41, s41, 15\ns_and_b32 s42, s3, 1\ns_lshl_b32 s42, s42, 5\ns_add_u32 s41, s41, s42\ns_add_u32 s41, s41, {L_GU}\nv_add_u32 v25, s41, v25")
    e("s_waitcnt vmcnt(16)")
    for j in range(8):
        for q in range(4):
            e(f"v_perm_b32 v{192+4*j+q}, v{64+4*(2*q+1)+(j>>1)}, v{64+4*(2*q)+(j>>1)}, {'s80' if j%2==0 else 's81'}")
    for t in range(16): e(f"s_waitcnt vmcnt({15-t})\nds_write_b128 v24, v[{128+4*t}:{131+4*t}] offset:{1024*t}")
    gsync(12)
    for ks in range(16):
        for hh in range(2):
            e(f"ds_read_b64_tr_b16 v[{128+4*ks+2*hh}:{129+4*ks+2*hh}], v25 offset:{2048*ks+256*hh}")
    e(f"s_and_b32 s40, s78, 7\ns_lshl_b32 s40, s40, 13\ns_lshl_b32 s41, s3, 11\ns_add_u32 s73, s40, s41\ns_add_u32 s73, s73, {WS_H}\nv_lshlrev_b32 v46, 1, v1")
    e(f"s_mul_i32 s40, s3, 1040\nv_add_u32 v47, s40, v1\nv_and_b32 v43, 3, v0\nv_mul_u32_u24 v43, 1040, v43\nv_lshl_add_u32 v43, v2, 4, v43")
    e("v_lshlrev_b32 v40, 2, v3\ns_lshr_b32 s40, s3, 1\ns_lshl_b32 s40, s40, 9\ns_and_b32 s41, s3, 1\ns_lshl_b32 s41, s41, 6\ns_add_u32 s40, s40, s41\nv_add_u32 v40, s40, v40")
    e("v_bfe_u32 v41, v0, 2, 2\nv_lshlrev_b32 v41, 7, v41\nv_lshl_add_u32 v41, v2, 5, v41\nv_and_b32 v61, 3, v0\nv_lshl_add_u32 v41, v61, 3, v41")
    e(f"v_lshlrev_b32 v42, 11, v2\nv_lshl_add_u32 v42, v3, 4, v42\ns_lshl_b32 s59, s78, 13\ns_lshl_b32 s40, s3, 9\ns_add_u32 s59, s59, s40\ns_add_u32 s59, s59, {WS_D}")
    e("L_nogw:")
    e("s_cmp_lg_u32 s70, 3\ns_cbranch_scc1 L_noinit\ns_bfe_u32 s41, s2, 0x20003\ns_add_u32 s41, s41, 1")
    wait_progress("L_iw", "s41")
    e("s_mov_b32 s64, 1\ns_atomic_add s64, s[44:45], 0\nL_noinit:")
    e("v_lshlrev_b32 v34, 10, v2\nv_lshl_add_u32 v35, v3, 5, v34")
    e(f"s_lshl_b32 s40, s49, 12\ns_lshl_b32 s41, s3, 17\ns_add_u32 s88, s40, s41\ns_add_u32 s88, s88, {WS_O}")
    e("v_lshlrev_b32 v4, 4, v3\nv_lshl_add_u32 v4, v2, 2, v4\nv_bfe_u32 v5, v0, 4, 1\nv_bfe_u32 v6, v0, 5, 1\nv_lshlrev_b32 v4, 4, v3\nv_lshl_add_u32 v4, v6, 3, v4\nv_lshl_add_u32 v4, v5, 2, v4\ns_mul_i32 s40, s3, 272\nv_add_u32 v4, s40, v4")
    e("v_bfe_u32 v5, v0, 2, 2\nv_mul_u32_u24 v5, 272, v5\nv_lshl_add_u32 v5, v2, 4, v5")
    e("s_lshl_b32 s40, s3, 5\nv_lshlrev_b32 v6, 2, v36\nv_add_u32 v6, s40, v6\nv_and_b32 v7, 7, v0\nv_lshlrev_b32 v7, 4, v7\nv_bfe_u32 v37, v0, 3, 3\nv_lshl_add_u32 v37, v37, 13, v7")
    e(f"s_lshl_b32 s62, s79, 10\ns_add_u32 s62, s62, {WS_Y}\nv_and_b32 v44, 31, v0\nv_lshlrev_b32 v44, 5, v44\nv_bfe_u32 v45, v0, 5, 1\nv_lshl_add_u32 v44, v45, 4, v44")
    e(f"v_lshlrev_b32 v45, 9, v1\ns_lshl_b32 s63, s79, 5\ns_add_u32 s63, s63, {WS_D}\ns_lshl_b32 s67, s79, 4")
    e(f"s_cmp_lg_u32 s3, 1\ns_cbranch_scc1 L_nokd\nv_mov_b32 v28, {L_PR}\nL_kw:\nds_read_b32 v29, v28 offset:20\ns_waitcnt lgkmcnt(0)\nv_readfirstlane_b32 s40, v29\ns_cmp_ge_u32 s40, 4\ns_cbranch_scc1 L_kw1\ns_sleep 16\ns_branch L_kw\nL_kw1:")
    e(f"v_mov_b32 v28, {L_PX}\nds_read_b128 v[48:51], v28 offset:16\nds_read_b32 v52, v28 offset:4\ns_lshl_b32 s40, s51, 1\ns_add_u32 s40, s40, s48\ns_lshl_b32 s40, s40, 6\ns_add_u32 s40, s40, {WS_KD}\nv_mov_b32 v29, 0\ns_waitcnt lgkmcnt(0)")
    e("v_max_f32 v48, v48, v49\nv_max3_f32 v48, v48, v50, v51\nv_mov_b32 v49, v52\nv_mov_b32 v50, s56\nv_mov_b32 v51, s57\ns_mov_b64 exec, 1\nbuffer_store_dwordx4 v[48:51], v29, s[12:15], s40 offen sc1\ns_xor_b32 s40, s40, 64\ns_mov_b32 s66, 0")
    e("L_kp:\nbuffer_load_dwordx4 v[52:55], v29, s[12:15], s40 offen sc1\ns_waitcnt vmcnt(0)\nv_xor_b32 v54, s56, v54\nv_xor_b32 v55, s57, v55\nv_or_b32 v54, v54, v55\nv_cmp_ne_u32 vcc, 0, v54\ns_cbranch_vccz L_kp1\ns_add_u32 s66, s66, 1\ns_cmp_gt_u32 s66, 400000\ns_cbranch_scc1 L_kp1\ns_sleep 8\ns_branch L_kp")
    e("L_kp1:\nv_mov_b32 v53, v52\nv_mov_b32 v52, 1\nds_write_b64 v28, v[52:53] offset:8\ns_mov_b64 exec, -1\nL_nokd:")
    if steal:
        e("s_cmp_lg_u32 s3, 2\ns_cbranch_scc1 L_nosk")
        wait_progress("L_sw", NS + 4)
        e(f"s_add_u32 s82, s82, 1\ns_addc_u32 s83, s83, 0\ns_xor_b32 s40, s51, 1\ns_lshl_b32 s41, s40, 7\ns_add_u32 s41, s41, {WS_KD}\nv_mov_b32 v29, 0\nv_mov_b32 v28, {L_PX}\ns_mov_b64 exec, 1\ns_mov_b32 s66, 0")
        e("L_sp:\nbuffer_load_dwordx4 v[48:51], v29, s[12:15], s41 offen sc1\nbuffer_load_dwordx4 v[52:55], v29, s[12:15], s41 offen offset:64 sc1\ns_waitcnt vmcnt(0)")
        e("v_xor_b32 v50, s82, v50\nv_xor_b32 v51, s83, v51\nv_xor_b32 v54, s82, v54\nv_xor_b32 v55, s83, v55\nv_or3_b32 v50, v50, v51, v54\nv_or_b32 v50, v50, v55\nv_cmp_ne_u32 vcc, 0, v50\ns_cbranch_vccz L_sp1\ns_add_u32 s66, s66, 1\ns_cmp_gt_u32 s66, 64\ns_cbranch_scc1 L_sp2\ns_sleep 32\ns_branch L_sp")
        e("L_sp1:\nv_max_f32 v50, v48, v52\nv_mov_b32 v48, 1\nds_write_b32 v28, v50 offset:36\nds_write_b32 v28, v49 offset:40\ns_waitcnt lgkmcnt(0)\nds_write_b32 v28, v48 offset:32\nL_sp2:\ns_mov_b64 exec, -1\nL_nosk:")
    wait_progress("L_w2", NS + 3)
    if cpf and cpf2:
        e("v_and_b32 v28, 255, v0\nv_lshlrev_b32 v28, 4, v28\nv_add_u32 v29, (L_lastF-L_pc)&0xffffff80, v28\nv_add_u32 v28, (L_wf-L_pc)&0xffffff80, v28\nv_min_u32 v28, (L_end-L_pc-16)&0xfffffff0, v28")
        e("global_load_dword v61, v28, s[90:91]\nglobal_load_dword v61, v29, s[90:91]")
    e("v_lshrrev_b32 v28, 1, v1\nv_mov_b32 v29, 0")
    a.srd(16, 44, 256)
    e("s_mov_b32 s66, 0\nL_initchk:\nbuffer_load_dword v31, v29, s[16:19], 0 offen sc1\ns_waitcnt vmcnt(0)\nv_readfirstlane_b32 s64, v31\ns_cmp_ge_u32 s64, 256\ns_cbranch_scc1 L_initok\ns_add_u32 s66, s66, 1\ns_cmp_gt_u32 s66, 200000\ns_cbranch_scc1 L_initok\ns_sleep 8\ns_branch L_initchk\nL_initok:")
    if hexit == 2: e("s_endpgm")
    e(f"s_setprio 0\nv_mov_b32 v27, {L_PR}\nL_wf:\nds_read_b32 v30, v27 offset:16\ns_waitcnt lgkmcnt(0)\nv_readfirstlane_b32 s40, v30\ns_cmp_ge_u32 s40, 4\ns_cbranch_scc1 L_wf_ok\ns_sleep {wsleep}\ns_branch L_wf\nL_wf_ok:\ns_setprio {prio}")
    e(f"v_lshrrev_b32 v28, 1, v1\ns_cmp_eq_u32 s3, 0\ns_cselect_b32 s54, s54, s85\ns_mov_b32 s40, {L_OB}\ns_cselect_b32 s40, {L_OA}, s40\nv_add_u32 v30, s40, v28\ns_mov_b32 s40, {L_MLB}\ns_cselect_b32 s40, {L_ML}, s40\nv_mov_b32 v29, s40")
    a.srd(16, 34, 4096)
    fstamp(S)
    e("s_cmp_ge_u32 s3, 2\ns_cbranch_scc1 L_st2")
    e("ds_read_b128 v[48:51], v29\nds_read_b128 v[52:55], v29 offset:16")
    for w in range(4): e(f"ds_read_b64 v[{64+2*w}:{65+2*w}], v30 offset:{1024*w}")
    e("s_waitcnt lgkmcnt(4)\nv_max_f32 v56, v48, v50\nv_max3_f32 v56, v56, v52, v54")
    for w in range(4): e(f"v_sub_f32 v{58+w}, v{48+2*w}, v56")
    for w in range(4): e(f"v_mul_f32 v{58+w}, {LOG2E}, v{58+w}")
    for w in range(4): e(f"v_exp_f32 v{58+w}, v{58+w}")
    e("s_waitcnt lgkmcnt(0)\nv_mul_f32 v57, v58, v49\nv_mul_f32 v64, v64, v58\nv_mul_f32 v65, v65, v58")
    for w in range(1, 4): e(f"v_fmac_f32 v57, v{58+w}, v{49+2*w}\nv_fmac_f32 v64, v{64+2*w}, v{58+w}\nv_fmac_f32 v65, v{65+2*w}, v{58+w}")
    e("v_min_u32 v64, -2, v64\nv_min_u32 v65, -2, v65\nv_min_u32 v56, -2, v56\nv_min_u32 v57, -2, v57")
    e("buffer_store_dwordx2 v[64:65], v28, s[12:15], s54 offen sc1\ns_mov_b64 exec, 1\nbuffer_store_dwordx2 v[56:57], v28, s[12:15], s54 offen offset:512 sc1\ns_mov_b64 exec, -1")
    fstamp(S)
    e("L_st2:")
    poll("L_p1", ["buffer_load_dwordx4 v[64:67], v35, s[12:15], s88 offen sc1", "buffer_load_dwordx4 v[68:71], v35, s[12:15], s88 offen offset:16 sc1",
                  "buffer_load_dwordx2 v[56:57], v34, s[12:15], s88 offen offset:512 sc1"], [f"v{i}" for i in range(64, 72)] + ["v56", "v57"], slp=lsleep)
    e("v_mov_b32 v58, v56\nv_mov_b32 v59, v56\ns_nop 1\nv_permlane16_swap_b32 v58, v59\ns_nop 0\nv_max_f32 v58, v58, v59\nv_mov_b32 v59, v58\ns_nop 1\nv_permlane32_swap_b32 v58, v59\ns_nop 0\nv_max_f32 v58, v58, v59")
    e(f"v_sub_f32 v56, v56, v58\nv_mul_f32 v56, {LOG2E}, v56\nv_exp_f32 v56, v56\ns_nop 0\nv_mul_f32 v57, v57, v56")
    for k in range(8): e(f"v_mul_f32 v{64+k}, v{64+k}, v56")
    e("v_mov_b32 v59, v57\ns_nop 0")
    for k in range(4): e(f"v_permlane32_swap_b32 v{64+k}, v{68+k}")
    e("v_permlane16_swap_b32 v57, v59")
    for k in range(4): e(f"v_add_f32 v{64+k}, v{64+k}, v{68+k}")
    e("v_add_f32 v57, v57, v59\nv_mov_b32 v59, v57\nv_permlane16_swap_b32 v64, v66\nv_permlane16_swap_b32 v65, v67\nv_permlane32_swap_b32 v57, v59\ns_nop 0")
    e("v_add_f32 v57, v57, v59\nv_rcp_f32 v57, v57\nv_add_f32 v64, v64, v66\nv_add_f32 v65, v65, v67\nv_mul_f32 v64, v64, v57\nv_mul_f32 v65, v65, v57")
    e(f"v_cvt_pk_bf16_f32 v64, v64, v65\nds_write_b32 v4, v64 offset:{L_ON}\ns_waitcnt lgkmcnt(0)\ns_barrier")
    for ks in range(4): e(f"ds_read_b128 v[{80+4*ks}:{83+4*ks}], v5 offset:{L_ON+64*ks}")
    for ks in range(4):
        e(f"s_waitcnt lgkmcnt({3-ks})")
        e(f"v_mfma_f32_16x16x32_bf16 v[20:23], v[{80+4*ks}:{83+4*ks}], v[{112+4*ks}:{115+4*ks}], {'0' if ks == 0 else 'v[20:23]'}")
    e("s_nop 7\nv_min_u32 v20, -2, v20\nbuffer_store_dword v20, v33, s[12:15], s60 offen sc1")
    fstamp(S)
    e("s_cmp_ge_u32 s79, 256\ns_cbranch_scc1 L_glu")
    poll("L_p3", ["buffer_load_dwordx4 v[48:51], v44, s[12:15], s62 offen sc1"], [f"v{i}" for i in range(48, 52)], slp=s3sleep)
    e("s_nop 3")
    red4()
    a.rbf("v48"); e("v_add_f32 v48, v48, v39"); a.rbf("v48")
    e(f"v_min_u32 v39, -2, v48\nds_write_b32 v6, v39 offset:{L_HG}\ns_waitcnt lgkmcnt(0)\ns_barrier\ns_cmp_lg_u32 s3, 0\ns_cbranch_scc1 L_nohp")
    e(f"ds_read_b128 v[48:51], v7 offset:{L_HG}\ns_waitcnt lgkmcnt(0)\nbuffer_store_dwordx4 v[48:51], v37, s[12:15], s55 offen sc1\nL_nohp:")
    fstamp(S)
    e(f"L_glu:\ns_cmp_ge_u32 s78, {NG}\ns_cbranch_scc1 L_s5")
    poll("L_p4", ["buffer_load_dwordx4 v[48:51], v46, s[12:15], s73 offen sc1", "buffer_load_dwordx4 v[52:55], v46, s[12:15], s73 offen offset:16 sc1"], [f"v{i}" for i in range(48, 56)], slp=hsleep)
    fstamp(S)
    ln8(48, 56)
    e(f"ds_write_b128 v47, v[48:51] offset:{L_HN}")
    e("s_mov_b64 exec, -1\ns_waitcnt lgkmcnt(0)\ns_barrier")
    if gst: fstamp(S)
    for ks in range(12): e(f"ds_read_b128 v[{64+4*ks}:{67+4*ks}], v43 offset:{L_HN+64*ks}")
    for ks in range(12, 16): e(f"ds_read_b128 v[{224+4*(ks-12)}:{227+4*(ks-12)}], v43 offset:{L_HN+64*ks}")
    for ks in range(16):
        e(f"s_waitcnt lgkmcnt({15-ks})")
        c = "0" if ks < 2 else f"v[{20+4*(ks&1)}:{23+4*(ks&1)}]"
        ar = 64 + 4 * ks if ks < 12 else 224 + 4 * (ks - 12)
        e(f"v_mfma_f32_16x16x32_bf16 v[{20+4*(ks&1)}:{23+4*(ks&1)}], v[{ar}:{ar+3}], v[{128+4*ks}:{131+4*ks}], {c}")
    e("s_mov_b64 exec, 0xffff\ns_nop 6")
    for r in range(4): e(f"v_add_f32 v{20+r}, v{20+r}, v{24+r}\nds_write_b32 v40, v{20+r} offset:{L_AC+128*r}")
    e("s_mov_b64 exec, -1\ns_waitcnt lgkmcnt(0)\ns_barrier")
    if gst: fstamp(S)
    e(f"ds_read_b64 v[20:21], v41 offset:{L_AC}\nds_read_b64 v[22:23], v41 offset:{L_AC+512}\ns_waitcnt lgkmcnt(1)")
    e("v_cvt_pk_bf16_f32 v20, v20, v21\nv_and_b32 v21, 0xffff0000, v20\nv_lshlrev_b32 v20, 16, v20\nv_mul_f32 v21, 0xbfb8aa3b, v21\nv_mul_f32 v20, 0xbfb8aa3b, v20\nv_exp_f32 v21, v21\nv_exp_f32 v20, v20")
    e("s_waitcnt lgkmcnt(0)\nv_cvt_pk_bf16_f32 v22, v22, v23\nv_add_f32 v21, 1.0, v21\nv_add_f32 v20, 1.0, v20\nv_rcp_f32 v21, v21\nv_rcp_f32 v20, v20\nv_and_b32 v23, 0xffff0000, v22\nv_lshlrev_b32 v22, 16, v22")
    e("v_cvt_pk_bf16_f32 v20, v20, v21\nv_and_b32 v21, 0xffff0000, v20\nv_lshlrev_b32 v20, 16, v20\nv_mul_f32 v21, v21, v23\nv_mul_f32 v20, v20, v22\nv_cvt_pk_bf16_f32 v36, v20, v21\ns_nop 1")
    for q in range(4): e(f"v_mov_b32_dpp v{32+q}, v36 quad_perm:[{q},{q},{q},{q}] row_mask:0xf bank_mask:0xf")
    e("s_nop 1")
    for j in range(8):
        e(f"v_mfma_f32_16x16x32_bf16 v[{64+4*j}:{67+4*j}], v[32:35], v[{192+4*j}:{195+4*j}], 0")
    e("s_nop 0")
    for j in range(4): e(f"v_min_u32 v{96+j}, -2, v{64+4*j}")
    e("s_nop 0\nbuffer_store_dwordx4 v[96:99], v42, s[12:15], s59 offen sc1")
    for j in range(4, 8): e(f"v_min_u32 v{96+j}, -2, v{64+4*j}")
    e("buffer_store_dwordx4 v[100:103], v42, s[12:15], s59 offen offset:256 sc1")
    fstamp(S)
    e("L_s5:\ns_cmp_ge_u32 s79, 256\ns_cbranch_scc1 L_fin")
    for j in range(8): e(f"v_mov_b32 v{48+j}, 0")
    e(f"s_mov_b32 exec_lo, -1\ns_mov_b32 exec_hi, {(1 << (NG - 32)) - 1:#x}")
    poll("L_p6", ["buffer_load_dwordx4 v[48:51], v45, s[12:15], s63 offen sc1", "buffer_load_dwordx4 v[52:55], v45, s[12:15], s63 offen offset:16 sc1"], [f"v{i}" for i in range(48, 56)], slp=s5sleep)
    e("s_nop 3")
    for i in range(4): e(f"v_permlane32_swap_b32 v{48+i}, v{52+i}")
    e("s_nop 1")
    for i in range(4): e(f"v_add_f32 v{48+i}, v{48+i}, v{52+i}")
    e("s_nop 0")
    red4()
    a.rbf("v48"); e("v_add_f32 v48, v48, v39\nv_cvt_pk_bf16_f32 v48, v48, v48\ns_mov_b32 exec_lo, 0x1111\ns_mov_b32 exec_hi, 0x1111")
    e("buffer_store_short v48, v38, s[16:19], s67 offen")
    fstamp(S)
    e("L_fin:")
    e("s_cmp_lg_u32 s3, 0\ns_cbranch_scc1 L_end")
    e("s_cmp_lg_u32 s58, 0\ns_cbranch_scc1 L_noep\ns_mov_b64 exec, 1\nv_mov_b32 v48, s56\nv_mov_b32 v49, s57\nv_mov_b32 v50, 0\nbuffer_store_dwordx2 v[48:49], v50, s[12:15], s76 offen sc1\nL_noep:")
    fstamp_store(S, 65536)
    e("L_end:\ns_endpgm")
    e('.section .rodata,"a"\n.p2align 6')
    a.descriptor(KN, 256, 96, accum=256)
    return a.text()

if __name__ == "__main__":
    import os, json
    os.makedirs("v15", exist_ok=True)
    names = []
    for spec in sys.argv[1:]:
        kw = {}
        if spec != "base":
            for p in spec.split(","):
                k, v = p.split("=")
                kw[k] = v.replace("+", " ") if k in ("wf", "wqf", "kf", "vf") else int(v)
        fn = "v15/v15_" + spec.replace(",", "_").replace("=", "") + ".s"
        open(fn, "w").write(gen(**kw))
        names.append(fn)
    print(" ".join(names))
    base = ["work/bench.py", "work/fst9.py", "sequential_preLN__mha_block_cached__glu_gated_glu__decode_np.py", "cdna_kernels/cdna_launch.py", "cdna_kernels/cdna_unwritten_srd_check.py", "work/pair/pair_NS10.s"]
    print(json.dumps(base + ["work/" + f for f in names]))
```

```python
import sys
from asmlib import *
WSZ = 0x40000000
WS_O, WS_Y, WS_H, WS_D, WS_Q, WS_EP, WS_TK, WS_KD, WS_ST, WS_SG = 0x000000, 0x080000, 0x100000, 0x110000, 0x180000, 0x280000, 0x290000, 0x2a0000, 0x300000, 0x400000
NG = 56
LOG2E = "0x3fb8aa3b"
L_XD = 0
L_QP = 8192
L_OA = 10240
L_ML = 14336
L_PX = 19584
L_PR = 14368
L_HN = 14400
L_AC = 18560
L_ON = 0
L_HG = 1152
L_QP2 = 19584
L_OB = L_QP2 + 2048
L_MLB = L_OB + 4096
L_SC = L_MLB + 64
L_TR = L_SC + 4 * 18 * 256
L_GU = L_TR + 16384
LDS_BYTES = L_GU + 65536

DOC = '''; One fused launch: 256 workgroups (one per CU) x 8 waves.  Written by a generator script (work/gen_v15.py).
'''

def gen(stamps=0, sleep=2, wf="nt", wqf="", prio=3, lsleep=2, thr=32, NS=12, qsleep=4, kfirst=0, hexit=0, dyn=1, s5sleep=1, s3sleep=1, hsleep=1,
        gst=0, D=16, kf="nt", vf="nt", GT=24, wsleep=1, abl=0, steal=1, cpf=0, cpf2=0, comp=2, asc=0, dbgt=0, kdyn=1):
    NM4 = 4 * (32 - 2 * NS)
    a = Asm(); e = a.e
    KN = NAME + "_kernel"
    e(HEADER_COMMENT.rstrip("\n"))
    e(DOC.rstrip("\n"))
    e(f"; @launch grid=(256,1,1) block=(512,1,1) lds={LDS_BYTES}")
    e('.amdgcn_target "amdgcn-amd-amdhsa--gfx950"\n.text')
    a.kernel_begin(KN)
    def fstamp(reg="v62"):
        if stamps:
            e(f"s_memrealtime s[68:69]\ns_waitcnt lgkmcnt(0)\nv_writelane_b32 {reg}, s68, m0\ns_add_u32 m0, m0, 1")
    def fstamp_store(reg, off):
        if stamps:
            e(f"s_mov_b64 exec, -1\nv_and_b32 v2, 63, v0\nv_lshlrev_b32 v2, 2, v2\ns_lshl_b32 s41, s2, 8\ns_add_u32 s41, s41, {WS_ST+off}\nbuffer_store_dword {reg}, v2, s[12:15], s41 offen sc1")
    def dstamp(word, inv=False):
        if dbgt:
            e("s_memrealtime s[94:95]\ns_waitcnt lgkmcnt(0)")
            if inv: e("s_not_b32 s94, s94")
            e(f"s_atomic_umax s94, s[44:45], {4*word}")
    def allsum(v, t, op="add"):
        e("s_nop 1")
        for ctl in ("quad_perm:[1,0,3,2]", "quad_perm:[2,3,0,1]", "row_half_mirror", "row_mirror"):
            e(f"v_{op}_f32_dpp {v}, {v}, {v} {ctl} row_mask:0xf bank_mask:0xf\ns_nop 1")
        e(f"v_mov_b32 {t}, {v}\ns_nop 1\nv_permlane16_swap_b32 {v}, {t}\ns_nop 1\nv_{op}_f32 {v}, {v}, {t}\nv_mov_b32 {t}, {v}\ns_nop 1\nv_permlane32_swap_b32 {v}, {t}\ns_nop 1\nv_{op}_f32 {v}, {v}, {t}")
    def ln8(X, T):
        s1, s2, t1, t2, u = (f"v{T+i}" for i in range(5))
        e(f"v_readfirstlane_b32 s40, v{X}\ns_nop 1")
        e(f"v_subrev_f32 {s1}, s40, v{X}\nv_mul_f32 {s2}, {s1}, {s1}")
        for i in range(1, 8):
            e(f"v_subrev_f32 {u}, s40, v{X+i}\nv_add_f32 {s1}, {s1}, {u}\nv_fmac_f32 {s2}, {u}, {u}")
        e("s_nop 0")
        for ctl in ("quad_perm:[1,0,3,2]", "quad_perm:[2,3,0,1]", "row_half_mirror", "row_mirror"):
            e(f"v_add_f32_dpp {s1}, {s1}, {s1} {ctl} row_mask:0xf bank_mask:0xf\nv_add_f32_dpp {s2}, {s2}, {s2} {ctl} row_mask:0xf bank_mask:0xf\ns_nop 0")
        for sw in ("v_permlane16_swap_b32", "v_permlane32_swap_b32"):
            e(f"v_mov_b32 {t1}, {s1}\nv_mov_b32 {t2}, {s2}\ns_nop 0\n{sw} {s1}, {t1}\n{sw} {s2}, {t2}\ns_nop 0\nv_add_f32 {s1}, {s1}, {t1}\nv_add_f32 {s2}, {s2}, {t2}")
        e(f"v_mul_f32 {s1}, 0x3b000000, {s1}\nv_mul_f32 {s2}, 0x3b000000, {s2}\nv_fma_f32 {s2}, -{s1}, {s1}, {s2}\nv_max_f32 {s2}, 0, {s2}\nv_add_f32 {s1}, s40, {s1}")
        a.rbf(s2); a.rbf(s1)
        e(f"v_add_f32 {s2}, 0x3727c5ac, {s2}"); a.rbf(s2)
        e(f"v_sqrt_f32 {s2}, {s2}")
        for i in range(8): e(f"v_sub_f32 v{X+i}, v{X+i}, {s1}")
        a.rbf(s2)
        e(f"v_rcp_f32 {s2}, {s2}")
        for i in range(4): e(f"v_cvt_pk_bf16_f32 v{X+2*i}, v{X+2*i}, v{X+2*i+1}")
        for i in range(4): e(f"v_and_b32 v{X+2*i+1}, 0xffff0000, v{X+2*i}\nv_lshlrev_b32 v{X+2*i}, 16, v{X+2*i}")
        for i in range(8): e(f"v_mul_f32 v{X+i}, v{X+i}, {s2}")
        for i in range(4): e(f"v_cvt_pk_bf16_f32 v{X+i}, v{X+2*i}, v{X+2*i+1}")
    def masks():
        for r in range(4):
            e(f"v_mov_b32 v{8+r}, 0\nv_mov_b32 v28, 0xffff\nv_cmp_eq_u32 vcc, {2*r}, v3\ns_nop 1\nv_cndmask_b32 v{8+r}, v{8+r}, v28, vcc")
            e(f"v_mov_b32 v28, 0xffff0000\nv_cmp_eq_u32 vcc, {2*r+1}, v3\ns_nop 1\nv_cndmask_b32 v{8+r}, v{8+r}, v28, vcc")
    cnt = {12: 0, 24: 0}
    def gsync(off):
        cnt[off] += 1
        L = a.label("L_gs")
        e(f"v_mov_b32 v28, {L_PR}\nv_mov_b32 v29, 1\ns_mov_b64 exec, 1\ns_waitcnt lgkmcnt(0)\nds_add_u32 v28, v29 offset:{off}\n{L}:\nds_read_b32 v29, v28 offset:{off}\ns_waitcnt lgkmcnt(0)\nv_readfirstlane_b32 s43, v29\ns_cmp_lt_u32 s43, {4*cnt[off]}\ns_cbranch_scc1 {L}\ns_mov_b64 exec, -1")
    def poll(label, loads, words, slp=None):
        e(f"s_mov_b32 s66, 0\n{label}:")
        for l in loads: e(l)
        e("s_waitcnt vmcnt(0)")
        w = list(words)
        e(f"v_max_u32 v31, {w[0]}, {w[1]}")
        w = w[2:]
        while len(w) >= 2:
            e(f"v_max3_u32 v31, v31, {w[0]}, {w[1]}"); w = w[2:]
        if w: e(f"v_max_u32 v31, v31, {w[0]}")
        e(f"v_cmp_eq_u32 vcc, -1, v31\ns_cbranch_vccz {label}_ok\ns_mov_b64 exec, vcc\ns_add_u32 s66, s66, 1\ns_cmp_gt_u32 s66, 400000\ns_cbranch_scc1 {label}_ok")
        e(f"s_sleep {slp or sleep}\ns_branch {label}\n{label}_ok:\ns_mov_b64 exec, -1")
    def red4():
        for i in range(2):
            e(f"v_add_f32_dpp v{48+i}, v{48+i}, v{48+i} row_ror:8 row_mask:0xf bank_mask:0x3")
            e(f"v_add_f32_dpp v{48+i}, v{50+i}, v{50+i} row_ror:8 row_mask:0xf bank_mask:0xc")
        e("v_add_f32_dpp v48, v48, v48 row_half_mirror row_mask:0xf bank_mask:0x5\ns_nop 0\nv_add_f32_dpp v48, v49, v49 row_half_mirror row_mask:0xf bank_mask:0xa\ns_nop 1")
        e("v_add_f32_dpp v48, v48, v48 quad_perm:[1,0,3,2] row_mask:0xf bank_mask:0xf\ns_nop 1\nv_add_f32_dpp v48, v48, v48 quad_perm:[2,3,0,1] row_mask:0xf bank_mask:0xf")
        e("v_mov_b32 v49, v48\ns_nop 1\nv_permlane16_swap_b32 v48, v49\ns_nop 1\nv_add_f32 v48, v48, v49")

    e("s_cmp_ge_u32 s2, 256\ns_cbranch_scc1 L_end")
    if stamps: e("s_mov_b32 m0, 0\nv_mov_b32 v62, 0\nv_mov_b32 v63, 0")
    e("s_load_dwordx4 s[4:7], s[0:1], 8")
    e("s_load_dwordx4 s[44:47], s[0:1], 80")
    e("s_load_dwordx2 s[20:21], s[0:1], 0")
    e("s_load_dwordx4 s[24:27], s[0:1], 24")
    e("s_load_dwordx4 s[28:31], s[0:1], 48\ns_load_dwordx4 s[32:35], s[0:1], 64")
    if cpf:
        e("s_getpc_b64 s[90:91]\nL_pc:\nv_lshlrev_b32 v4, 4, v0\nv_add_u32 v5, 8192, v4\nv_add_u32 v6, 16384, v4\nv_min_u32 v6, (L_end-L_pc-16)&0xfffffff0, v6")
        e("global_load_dword v61, v4, s[90:91]\nglobal_load_dword v61, v5, s[90:91]\nglobal_load_dword v61, v6, s[90:91]")
    e("v_and_b32 v1, 63, v0\nv_lshrrev_b32 v2, 6, v0\nv_lshlrev_b32 v1, 4, v1\nv_readfirstlane_b32 s3, v2")
    e("s_mov_b32 s36, 0xaaaaaaaa\ns_mov_b32 s37, 0xaaaaaaaa\ns_mov_b32 s38, 0xcccccccc\ns_mov_b32 s39, 0xcccccccc")
    e("s_lshr_b32 s40, s2, 1\ns_xor_b32 s41, s40, s2\ns_and_b32 s41, s41, 1\ns_and_b32 s48, s40, 1")
    e("s_bfe_u32 s40, s2, 0x10002\ns_lshl_b32 s40, s40, 1\ns_or_b32 s77, s41, s40")
    e("s_lshr_b32 s51, s2, 3\ns_lshl_b32 s51, s51, 2\ns_add_u32 s51, s51, s77\ns_and_b32 s49, s51, 31\ns_lshr_b32 s50, s2, 6")
    e("v_bfe_u32 v2, v0, 4, 2\nv_and_b32 v3, 15, v0")
    e("s_cmp_ge_u32 s3, 4\ns_cbranch_scc1 L_helper")
    fstamp()
    e("s_lshl_b32 s54, s51, 21")
    def setoff(k, dst):
        e(f"s_sub_u32 s40, 127, {k}\ns_cmp_eq_u32 s48, 0\ns_cselect_b32 s40, {k}, s40\ns_lshr_b32 s41, s40, 2\ns_lshl_b32 s41, s41, 16\ns_and_b32 s42, s40, 3\ns_lshl_b32 s42, s42, 12\ns_add_u32 {dst}, s54, s41\ns_add_u32 {dst}, {dst}, s42")
    setoff("s3", "s52")
    e("s_mov_b32 s57, s52\ns_mov_b32 s53, 0x10000\ns_cmp_eq_u32 s48, 0\ns_cselect_b32 s53, s53, 0xffff0000\ns_cselect_b32 s55, 1, 0x10000\ns_cselect_b32 s56, 0, 16")
    e("s_waitcnt lgkmcnt(0)\ns_mov_b32 s8, s6\ns_mov_b32 s9, s7")
    a.srd(4, 4, 1 << 28); a.srd(12, 46, WSZ)
    RA, RB, RC = 128, 192, 64
    FL = [kf]
    def ld(i, rb):
        if i % 4 == 0: e(f"s_add_u32 s22, s52, {(i//4)*16384}")
        e(f"buffer_load_dwordx4 v[{rb+4*i}:{rb+4*i+3}], v1, s[4:7], s22 offen offset:{(i%4)*1024} {FL[0]}")
    for blk, rb in enumerate((RA, RB, RC)):
        for i in range(16):
            if blk == 0 and i == kfirst: e("s_barrier")
            ld(i, rb)
        e("s_add_u32 s52, s52, s53")
        if stamps >= 2 and blk < 2: fstamp()
    masks()
    e("v_mov_b32 v20, 0\nv_mov_b32 v21, 0\nv_mov_b32 v22, 0\nv_mov_b32 v23, 0\nv_mov_b32 v24, 0xff7fffff\nv_mov_b32 v25, 0")
    e(f"v_lshlrev_b32 v26, 5, v3\nv_mov_b32 v27, {L_PR}\ns_mov_b32 s65, 0")
    e(f"v_and_b32 v56, 7, v0\nv_lshl_add_u32 v56, v2, 5, v56\nv_bfe_u32 v29, v0, 3, 1\nv_lshl_add_u32 v56, v29, 7, v56\nv_lshlrev_b32 v56, 2, v56\ns_lshl_b32 s40, s3, 10\nv_add_u32 v56, s40, v56\ns_lshl_b32 s40, s3, 3\nv_mov_b32 v57, s40")
    for r in range(4): e(f"ds_write_b32 v56, v20 offset:{L_OB+32*r}")
    e(f"ds_write_b64 v57, v[24:25] offset:{L_MLB}\nv_add_u32 v56, {L_OA}, v56\nv_add_u32 v57, {L_ML}, v57\ns_mov_b32 s87, 0")
    e(f"s_mul_i32 s40, s3, {18*256}\nv_lshrrev_b32 v60, 2, v1\nv_add_u32 v58, s40, v60\nv_mov_b32 v59, v58")
    e(f"s_lshl_b32 s40, s51, 8\ns_add_u32 s40, s40, {WS_TK}\ns_add_u32 s74, s46, s40\ns_addc_u32 s75, s47, 0\ns_lshl_b32 s73, s51, 15\ns_add_u32 s73, s73, {WS_SG}\nv_mov_b32 v61, {L_PX}")
    fstamp()
    e("s_barrier")
    e("ds_read_b64 v[28:29], v61")
    for w in range(4):
        rb = (32, 40, 48, 12)[w]
        e(f"ds_read_b128 v[{rb}:{rb+3}], v26 offset:{L_QP+512*w}\nds_read_b128 v[{rb+4}:{rb+7}], v26 offset:{L_QP+512*w+16}")
    e("s_waitcnt lgkmcnt(0)")
    for j in range(8):
        e(f"v_add_f32 v{32+j}, v{32+j}, v{40+j}\nv_add_f32 v{48+j}, v{48+j}, v{12+j}\nv_add_f32 v{32+j}, v{32+j}, v{48+j}")
    for j in range(4): e(f"v_cvt_pk_bf16_f32 v{4+j}, v{32+2*j}, v{33+2*j}")
    e("v_readfirstlane_b32 s71, v28\nv_readfirstlane_b32 s70, v29")
    def A(i): return f"v{32+i}"
    def kblk(src, wait, issue, glob=False):
        fstamp()
        for i in range(16):
            e(f"s_waitcnt vmcnt({wait(i)})")
            for j in range(4):
                e(f"v_dot2_f32_bf16 {A(i)}, v{src+4*i+j}, v{4+j}, {'0' if j == 0 else A(i)}")
            issue(i)
        for i in range(8):
            e(f"v_add_f32_dpp {A(i)}, {A(i)}, {A(i)} row_ror:8 row_mask:0xf bank_mask:0x3")
            e(f"v_add_f32_dpp {A(i)}, {A(i+8)}, {A(i+8)} row_ror:8 row_mask:0xf bank_mask:0xc")
        for i in range(4):
            e(f"v_add_f32_dpp {A(i)}, {A(i)}, {A(i)} row_half_mirror row_mask:0xf bank_mask:0x5")
            e(f"v_add_f32_dpp {A(i)}, {A(i+4)}, {A(i+4)} row_half_mirror row_mask:0xf bank_mask:0xa")
        e(f"v_cndmask_b32 v28, {A(1)}, {A(0)}, s[36:37]\nv_cndmask_b32 v29, {A(0)}, {A(1)}, s[36:37]")
        e(f"v_cndmask_b32 v30, {A(3)}, {A(2)}, s[36:37]\nv_cndmask_b32 v31, {A(2)}, {A(3)}, s[36:37]")
        e("v_add_f32_dpp v29, v28, v29 quad_perm:[1,0,3,2] row_mask:0xf bank_mask:0xf")
        e("v_add_f32_dpp v31, v30, v31 quad_perm:[1,0,3,2] row_mask:0xf bank_mask:0xf")
        e("v_cndmask_b32 v28, v31, v29, s[38:39]\nv_cndmask_b32 v30, v29, v31, s[38:39]\ns_nop 0")
        e("v_add_f32_dpp v30, v28, v30 quad_perm:[2,3,0,1] row_mask:0xf bank_mask:0xf")
        a.rbf("v30"); e("v_mul_f32 v30, 0x3db504f3, v30"); a.rbf("v30")
        e("v_max_f32 v24, v30, v24")
        if glob: e("buffer_store_dword v30, v60, s[12:15], s58 offen sc1")
        else:
            e(f"ds_write_b32 v58, v30 offset:{L_SC}\nv_add_u32 v58, 256, v58")
            e("s_add_u32 s65, s65, 1\nv_mov_b32 v26, s65\nds_max_u32 v27, v26")
    def vblk(src, wait, issue, pre):
        fstamp()
        e(f"v_sub_f32 v30, v31, v24\nv_mul_f32 v30, {LOG2E}, v30\nv_exp_f32 v30, v30")
        pre()
        e("s_nop 0\nv_add_f32 v25, v25, v30\nv_cvt_pk_bf16_f32 v30, v30, v30\ns_nop 1")
        for i in range(16):
            bb = 12 + 4 * (i & 1)
            for r in range(4):
                e(f"v_and_b32_dpp v{bb+r}, v30, v{8+r} row_newbcast:{i} row_mask:0xf bank_mask:0xf")
            e(f"s_waitcnt vmcnt({wait(i)})\ns_nop 0")
            e(f"v_mfma_f32_16x16x32_bf16 v[20:23], v[{src+4*i}:{src+4*i+3}], v[{bb}:{bb+3}], v[20:23]")
            issue(i)
    none = lambda i: None
    def ask(off): e(f"s_mov_b32 s72, s55\ns_atomic_add s72, s[74:75], {off} glc")
    def decode(base, fail):
        e(f"s_waitcnt lgkmcnt(0)\ns_sub_u32 s72, s72, {base}\ns_and_b32 s42, s72, 0xffff\ns_lshr_b32 s43, s72, 16\ns_add_u32 s42, s42, s43\ns_cmp_ge_u32 s42, {NM4}\ns_cbranch_scc1 {fail}")
        e(f"s_lshr_b32 s72, s72, s56\ns_and_b32 s72, s72, 0xffff\ns_add_u32 s72, s72, {4*NS}")
        setoff("s72", "s52")
        e("s_lshl_b32 s59, s40, 8\ns_add_u32 s59, s59, s73")
    kblk(RA, lambda i: 47, lambda i: ld(i, RA))
    kblk(RB, lambda i: 47 - i, none)
    kblk(RC, lambda i: 31 - i, none)
    if kdyn:
        e(f"L_k:\ns_add_u32 s52, s52, s53\ns_cmp_lg_u32 s65, {NS-2}\ns_cbranch_scc1 L_k2")
        ask(0)
        e("L_k2:")
        kblk(RA, lambda i: 15, lambda i: ld(i, RA))
        e(f"s_cmp_lt_u32 s65, {NS-1}\ns_cbranch_scc1 L_k\ns_mov_b32 s86, 0")
        decode("s71", "L_kl0")
        ask(0)
        e("s_mov_b32 s86, 1\ns_branch L_kl1\nL_kl0:\ns_mov_b32 s52, s57\ns_mov_b32 s4, s8\ns_mov_b32 s5, s9\nL_kl1:")
        kblk(RA, lambda i: 15, lambda i: ld(i, RA))
        e("s_cmp_eq_u32 s86, 0\ns_cbranch_scc1 L_kdone")
        e("L_kd:\ns_mov_b32 s58, s59\ns_mov_b32 s86, 0")
        decode("s71", "L_kd0")
        ask(0)
        e("s_mov_b32 s86, 1\ns_branch L_kd1\nL_kd0:\ns_mov_b32 s52, s57\ns_mov_b32 s4, s8\ns_mov_b32 s5, s9\nL_kd1:")
        kblk(RA, lambda i: 15, lambda i: ld(i, RA), glob=True)
        e("s_cmp_lg_u32 s86, 0\ns_cbranch_scc1 L_kd\nL_kdone:")
    else:
        e("L_k:\ns_add_u32 s52, s52, s53")
        kblk(RA, lambda i: 15, lambda i: ld(i, RA))
        e(f"s_cmp_lt_u32 s65, {NS}\ns_cbranch_scc1 L_k\ns_add_u32 s72, s3, {4*NS}")
        setoff("s72", "s58")
        e(f"s_lshl_b32 s58, s40, 8\ns_add_u32 s58, s58, s73\ns_ashr_i32 s59, s53, 6\ns_mov_b32 s64, {NS}")
        e("L_kd:\ns_add_u32 s52, s52, s53\ns_cmp_lt_u32 s64, 15\ns_cbranch_scc1 L_kd1\ns_mov_b32 s52, s57\ns_mov_b32 s4, s8\ns_mov_b32 s5, s9\nL_kd1:")
        kblk(RA, lambda i: 15, lambda i: ld(i, RA), glob=True)
        e("s_add_u32 s58, s58, s59\ns_add_u32 s64, s64, 1\ns_cmp_lt_u32 s64, 16\ns_cbranch_scc1 L_kd")
    allsum("v24", "v29", "max")
    e(f"s_lshl_b32 s40, s3, 2\nv_add_u32 v28, s40, v61\nds_write_b32 v28, v24 offset:16\ns_waitcnt lgkmcnt(0)\nds_read_b32 v31, v59 offset:{L_SC}\nv_add_u32 v59, 256, v59\ns_mov_b32 s64, 0")
    FL[0] = vf
    def pre_own(): e(f"ds_read_b32 v31, v59 offset:{L_SC}\nv_add_u32 v59, 256, v59")
    e(f"L_v:\ns_add_u32 s52, s52, s53\ns_waitcnt lgkmcnt(0)\ns_cmp_lg_u32 s64, {NS-2}\ns_cbranch_scc1 L_v2")
    e("L_vw:\nds_read_b128 v[32:35], v61\nds_read_b128 v[36:39], v61 offset:16\ns_waitcnt lgkmcnt(0)\nv_readfirstlane_b32 s40, v34\ns_cmp_lg_u32 s40, 0\ns_cbranch_scc1 L_vw1\ns_sleep 8\ns_branch L_vw\nL_vw1:")
    e(f"v_max3_f32 v35, v35, v36, v37\nv_max3_f32 v35, v35, v38, v39\nv_sub_f32 v29, v24, v35\nv_mul_f32 v29, {LOG2E}, v29\nv_exp_f32 v29, v29\nv_mov_b32 v24, v35\nv_mul_f32 v25, v25, v29")
    for r in range(4): e(f"v_mul_f32 v{20+r}, v{20+r}, v29")
    ask(4)
    e("L_v2:")
    vblk(RA, lambda i: 15, lambda i: ld(i, RA), pre_own)
    e("s_add_u32 s64, s64, 1\ns_add_u32 s65, s65, 1\nv_mov_b32 v26, s65\nds_max_u32 v27, v26\ns_cmp_lg_u32 s64, 1\ns_cbranch_scc1 L_v3")
    e("v_mov_b32 v26, 1\ns_mov_b64 exec, 1\nds_add_u32 v27, v26 offset:20\ns_mov_b64 exec, -1\nL_v3:")
    e(f"s_cmp_lt_u32 s64, {NS-1}\ns_cbranch_scc1 L_v")
    e("L_vd:")
    decode("s70", "L_vlast")
    ask(4)
    def pre_sh(): e("buffer_load_dword v31, v60, s[12:15], s59 offen sc1")
    vblk(RA, lambda i: 15, lambda i: ld(i, RA), pre_sh)
    e("s_waitcnt vmcnt(16)\ns_branch L_vd\nL_vlast:")
    if steal:
        e("s_mov_b32 s86, 0\ns_cmp_lg_u32 s87, 0\ns_cbranch_scc1 L_nosib\nds_read_b128 v[48:51], v61 offset:32\ns_waitcnt lgkmcnt(0)\nv_readfirstlane_b32 s40, v48\nv_readfirstlane_b32 s70, v50\ns_cmp_eq_u32 s40, 0\ns_cbranch_scc1 L_nosib")
        e("s_xor_b32 s74, s74, 256\ns_xor_b32 s54, s54, 0x200000\ns_xor_b32 s73, s73, 0x8000")
        ask(4)
        e("s_mov_b32 s86, 1\nL_nosib:")
    vblk(RA, lambda i: 15 - i, none, lambda: None)
    fstamp()
    allsum("v25", "v29")
    for r in range(4): e(f"ds_write_b32 v56, v{20+r} offset:{32*r}")
    e("ds_write_b64 v57, v[24:25]")
    if steal:
        e("s_cmp_eq_u32 s86, 0\ns_cbranch_scc1 L_done")
        decode("s70", "L_done")
        pre_sh()
        for i in range(16): ld(i, RA)
        e(f"s_mov_b32 s87, 1\nv_add_u32 v56, {L_OB-L_OA}, v56\nv_add_u32 v57, {L_MLB-L_ML}, v57")
        ask(4)
        e("v_mov_b32 v20, 0\nv_mov_b32 v21, 0\nv_mov_b32 v22, 0\nv_mov_b32 v23, 0\nv_mov_b32 v24, v49\nv_mov_b32 v25, 0\ns_waitcnt vmcnt(16)\ns_branch L_vd\nL_done:")
    e("v_mov_b32 v26, 1\ns_mov_b64 exec, 1\ns_waitcnt lgkmcnt(0)\nds_add_u32 v27, v26 offset:16\ns_mov_b64 exec, -1")
    e("L_sfin:")
    if stamps:
        e("s_cmp_lg_u32 s3, 0\ns_cbranch_scc1 L_end")
        fstamp_store("v62", 0)
    e("s_endpgm")
    e("L_helper:")
    S = "v63"
    fstamp(S)
    e("s_sub_u32 s3, s3, 4")
    if prio: e(f"s_setprio {prio}")
    e("s_lshl_b32 s58, s50, 1\ns_add_u32 s58, s58, s48")
    e("v_lshlrev_b32 v26, 13, v2\nv_lshl_add_u32 v26, v3, 4, v26")
    e(f"v_mov_b32 v20, 0\nv_mov_b32 v21, 0\nv_mov_b32 v22, 0\nv_mov_b32 v23, 0\nv_mov_b32 v28, {L_PR}\nds_write_b128 v28, v[20:23]\nds_write_b128 v28, v[20:23] offset:16")
    e("s_lshl_b32 s40, s49, 8\ns_lshl_b32 s41, s58, 19\ns_add_u32 s40, s40, s41\ns_lshl_b32 s41, s3, 17\ns_add_u32 s40, s40, s41")
    e("s_lshl_b32 s41, s3, 10\ns_waitcnt lgkmcnt(0)")
    if dbgt:
        e("s_cmp_lg_u32 s3, 0\ns_cbranch_scc1 L_d0"); dstamp(2, True); e("L_d0:")
    a.srd(16, 20, 4096)
    e("buffer_load_dwordx4 v[48:51], v1, s[16:19], s41 offen")
    a.srd(16, 24, 512 * 4096 * 2)
    if abl & 8: e("s_mov_b32 s18, 0")
    if kfirst: e("s_barrier")
    for t in range(4):
        e(f"buffer_load_dwordx4 v[{64+4*t}:{67+4*t}], v26, s[16:19], s40 offen {wqf}\ns_add_u32 s40, s40, 0x8000")
    if not kfirst: e("s_barrier")
    a.srd(12, 46, WSZ)
    e(f"s_lshl_b32 s42, s49, 8\ns_add_u32 s76, s42, {WS_EP}\ns_add_u32 s42, s46, s76\ns_addc_u32 s43, s47, 0\ns_load_dwordx2 s[56:57], s[42:43], 0 glc\ns_xor_b32 s42, s42, 256\ns_load_dwordx2 s[82:83], s[42:43], 0 glc")
    e(f"s_lshl_b32 s42, s51, 8\ns_add_u32 s42, s42, {WS_TK}\ns_add_u32 s42, s46, s42\ns_addc_u32 s43, s47, 0\ns_mov_b32 s72, 0\ns_mov_b32 s73, 0\ns_cmp_lg_u32 s3, s50\ns_cbranch_scc1 L_nobase\ns_load_dwordx2 s[72:73], s[42:43], 0 glc\nL_nobase:")
    masks()
    e(f"s_lshl_b32 s67, s3, 12\ns_add_u32 s67, s67, {L_TR}\nv_add_u32 v24, s67, v1\nv_mov_b32 v28, {L_PR}")
    e("s_mov_b32 s62, 0x01000100\ns_mov_b32 s63, 0x03020302")
    e("s_lshl_b32 s40, s3, 11\nv_lshlrev_b32 v58, 1, v1\nv_add_u32 v58, s40, v58")
    e("s_lshl_b32 s41, s58, 8\ns_add_u32 s40, s40, s41\nv_lshlrev_b32 v59, 4, v3\nv_lshl_add_u32 v59, v2, 2, v59\nv_add_u32 v59, s40, v59")
    e("s_waitcnt vmcnt(4)")
    fstamp(S)
    for i in range(4):
        e(f"v_lshlrev_b32 v{40+2*i}, 16, v{48+i}\nv_and_b32 v{41+2*i}, 0xffff0000, v{48+i}")
    ln8(40, 52)
    for i in (3, 2, 1, 0): e(f"v_perm_b32 v{41+2*i}, v{40+i}, v{40+i}, s63\nv_perm_b32 v{40+2*i}, v{40+i}, v{40+i}, s62")
    e(f"ds_write_b128 v58, v[40:43] offset:{L_XD}\nds_write_b128 v58, v[44:47] offset:{L_XD+16}")
    for t in range(4): e(f"s_waitcnt vmcnt({3-t})\nds_write_b128 v24, v[{64+4*t}:{67+4*t}] offset:{1024*t}")
    fstamp(S)
    gsync(12)
    e(f"ds_read_b32 v53, v59 offset:{L_XD}")
    for t in range(16): e(f"ds_read_b128 v[{64+4*t}:{67+4*t}], v1 offset:{L_TR+1024*t}")
    e(f"s_cmp_lg_u32 s3, s50\ns_cbranch_scc1 L_nobase2\nv_mov_b32 v44, s72\nv_mov_b32 v45, s73\nv_mov_b32 v46, 0\nv_mov_b32 v47, 0\nv_mov_b32 v54, {L_PX}\nds_write_b128 v54, v[44:47]\nds_write_b32 v54, v46 offset:32\ns_waitcnt lgkmcnt(0)\nL_nobase2:")
    e("s_add_u32 s56, s56, 1\ns_addc_u32 s57, s57, 0\nv_mov_b32 v42, s56\nv_mov_b32 v43, s57\nv_mov_b32 v46, s56\nv_mov_b32 v47, s57")
    e("s_lshl_b32 s40, s49, 2\ns_add_u32 s40, s40, s3\ns_lshl_b32 s40, s40, 3\ns_add_u32 s40, s40, s58\ns_lshl_b32 s40, s40, 10")
    e(f"s_add_u32 s40, s40, {WS_Q}\nv_lshlrev_b32 v52, 8, v2\nv_lshl_add_u32 v52, v3, 4, v52\ns_waitcnt lgkmcnt(15)")
    for t in range(16):
        bb = 12 + 4 * (t & 1)
        for r in range(4):
            e(f"v_and_b32_dpp v{bb+r}, v53, v{8+r} row_newbcast:{t} row_mask:0xf bank_mask:0xf")
        e(f"s_waitcnt lgkmcnt({15-t})\ns_nop 0")
        e(f"v_mfma_f32_16x16x32_bf16 v[20:23], v[{64+4*t}:{67+4*t}], v[{bb}:{bb+3}], v[20:23]")
    e("s_lshl_b32 s61, s49, 2\ns_add_u32 s61, s61, s50\ns_lshl_b32 s61, s61, 3\ns_lshl_b32 s42, s3, 1\ns_add_u32 s61, s61, s42\ns_lshl_b32 s61, s61, 10")
    e(f"s_add_u32 s61, s61, {WS_Q}\ns_mov_b32 exec_lo, 0x00ff00ff\ns_mov_b32 exec_hi, 0x00ff00ff")
    e("v_mov_b32 v40, v20\nv_mov_b32 v41, v21\nv_mov_b32 v44, v22\nv_mov_b32 v45, v23")
    e("buffer_store_dwordx4 v[40:43], v52, s[12:15], s40 offen sc1\nbuffer_store_dwordx4 v[44:47], v52, s[12:15], s40 offen offset:128 sc1")
    e("s_mov_b64 exec, -1")
    fstamp(S)
    a.srd(16, 26, 4096 * 512 * 2)
    if abl & 1: e("s_mov_b32 s18, 0")
    if abl & 2: e("s_mov_b32 s14, 0")
    e("v_bfe_u32 v27, v0, 3, 3\nv_lshlrev_b32 v27, 10, v27\nv_and_b32 v28, 7, v0\nv_lshl_add_u32 v27, v28, 4, v27")
    e("s_lshl_b32 s40, s49, 17\ns_lshl_b32 s41, s58, 7\ns_add_u32 s40, s40, s41\ns_lshl_b32 s41, s3, 15\ns_add_u32 s40, s40, s41")
    for t in range(4): e(f"buffer_load_dwordx4 v[{96+4*t}:{99+4*t}], v27, s[16:19], s40 offen {wf}\ns_add_u32 s40, s40, 8192")
    e("v_mov_b32 v28, -1\nv_mov_b32 v29, -1\nv_mov_b32 v30, -1\nv_mov_b32 v31, -1\nv_and_b32 v27, 255, v0")
    e(f"s_lshl_b32 s40, s51, 2\ns_add_u32 s40, s40, s48\ns_lshl_b32 s54, s40, 10\ns_add_u32 s54, s54, {WS_O}\ns_xor_b32 s85, s54, 0x1800\nv_lshlrev_b32 v32, 2, v27")
    e("buffer_store_dword v28, v32, s[12:15], s54 offen sc1\nbuffer_store_dword v28, v32, s[12:15], s85 offen sc1")
    e("v_lshlrev_b32 v33, 16, v2\nv_bfe_u32 v34, v0, 3, 1\nv_lshl_add_u32 v33, v34, 10, v33\nv_and_b32 v34, 7, v0\nv_lshl_add_u32 v33, v34, 2, v33")
    e(f"s_lshl_b32 s60, s58, 13\ns_lshl_b32 s40, s3, 11\ns_add_u32 s60, s60, s40\ns_lshl_b32 s40, s49, 5\ns_add_u32 s60, s60, s40\ns_add_u32 s60, s60, {WS_Y}")
    e("buffer_store_dword v28, v33, s[12:15], s60 offen sc1")
    e("s_lshr_b32 s79, s2, 3\ns_sub_u32 s79, s79, 16\ns_lshl_b32 s79, s79, 2\ns_add_u32 s79, s79, s77\ns_lshl_b32 s79, s79, 2\ns_add_u32 s79, s79, s3\ns_cmp_eq_u32 s48, 1\ns_cselect_b32 s79, s79, 0x10000")
    e("v_bfe_u32 v36, v0, 2, 1\nv_bfe_u32 v37, v0, 3, 1\nv_lshl_add_u32 v36, v37, 1, v36\nv_bfe_u32 v37, v0, 5, 1\nv_lshl_add_u32 v36, v37, 2, v36")
    e("v_and_b32 v37, 3, v0\nv_bfe_u32 v38, v0, 4, 1\nv_lshl_add_u32 v37, v38, 2, v37\nv_lshlrev_b32 v37, 13, v37\nv_lshl_add_u32 v37, v36, 2, v37")
    e(f"s_lshl_b32 s55, s79, 5\ns_add_u32 s55, s55, {WS_H}\ns_cmp_lt_u32 s79, 256\ns_cselect_b32 s55, s55, 0x40000000\nbuffer_store_dword v28, v37, s[12:15], s55 offen sc1")
    e(f"s_lshl_b32 s59, s2, 13\ns_add_u32 s59, s59, {WS_D}\ns_cmp_lt_u32 s2, {NG}\ns_cselect_b32 s59, s59, 0x40000000\ns_add_u32 s40, s59, 4096\nv_lshlrev_b32 v27, 4, v27")
    e("buffer_store_dwordx4 v[28:31], v27, s[12:15], s59 offen sc1\nbuffer_store_dwordx4 v[28:31], v27, s[12:15], s40 offen sc1")
    a.srd(16, 20, 4096)
    e("v_lshlrev_b32 v38, 1, v36\ns_lshl_b32 s40, s79, 4\nbuffer_load_ushort v39, v38, s[16:19], s40 offen")
    e("v_and_b32 v52, 7, v0\nv_and_b32 v53, 63, v0\nv_lshlrev_b32 v53, 1, v53\nv_sub_u32 v52, v53, v52\nv_lshlrev_b32 v52, 2, v52\ns_lshl_b32 s40, s3, 9\nv_add_u32 v52, s40, v52")
    if abl & 2: e("s_mov_b32 s14, 0x40000000")
    if abl & 4: e("s_waitcnt vmcnt(0)\ns_branch L_pq_ok")
    e("s_mov_b32 s66, 0\nL_pq:")
    e("buffer_load_dwordx4 v[64:67], v1, s[12:15], s61 offen sc1\nbuffer_load_dwordx4 v[68:71], v1, s[12:15], s61 offen offset:1024 sc1\ns_waitcnt vmcnt(0)")
    e("v_xor_b32 v72, s56, v66\nv_xor_b32 v73, s57, v67\nv_xor_b32 v74, s56, v70\nv_xor_b32 v75, s57, v71\nv_or3_b32 v72, v72, v73, v74\nv_or_b32 v72, v72, v75")
    e(f"v_cmp_ne_u32 vcc, 0, v72\ns_cbranch_vccz L_pq_ok\ns_mov_b64 exec, vcc\ns_add_u32 s66, s66, 1\ns_cmp_gt_u32 s66, 400000\ns_cbranch_scc1 L_pq_ok\ns_sleep {qsleep}\ns_branch L_pq\nL_pq_ok:\ns_mov_b64 exec, -1")
    e(f"v_add_f32 v64, v64, v68\nv_add_f32 v65, v65, v69\nds_write_b32 v52, v64 offset:{L_QP}\nds_write_b32 v52, v65 offset:{L_QP+32}\ns_waitcnt lgkmcnt(0)")
    fstamp(S)
    e("s_barrier")
    if hexit == 1: e("s_endpgm")
    e(f"v_lshlrev_b32 v39, 16, v39\nv_mov_b32 v28, {L_PR}\nv_mov_b32 v29, 1\ns_mov_b64 exec, 1\nds_add_rtn_u32 v29, v28, v29 offset:4\ns_waitcnt lgkmcnt(0)\ns_mov_b64 exec, -1\nv_readfirstlane_b32 s70, v29")
    e(f"v_bfe_u32 v25, v0, 2, 2\nv_lshlrev_b32 v25, 7, v25\nv_lshl_add_u32 v25, v2, 10, v25\nv_and_b32 v28, 3, v0\nv_lshl_add_u32 v25, v28, 3, v25\ns_lshl_b32 s41, s3, 5\ns_add_u32 s41, s41, {L_TR}\nv_add_u32 v25, s41, v25")
    for t in range(4): e(f"ds_write_b128 v24, v[{96+4*t}:{99+4*t}] offset:{1024*t}")
    gsync(12)
    for ks in range(4):
        for hh in range(2):
            e(f"ds_read_b64_tr_b16 v[{112+4*ks+2*hh}:{113+4*ks+2*hh}], v25 offset:{4096*ks+512*hh}")
    def wait_progress(lbl, sreg):
        e(f"v_mov_b32 v28, {L_PR}\n{lbl}:\nds_read_b32 v29, v28\ns_waitcnt lgkmcnt(0)\nv_readfirstlane_b32 s40, v29\ns_cmp_ge_u32 s40, {sreg}\ns_cbranch_scc1 {lbl}_ok\ns_sleep 32\ns_branch {lbl}\n{lbl}_ok:")
    def glu_loads():
        a.srd(16, 32, 512 * 1792 * 2)
        e("v_lshlrev_b32 v26, 13, v2\nv_lshl_add_u32 v26, v3, 3, v26\ns_lshl_b32 s40, s78, 15\ns_lshl_b32 s41, s3, 8\ns_add_u32 s40, s40, s41")
        for ee in range(8):
            if ee == 4: e("s_add_u32 s40, s40, 4096")
            e(f"buffer_load_dwordx2 v[{64+4*ee}:{65+4*ee}], v26, s[16:19], s40 offen offset:{(ee%4)*1024} {wf}")
            e(f"buffer_load_dwordx2 v[{66+4*ee}:{67+4*ee}], v26, s[16:19], s40 offen offset:{(ee%4)*1024+128} {wf}")
        e("s_cmp_lt_u32 s3, 2\ns_cselect_b32 s42, s28, s30\ns_cselect_b32 s43, s29, s31")
        a.srd(16, 42, 512 * 1792 * 2)
        e("v_bfe_u32 v26, v0, 2, 4\nv_mul_u32_u24 v26, 3584, v26\nv_and_b32 v28, 3, v0\nv_lshl_add_u32 v26, v28, 4, v26")
        e(f"s_lshl_b32 s40, s78, 6\ns_and_b32 s41, s3, 1\ns_mul_i32 s41, s41, {256*3584}\ns_add_u32 s40, s40, s41")
        for t in range(16): e(f"buffer_load_dwordx4 v[{128+4*t}:{131+4*t}], v26, s[16:19], s40 offen {wf}\ns_add_u32 s40, s40, {16*3584}")
    e(f"s_lshr_b32 s78, s51, 1\ns_and_b32 s40, s51, 1\ns_or_b32 s40, s40, s48\ns_cmp_eq_u32 s40, 0\ns_cselect_b32 s78, s78, 255\ns_cmp_ge_u32 s78, {NG}\ns_cbranch_scc1 L_nogw")
    glu_loads()
    e("s_mov_b32 s80, 0x05040100\ns_mov_b32 s81, 0x07060302")
    e(f"s_lshl_b32 s41, s3, 14\ns_add_u32 s41, s41, {L_GU}\nv_add_u32 v24, s41, v1")
    e(f"v_bfe_u32 v25, v0, 2, 2\nv_lshlrev_b32 v25, 6, v25\nv_lshl_add_u32 v25, v2, 9, v25\nv_and_b32 v28, 3, v0\nv_lshl_add_u32 v25, v28, 3, v25")
    e(f"s_lshr_b32 s41, s3, 1\ns_lshl_b32 s41, s41, 15\ns_and_b32 s42, s3, 1\ns_lshl_b32 s42, s42, 5\ns_add_u32 s41, s41, s42\ns_add_u32 s41, s41, {L_GU}\nv_add_u32 v25, s41, v25")
    e("s_waitcnt vmcnt(16)")
    for j in range(8):
        for q in range(4):
            e(f"v_perm_b32 v{192+4*j+q}, v{64+4*(2*q+1)+(j>>1)}, v{64+4*(2*q)+(j>>1)}, {'s80' if j%2==0 else 's81'}")
    for t in range(16): e(f"s_waitcnt vmcnt({15-t})\nds_write_b128 v24, v[{128+4*t}:{131+4*t}] offset:{1024*t}")
    gsync(12)
    for ks in range(16):
        for hh in range(2):
            e(f"ds_read_b64_tr_b16 v[{128+4*ks+2*hh}:{129+4*ks+2*hh}], v25 offset:{2048*ks+256*hh}")
    e(f"s_and_b32 s40, s78, 7\ns_lshl_b32 s40, s40, 13\ns_lshl_b32 s41, s3, 11\ns_add_u32 s73, s40, s41\ns_add_u32 s73, s73, {WS_H}\nv_lshlrev_b32 v46, 1, v1")
    e(f"s_mul_i32 s40, s3, 1040\nv_add_u32 v47, s40, v1\nv_and_b32 v43, 3, v0\nv_mul_u32_u24 v43, 1040, v43\nv_lshl_add_u32 v43, v2, 4, v43")
    e("v_lshlrev_b32 v40, 2, v3\ns_lshr_b32 s40, s3, 1\ns_lshl_b32 s40, s40, 9\ns_and_b32 s41, s3, 1\ns_lshl_b32 s41, s41, 6\ns_add_u32 s40, s40, s41\nv_add_u32 v40, s40, v40")
    e("v_bfe_u32 v41, v0, 2, 2\nv_lshlrev_b32 v41, 7, v41\nv_lshl_add_u32 v41, v2, 5, v41\nv_and_b32 v61, 3, v0\nv_lshl_add_u32 v41, v61, 3, v41")
    e(f"v_lshlrev_b32 v42, 11, v2\nv_lshl_add_u32 v42, v3, 4, v42\ns_lshl_b32 s59, s78, 13\ns_lshl_b32 s40, s3, 9\ns_add_u32 s59, s59, s40\ns_add_u32 s59, s59, {WS_D}")
    e("L_nogw:")
    e("s_cmp_lg_u32 s70, 3\ns_cbranch_scc1 L_noinit\ns_bfe_u32 s41, s2, 0x20003\ns_add_u32 s41, s41, 1")
    wait_progress("L_iw", "s41")
    e("s_mov_b32 s64, 1\ns_atomic_add s64, s[44:45], 0\nL_noinit:")
    e("v_lshlrev_b32 v34, 10, v2\nv_lshl_add_u32 v35, v3, 5, v34")
    e(f"s_lshl_b32 s40, s49, 12\ns_lshl_b32 s41, s3, 17\ns_add_u32 s88, s40, s41\ns_add_u32 s88, s88, {WS_O}")
    e("v_lshlrev_b32 v4, 4, v3\nv_lshl_add_u32 v4, v2, 2, v4\nv_bfe_u32 v5, v0, 4, 1\nv_bfe_u32 v6, v0, 5, 1\nv_lshlrev_b32 v4, 4, v3\nv_lshl_add_u32 v4, v6, 3, v4\nv_lshl_add_u32 v4, v5, 2, v4\ns_mul_i32 s40, s3, 272\nv_add_u32 v4, s40, v4")
    e("v_bfe_u32 v5, v0, 2, 2\nv_mul_u32_u24 v5, 272, v5\nv_lshl_add_u32 v5, v2, 4, v5")
    e("s_lshl_b32 s40, s3, 5\nv_lshlrev_b32 v6, 2, v36\nv_add_u32 v6, s40, v6\nv_and_b32 v7, 7, v0\nv_lshlrev_b32 v7, 4, v7\nv_bfe_u32 v37, v0, 3, 3\nv_lshl_add_u32 v37, v37, 13, v7")
    e(f"s_lshl_b32 s62, s79, 10\ns_add_u32 s62, s62, {WS_Y}\nv_and_b32 v44, 31, v0\nv_lshlrev_b32 v44, 5, v44\nv_bfe_u32 v45, v0, 5, 1\nv_lshl_add_u32 v44, v45, 4, v44")
    e(f"v_lshlrev_b32 v45, 9, v1\ns_lshl_b32 s63, s79, 5\ns_add_u32 s63, s63, {WS_D}\ns_lshl_b32 s67, s79, 4")
    e(f"s_cmp_lg_u32 s3, 1\ns_cbranch_scc1 L_nokd\nv_mov_b32 v28, {L_PR}\nL_kw:\nds_read_b32 v29, v28 offset:20\ns_waitcnt lgkmcnt(0)\nv_readfirstlane_b32 s40, v29\ns_cmp_ge_u32 s40, 4\ns_cbranch_scc1 L_kw1\ns_sleep 16\ns_branch L_kw\nL_kw1:")
    dstamp(3); dstamp(6, True)
    e(f"v_mov_b32 v28, {L_PX}\nds_read_b128 v[48:51], v28 offset:16\nds_read_b32 v52, v28 offset:4\ns_lshl_b32 s40, s51, 1\ns_add_u32 s40, s40, s48\ns_lshl_b32 s40, s40, 6\ns_add_u32 s40, s40, {WS_KD}\nv_mov_b32 v29, 0\ns_waitcnt lgkmcnt(0)")
    e("v_max_f32 v48, v48, v49\nv_max3_f32 v48, v48, v50, v51\nv_mov_b32 v49, v52\nv_mov_b32 v50, s56\nv_mov_b32 v51, s57\ns_mov_b64 exec, 1\nbuffer_store_dwordx4 v[48:51], v29, s[12:15], s40 offen sc1\ns_xor_b32 s40, s40, 64\ns_mov_b32 s66, 0")
    e("L_kp:\nbuffer_load_dwordx4 v[52:55], v29, s[12:15], s40 offen sc1\ns_waitcnt vmcnt(0)\nv_xor_b32 v54, s56, v54\nv_xor_b32 v55, s57, v55\nv_or_b32 v54, v54, v55\nv_cmp_ne_u32 vcc, 0, v54\ns_cbranch_vccz L_kp1\ns_add_u32 s66, s66, 1\ns_cmp_gt_u32 s66, 400000\ns_cbranch_scc1 L_kp1\ns_sleep 8\ns_branch L_kp")
    e("L_kp1:\nv_mov_b32 v53, v52\nv_mov_b32 v52, 1\nds_write_b64 v28, v[52:53] offset:8\ns_mov_b64 exec, -1\nL_nokd:")
    if steal:
        e("s_cmp_lg_u32 s3, 2\ns_cbranch_scc1 L_nosk")
        wait_progress("L_sw", NS + 4)
        e(f"s_add_u32 s82, s82, 1\ns_addc_u32 s83, s83, 0\ns_xor_b32 s40, s51, 1\ns_lshl_b32 s41, s40, 7\ns_add_u32 s41, s41, {WS_KD}\nv_mov_b32 v29, 0\nv_mov_b32 v28, {L_PX}\ns_mov_b64 exec, 1\ns_mov_b32 s66, 0")
        e("L_sp:\nbuffer_load_dwordx4 v[48:51], v29, s[12:15], s41 offen sc1\nbuffer_load_dwordx4 v[52:55], v29, s[12:15], s41 offen offset:64 sc1\ns_waitcnt vmcnt(0)")
        e("v_xor_b32 v50, s82, v50\nv_xor_b32 v51, s83, v51\nv_xor_b32 v54, s82, v54\nv_xor_b32 v55, s83, v55\nv_or3_b32 v50, v50, v51, v54\nv_or_b32 v50, v50, v55\nv_cmp_ne_u32 vcc, 0, v50\ns_cbranch_vccz L_sp1\ns_add_u32 s66, s66, 1\ns_cmp_gt_u32 s66, 64\ns_cbranch_scc1 L_sp2\ns_sleep 32\ns_branch L_sp")
        e("L_sp1:\nv_max_f32 v50, v48, v52\nv_mov_b32 v48, 1\nds_write_b32 v28, v50 offset:36\nds_write_b32 v28, v49 offset:40\ns_waitcnt lgkmcnt(0)\nds_write_b32 v28, v48 offset:32\nL_sp2:\ns_mov_b64 exec, -1\nL_nosk:")
    wait_progress("L_w2", NS + 3)
    if cpf and cpf2:
        e("v_and_b32 v28, 255, v0\nv_lshlrev_b32 v28, 4, v28\nv_add_u32 v29, (L_lastF-L_pc)&0xffffff80, v28\nv_add_u32 v28, (L_wf-L_pc)&0xffffff80, v28\nv_min_u32 v28, (L_end-L_pc-16)&0xfffffff0, v28")
        e("global_load_dword v61, v28, s[90:91]\nglobal_load_dword v61, v29, s[90:91]")
    e("v_lshrrev_b32 v28, 1, v1\nv_mov_b32 v29, 0")
    a.srd(16, 44, 256)
    e("s_mov_b32 s66, 0\nL_initchk:\nbuffer_load_dword v31, v29, s[16:19], 0 offen sc1\ns_waitcnt vmcnt(0)\nv_readfirstlane_b32 s64, v31\ns_cmp_ge_u32 s64, 256\ns_cbranch_scc1 L_initok\ns_add_u32 s66, s66, 1\ns_cmp_gt_u32 s66, 200000\ns_cbranch_scc1 L_initok\ns_sleep 8\ns_branch L_initchk\nL_initok:")
    if hexit == 2: e("s_endpgm")
    e(f"s_setprio 0\nv_mov_b32 v27, {L_PR}\nL_wf:\nds_read_b32 v30, v27 offset:16\ns_waitcnt lgkmcnt(0)\nv_readfirstlane_b32 s40, v30\ns_cmp_ge_u32 s40, 4\ns_cbranch_scc1 L_wf_ok\ns_sleep {wsleep}\ns_branch L_wf\nL_wf_ok:\ns_setprio {prio}")
    e(f"v_lshrrev_b32 v28, 1, v1\ns_cmp_eq_u32 s3, 0\ns_cselect_b32 s54, s54, s85\ns_mov_b32 s40, {L_OB}\ns_cselect_b32 s40, {L_OA}, s40\nv_add_u32 v30, s40, v28\ns_mov_b32 s40, {L_MLB}\ns_cselect_b32 s40, {L_ML}, s40\nv_mov_b32 v29, s40")
    a.srd(16, 34, 4096)
    fstamp(S)
    if dbgt:
        e("s_cmp_lg_u32 s3, 3\ns_cbranch_scc1 L_d1"); dstamp(4); dstamp(7, True); e("L_d1:")
    e("s_cmp_ge_u32 s3, 2\ns_cbranch_scc1 L_st2")
    e("ds_read_b128 v[48:51], v29\nds_read_b128 v[52:55], v29 offset:16")
    for w in range(4): e(f"ds_read_b64 v[{64+2*w}:{65+2*w}], v30 offset:{1024*w}")
    e("s_waitcnt lgkmcnt(4)\nv_max_f32 v56, v48, v50\nv_max3_f32 v56, v56, v52, v54")
    for w in range(4): e(f"v_sub_f32 v{58+w}, v{48+2*w}, v56")
    for w in range(4): e(f"v_mul_f32 v{58+w}, {LOG2E}, v{58+w}")
    for w in range(4): e(f"v_exp_f32 v{58+w}, v{58+w}")
    e("s_waitcnt lgkmcnt(0)\nv_mul_f32 v57, v58, v49\nv_mul_f32 v64, v64, v58\nv_mul_f32 v65, v65, v58")
    for w in range(1, 4): e(f"v_fmac_f32 v57, v{58+w}, v{49+2*w}\nv_fmac_f32 v64, v{64+2*w}, v{58+w}\nv_fmac_f32 v65, v{65+2*w}, v{58+w}")
    e("v_min_u32 v64, -2, v64\nv_min_u32 v65, -2, v65\nv_min_u32 v56, -2, v56\nv_min_u32 v57, -2, v57")
    e("buffer_store_dwordx2 v[64:65], v28, s[12:15], s54 offen sc1\ns_mov_b64 exec, 1\nbuffer_store_dwordx2 v[56:57], v28, s[12:15], s54 offen offset:512 sc1\ns_mov_b64 exec, -1")
    fstamp(S)
    e("L_st2:")
    poll("L_p1", ["buffer_load_dwordx4 v[64:67], v35, s[12:15], s88 offen sc1", "buffer_load_dwordx4 v[68:71], v35, s[12:15], s88 offen offset:16 sc1",
                  "buffer_load_dwordx2 v[56:57], v34, s[12:15], s88 offen offset:512 sc1"], [f"v{i}" for i in range(64, 72)] + ["v56", "v57"], slp=lsleep)
    e("v_mov_b32 v58, v56\nv_mov_b32 v59, v56\ns_nop 1\nv_permlane16_swap_b32 v58, v59\ns_nop 0\nv_max_f32 v58, v58, v59\nv_mov_b32 v59, v58\ns_nop 1\nv_permlane32_swap_b32 v58, v59\ns_nop 0\nv_max_f32 v58, v58, v59")
    e(f"v_sub_f32 v56, v56, v58\nv_mul_f32 v56, {LOG2E}, v56\nv_exp_f32 v56, v56\ns_nop 0\nv_mul_f32 v57, v57, v56")
    for k in range(8): e(f"v_mul_f32 v{64+k}, v{64+k}, v56")
    e("v_mov_b32 v59, v57\ns_nop 0")
    for k in range(4): e(f"v_permlane32_swap_b32 v{64+k}, v{68+k}")
    e("v_permlane16_swap_b32 v57, v59")
    for k in range(4): e(f"v_add_f32 v{64+k}, v{64+k}, v{68+k}")
    e("v_add_f32 v57, v57, v59\nv_mov_b32 v59, v57\nv_permlane16_swap_b32 v64, v66\nv_permlane16_swap_b32 v65, v67\nv_permlane32_swap_b32 v57, v59\ns_nop 0")
    e("v_add_f32 v57, v57, v59\nv_rcp_f32 v57, v57\nv_add_f32 v64, v64, v66\nv_add_f32 v65, v65, v67\nv_mul_f32 v64, v64, v57\nv_mul_f32 v65, v65, v57")
    e(f"v_cvt_pk_bf16_f32 v64, v64, v65\nds_write_b32 v4, v64 offset:{L_ON}\ns_waitcnt lgkmcnt(0)\ns_barrier")
    for ks in range(4): e(f"ds_read_b128 v[{80+4*ks}:{83+4*ks}], v5 offset:{L_ON+64*ks}")
    for ks in range(4):
        e(f"s_waitcnt lgkmcnt({3-ks})")
        e(f"v_mfma_f32_16x16x32_bf16 v[20:23], v[{80+4*ks}:{83+4*ks}], v[{112+4*ks}:{115+4*ks}], {'0' if ks == 0 else 'v[20:23]'}")
    e("s_nop 7\nv_min_u32 v20, -2, v20\nbuffer_store_dword v20, v33, s[12:15], s60 offen sc1")
    fstamp(S)
    e("s_cmp_ge_u32 s79, 256\ns_cbranch_scc1 L_glu")
    poll("L_p3", ["buffer_load_dwordx4 v[48:51], v44, s[12:15], s62 offen sc1"], [f"v{i}" for i in range(48, 52)], slp=s3sleep)
    e("s_nop 3")
    red4()
    a.rbf("v48"); e("v_add_f32 v48, v48, v39"); a.rbf("v48")
    e(f"v_min_u32 v39, -2, v48\nds_write_b32 v6, v39 offset:{L_HG}\ns_waitcnt lgkmcnt(0)\ns_barrier\ns_cmp_lg_u32 s3, 0\ns_cbranch_scc1 L_nohp")
    e(f"ds_read_b128 v[48:51], v7 offset:{L_HG}\ns_waitcnt lgkmcnt(0)\nbuffer_store_dwordx4 v[48:51], v37, s[12:15], s55 offen sc1\nL_nohp:")
    fstamp(S)
    e(f"L_glu:\ns_cmp_ge_u32 s78, {NG}\ns_cbranch_scc1 L_s5")
    poll("L_p4", ["buffer_load_dwordx4 v[48:51], v46, s[12:15], s73 offen sc1", "buffer_load_dwordx4 v[52:55], v46, s[12:15], s73 offen offset:16 sc1"], [f"v{i}" for i in range(48, 56)], slp=hsleep)
    fstamp(S)
    ln8(48, 56)
    e(f"ds_write_b128 v47, v[48:51] offset:{L_HN}")
    e("s_mov_b64 exec, -1\ns_waitcnt lgkmcnt(0)\ns_barrier")
    if gst: fstamp(S)
    for ks in range(12): e(f"ds_read_b128 v[{64+4*ks}:{67+4*ks}], v43 offset:{L_HN+64*ks}")
    for ks in range(12, 16): e(f"ds_read_b128 v[{224+4*(ks-12)}:{227+4*(ks-12)}], v43 offset:{L_HN+64*ks}")
    for ks in range(16):
        e(f"s_waitcnt lgkmcnt({15-ks})")
        c = "0" if ks < 2 else f"v[{20+4*(ks&1)}:{23+4*(ks&1)}]"
        ar = 64 + 4 * ks if ks < 12 else 224 + 4 * (ks - 12)
        e(f"v_mfma_f32_16x16x32_bf16 v[{20+4*(ks&1)}:{23+4*(ks&1)}], v[{ar}:{ar+3}], v[{128+4*ks}:{131+4*ks}], {c}")
    e("s_mov_b64 exec, 0xffff\ns_nop 6")
    for r in range(4): e(f"v_add_f32 v{20+r}, v{20+r}, v{24+r}\nds_write_b32 v40, v{20+r} offset:{L_AC+128*r}")
    e("s_mov_b64 exec, -1\ns_waitcnt lgkmcnt(0)\ns_barrier")
    if gst: fstamp(S)
    e(f"ds_read_b64 v[20:21], v41 offset:{L_AC}\nds_read_b64 v[22:23], v41 offset:{L_AC+512}\ns_waitcnt lgkmcnt(1)")
    e("v_cvt_pk_bf16_f32 v20, v20, v21\nv_and_b32 v21, 0xffff0000, v20\nv_lshlrev_b32 v20, 16, v20\nv_mul_f32 v21, 0xbfb8aa3b, v21\nv_mul_f32 v20, 0xbfb8aa3b, v20\nv_exp_f32 v21, v21\nv_exp_f32 v20, v20")
    e("s_waitcnt lgkmcnt(0)\nv_cvt_pk_bf16_f32 v22, v22, v23\nv_add_f32 v21, 1.0, v21\nv_add_f32 v20, 1.0, v20\nv_rcp_f32 v21, v21\nv_rcp_f32 v20, v20\nv_and_b32 v23, 0xffff0000, v22\nv_lshlrev_b32 v22, 16, v22")
    e("v_cvt_pk_bf16_f32 v20, v20, v21\nv_and_b32 v21, 0xffff0000, v20\nv_lshlrev_b32 v20, 16, v20\nv_mul_f32 v21, v21, v23\nv_mul_f32 v20, v20, v22\nv_cvt_pk_bf16_f32 v36, v20, v21\ns_nop 1")
    for q in range(4): e(f"v_mov_b32_dpp v{32+q}, v36 quad_perm:[{q},{q},{q},{q}] row_mask:0xf bank_mask:0xf")
    e("s_nop 1")
    for j in range(8):
        e(f"v_mfma_f32_16x16x32_bf16 v[{64+4*j}:{67+4*j}], v[32:35], v[{192+4*j}:{195+4*j}], 0")
    e("s_nop 0")
    for j in range(4): e(f"v_min_u32 v{96+j}, -2, v{64+4*j}")
    e("s_nop 0\nbuffer_store_dwordx4 v[96:99], v42, s[12:15], s59 offen sc1")
    for j in range(4, 8): e(f"v_min_u32 v{96+j}, -2, v{64+4*j}")
    e("buffer_store_dwordx4 v[100:103], v42, s[12:15], s59 offen offset:256 sc1")
    fstamp(S)
    e("L_s5:\ns_cmp_ge_u32 s79, 256\ns_cbranch_scc1 L_fin")
    for j in range(8): e(f"v_mov_b32 v{48+j}, 0")
    e(f"s_mov_b32 exec_lo, -1\ns_mov_b32 exec_hi, {(1 << (NG - 32)) - 1:#x}")
    poll("L_p6", ["buffer_load_dwordx4 v[48:51], v45, s[12:15], s63 offen sc1", "buffer_load_dwordx4 v[52:55], v45, s[12:15], s63 offen offset:16 sc1"], [f"v{i}" for i in range(48, 56)], slp=s5sleep)
    e("s_nop 3")
    for i in range(4): e(f"v_permlane32_swap_b32 v{48+i}, v{52+i}")
    e("s_nop 1")
    for i in range(4): e(f"v_add_f32 v{48+i}, v{48+i}, v{52+i}")
    e("s_nop 0")
    red4()
    a.rbf("v48"); e("v_add_f32 v48, v48, v39\nv_cvt_pk_bf16_f32 v48, v48, v48\ns_mov_b32 exec_lo, 0x1111\ns_mov_b32 exec_hi, 0x1111")
    e("buffer_store_short v48, v38, s[16:19], s67 offen")
    dstamp(5)
    fstamp(S)
    e("L_fin:")
    e("s_cmp_lg_u32 s3, 0\ns_cbranch_scc1 L_end")
    e("s_cmp_lg_u32 s58, 0\ns_cbranch_scc1 L_noep\ns_mov_b64 exec, 1\nv_mov_b32 v48, s56\nv_mov_b32 v49, s57\nv_mov_b32 v50, 0\nbuffer_store_dwordx2 v[48:49], v50, s[12:15], s76 offen sc1\nL_noep:")
    fstamp_store(S, 65536)
    e("L_end:\ns_endpgm")
    e('.section .rodata,"a"\n.p2align 6')
    a.descriptor(KN, 256, 96, accum=256)
    return a.text()

if __name__ == "__main__":
    import os, json
    os.makedirs("v15", exist_ok=True)
    names = []
    for spec in sys.argv[1:]:
        kw = {}
        if spec != "base":
            for p in spec.split(","):
                k, v = p.split("=")
                kw[k] = v.replace("+", " ") if k in ("wf", "wqf", "kf", "vf") else int(v)
        fn = "v15/v15_" + spec.replace(",", "_").replace("=", "") + ".s"
        open(fn, "w").write(gen(**kw))
        names.append(fn)
    print(" ".join(names))
    base = ["work/bench.py", "work/fst9.py", "sequential_preLN__mha_block_cached__glu_gated_glu__decode_np.py", "cdna_kernels/cdna_launch.py", "cdna_kernels/cdna_unwritten_srd_check.py", "work/pair/pair_NS10.s"]
    print(json.dumps(base + ["work/" + f for f in names]))
```

```python
import sys
from asmlib import *
WSZ = 0x40000000
WS_O, WS_Y, WS_H, WS_D, WS_Q, WS_EP, WS_TK, WS_KD, WS_ST, WS_SG = 0x000000, 0x080000, 0x100000, 0x110000, 0x180000, 0x280000, 0x290000, 0x2a0000, 0x300000, 0x400000
NG = 56
LOG2E = "0x3fb8aa3b"
L_XD = 0
L_QP = 8192
L_OA = 10240
L_ML = 14336
L_PX = 19584
L_PR = 14368
L_HN = 14400
L_AC = 18560
L_ON = 0
L_HG = 1152
L_QP2 = 19584
L_OB = L_QP2 + 2048
L_MLB = L_OB + 4096
L_SC = L_MLB + 64
L_TR = L_SC + 4 * 18 * 256
L_GU = L_TR + 16384
LDS_BYTES = L_GU + 65536

DOC = '''; One fused launch: 256 workgroups (one per CU) x 8 waves.  Written by a generator script (work/gen_v15.py).
'''

def gen(stamps=0, sleep=2, wf="nt", wqf="", prio=3, lsleep=2, thr=32, NS=12, qsleep=4, kfirst=0, hexit=0, dyn=1, s5sleep=1, s3sleep=1, hsleep=1,
        gst=0, D=16, kf="nt", vf="nt", GT=24, wsleep=1, abl=0, steal=1, cpf=0, cpf2=0, comp=2, asc=0, dbgt=0, kdyn=1, gmap=1, guf=None):
    if guf is None: guf = wf
    NM4 = 4 * (32 - 2 * NS)
    a = Asm(); e = a.e
    KN = NAME + "_kernel"
    e(HEADER_COMMENT.rstrip("\n"))
    e(DOC.rstrip("\n"))
    e(f"; @launch grid=(256,1,1) block=(512,1,1) lds={LDS_BYTES}")
    e('.amdgcn_target "amdgcn-amd-amdhsa--gfx950"\n.text')
    a.kernel_begin(KN)
    def fstamp(reg="v62"):
        if stamps:
            e(f"s_memrealtime s[68:69]\ns_waitcnt lgkmcnt(0)\nv_writelane_b32 {reg}, s68, m0\ns_add_u32 m0, m0, 1")
    def fstamp_store(reg, off):
        if stamps:
            e(f"s_mov_b64 exec, -1\nv_and_b32 v2, 63, v0\nv_lshlrev_b32 v2, 2, v2\ns_lshl_b32 s41, s2, 8\ns_add_u32 s41, s41, {WS_ST+off}\nbuffer_store_dword {reg}, v2, s[12:15], s41 offen sc1")
    def dstamp(word, inv=False):
        if dbgt:
            e("s_memrealtime s[94:95]\ns_waitcnt lgkmcnt(0)")
            if inv: e("s_not_b32 s94, s94")
            e(f"s_atomic_umax s94, s[44:45], {4*word}")
    def allsum(v, t, op="add"):
        e("s_nop 1")
        for ctl in ("quad_perm:[1,0,3,2]", "quad_perm:[2,3,0,1]", "row_half_mirror", "row_mirror"):
            e(f"v_{op}_f32_dpp {v}, {v}, {v} {ctl} row_mask:0xf bank_mask:0xf\ns_nop 1")
        e(f"v_mov_b32 {t}, {v}\ns_nop 1\nv_permlane16_swap_b32 {v}, {t}\ns_nop 1\nv_{op}_f32 {v}, {v}, {t}\nv_mov_b32 {t}, {v}\ns_nop 1\nv_permlane32_swap_b32 {v}, {t}\ns_nop 1\nv_{op}_f32 {v}, {v}, {t}")
    def ln8(X, T):
        s1, s2, t1, t2, u = (f"v{T+i}" for i in range(5))
        e(f"v_readfirstlane_b32 s40, v{X}\ns_nop 1")
        e(f"v_subrev_f32 {s1}, s40, v{X}\nv_mul_f32 {s2}, {s1}, {s1}")
        for i in range(1, 8):
            e(f"v_subrev_f32 {u}, s40, v{X+i}\nv_add_f32 {s1}, {s1}, {u}\nv_fmac_f32 {s2}, {u}, {u}")
        e("s_nop 0")
        for ctl in ("quad_perm:[1,0,3,2]", "quad_perm:[2,3,0,1]", "row_half_mirror", "row_mirror"):
            e(f"v_add_f32_dpp {s1}, {s1}, {s1} {ctl} row_mask:0xf bank_mask:0xf\nv_add_f32_dpp {s2}, {s2}, {s2} {ctl} row_mask:0xf bank_mask:0xf\ns_nop 0")
        for sw in ("v_permlane16_swap_b32", "v_permlane32_swap_b32"):
            e(f"v_mov_b32 {t1}, {s1}\nv_mov_b32 {t2}, {s2}\ns_nop 0\n{sw} {s1}, {t1}\n{sw} {s2}, {t2}\ns_nop 0\nv_add_f32 {s1}, {s1}, {t1}\nv_add_f32 {s2}, {s2}, {t2}")
        e(f"v_mul_f32 {s1}, 0x3b000000, {s1}\nv_mul_f32 {s2}, 0x3b000000, {s2}\nv_fma_f32 {s2}, -{s1}, {s1}, {s2}\nv_max_f32 {s2}, 0, {s2}\nv_add_f32 {s1}, s40, {s1}")
        a.rbf(s2); a.rbf(s1)
        e(f"v_add_f32 {s2}, 0x3727c5ac, {s2}"); a.rbf(s2)
        e(f"v_sqrt_f32 {s2}, {s2}")
        for i in range(8): e(f"v_sub_f32 v{X+i}, v{X+i}, {s1}")
        a.rbf(s2)
        e(f"v_rcp_f32 {s2}, {s2}")
        for i in range(4): e(f"v_cvt_pk_bf16_f32 v{X+2*i}, v{X+2*i}, v{X+2*i+1}")
        for i in range(4): e(f"v_and_b32 v{X+2*i+1}, 0xffff0000, v{X+2*i}\nv_lshlrev_b32 v{X+2*i}, 16, v{X+2*i}")
        for i in range(8): e(f"v_mul_f32 v{X+i}, v{X+i}, {s2}")
        for i in range(4): e(f"v_cvt_pk_bf16_f32 v{X+i}, v{X+2*i}, v{X+2*i+1}")
    def masks():
        for r in range(4):
            e(f"v_mov_b32 v{8+r}, 0\nv_mov_b32 v28, 0xffff\nv_cmp_eq_u32 vcc, {2*r}, v3\ns_nop 1\nv_cndmask_b32 v{8+r}, v{8+r}, v28, vcc")
            e(f"v_mov_b32 v28, 0xffff0000\nv_cmp_eq_u32 vcc, {2*r+1}, v3\ns_nop 1\nv_cndmask_b32 v{8+r}, v{8+r}, v28, vcc")
    cnt = {12: 0, 24: 0}
    def gsync(off):
        cnt[off] += 1
        L = a.label("L_gs")
        e(f"v_mov_b32 v28, {L_PR}\nv_mov_b32 v29, 1\ns_mov_b64 exec, 1\ns_waitcnt lgkmcnt(0)\nds_add_u32 v28, v29 offset:{off}\n{L}:\nds_read_b32 v29, v28 offset:{off}\ns_waitcnt lgkmcnt(0)\nv_readfirstlane_b32 s43, v29\ns_cmp_lt_u32 s43, {4*cnt[off]}\ns_cbranch_scc1 {L}\ns_mov_b64 exec, -1")
    def poll(label, loads, words, slp=None):
        e(f"s_mov_b32 s66, 0\n{label}:")
        for l in loads: e(l)
        e("s_waitcnt vmcnt(0)")
        w = list(words)
        e(f"v_max_u32 v31, {w[0]}, {w[1]}")
        w = w[2:]
        while len(w) >= 2:
            e(f"v_max3_u32 v31, v31, {w[0]}, {w[1]}"); w = w[2:]
        if w: e(f"v_max_u32 v31, v31, {w[0]}")
        e(f"v_cmp_eq_u32 vcc, -1, v31\ns_cbranch_vccz {label}_ok\ns_mov_b64 exec, vcc\ns_add_u32 s66, s66, 1\ns_cmp_gt_u32 s66, 400000\ns_cbranch_scc1 {label}_ok")
        e(f"s_sleep {slp or sleep}\ns_branch {label}\n{label}_ok:\ns_mov_b64 exec, -1")
    def red4():
        for i in range(2):
            e(f"v_add_f32_dpp v{48+i}, v{48+i}, v{48+i} row_ror:8 row_mask:0xf bank_mask:0x3")
            e(f"v_add_f32_dpp v{48+i}, v{50+i}, v{50+i} row_ror:8 row_mask:0xf bank_mask:0xc")
        e("v_add_f32_dpp v48, v48, v48 row_half_mirror row_mask:0xf bank_mask:0x5\ns_nop 0\nv_add_f32_dpp v48, v49, v49 row_half_mirror row_mask:0xf bank_mask:0xa\ns_nop 1")
        e("v_add_f32_dpp v48, v48, v48 quad_perm:[1,0,3,2] row_mask:0xf bank_mask:0xf\ns_nop 1\nv_add_f32_dpp v48, v48, v48 quad_perm:[2,3,0,1] row_mask:0xf bank_mask:0xf")
        e("v_mov_b32 v49, v48\ns_nop 1\nv_permlane16_swap_b32 v48, v49\ns_nop 1\nv_add_f32 v48, v48, v49")

    e("s_cmp_ge_u32 s2, 256\ns_cbranch_scc1 L_end")
    if stamps: e("s_mov_b32 m0, 0\nv_mov_b32 v62, 0\nv_mov_b32 v63, 0")
    e("s_load_dwordx4 s[4:7], s[0:1], 8")
    e("s_load_dwordx4 s[44:47], s[0:1], 80")
    e("s_load_dwordx2 s[20:21], s[0:1], 0")
    e("s_load_dwordx4 s[24:27], s[0:1], 24")
    e("s_load_dwordx4 s[28:31], s[0:1], 48\ns_load_dwordx4 s[32:35], s[0:1], 64")
    if cpf:
        e("s_getpc_b64 s[90:91]\nL_pc:\nv_lshlrev_b32 v4, 4, v0\nv_add_u32 v5, 8192, v4\nv_add_u32 v6, 16384, v4\nv_min_u32 v6, (L_end-L_pc-16)&0xfffffff0, v6")
        e("global_load_dword v61, v4, s[90:91]\nglobal_load_dword v61, v5, s[90:91]\nglobal_load_dword v61, v6, s[90:91]")
    e("v_and_b32 v1, 63, v0\nv_lshrrev_b32 v2, 6, v0\nv_lshlrev_b32 v1, 4, v1\nv_readfirstlane_b32 s3, v2")
    e("s_mov_b32 s36, 0xaaaaaaaa\ns_mov_b32 s37, 0xaaaaaaaa\ns_mov_b32 s38, 0xcccccccc\ns_mov_b32 s39, 0xcccccccc")
    e("s_lshr_b32 s40, s2, 1\ns_xor_b32 s41, s40, s2\ns_and_b32 s41, s41, 1\ns_and_b32 s48, s40, 1")
    e("s_bfe_u32 s40, s2, 0x10002\ns_lshl_b32 s40, s40, 1\ns_or_b32 s77, s41, s40")
    e("s_lshr_b32 s51, s2, 3\ns_lshl_b32 s51, s51, 2\ns_add_u32 s51, s51, s77\ns_and_b32 s49, s51, 31\ns_lshr_b32 s50, s2, 6")
    e("v_bfe_u32 v2, v0, 4, 2\nv_and_b32 v3, 15, v0")
    e("s_cmp_ge_u32 s3, 4\ns_cbranch_scc1 L_helper")
    fstamp()
    e("s_lshl_b32 s54, s51, 21")
    def setoff(k, dst):
        e(f"s_sub_u32 s40, 127, {k}\ns_cmp_eq_u32 s48, 0\ns_cselect_b32 s40, {k}, s40\ns_lshr_b32 s41, s40, 2\ns_lshl_b32 s41, s41, 16\ns_and_b32 s42, s40, 3\ns_lshl_b32 s42, s42, 12\ns_add_u32 {dst}, s54, s41\ns_add_u32 {dst}, {dst}, s42")
    setoff("s3", "s52")
    e("s_mov_b32 s57, s52\ns_mov_b32 s53, 0x10000\ns_cmp_eq_u32 s48, 0\ns_cselect_b32 s53, s53, 0xffff0000\ns_cselect_b32 s55, 1, 0x10000\ns_cselect_b32 s56, 0, 16")
    e("s_waitcnt lgkmcnt(0)\ns_mov_b32 s8, s6\ns_mov_b32 s9, s7")
    a.srd(4, 4, 1 << 28); a.srd(12, 46, WSZ)
    RA, RB, RC = 128, 192, 64
    FL = [kf]
    def ld(i, rb):
        if i % 4 == 0: e(f"s_add_u32 s22, s52, {(i//4)*16384}")
        e(f"buffer_load_dwordx4 v[{rb+4*i}:{rb+4*i+3}], v1, s[4:7], s22 offen offset:{(i%4)*1024} {FL[0]}")
    for blk, rb in enumerate((RA, RB, RC)):
        for i in range(16):
            if blk == 0 and i == kfirst: e("s_barrier")
            ld(i, rb)
        e("s_add_u32 s52, s52, s53")
        if stamps >= 2 and blk < 2: fstamp()
    masks()
    e("v_mov_b32 v20, 0\nv_mov_b32 v21, 0\nv_mov_b32 v22, 0\nv_mov_b32 v23, 0\nv_mov_b32 v24, 0xff7fffff\nv_mov_b32 v25, 0")
    e(f"v_lshlrev_b32 v26, 5, v3\nv_mov_b32 v27, {L_PR}\ns_mov_b32 s65, 0")
    e(f"v_and_b32 v56, 7, v0\nv_lshl_add_u32 v56, v2, 5, v56\nv_bfe_u32 v29, v0, 3, 1\nv_lshl_add_u32 v56, v29, 7, v56\nv_lshlrev_b32 v56, 2, v56\ns_lshl_b32 s40, s3, 10\nv_add_u32 v56, s40, v56\ns_lshl_b32 s40, s3, 3\nv_mov_b32 v57, s40")
    for r in range(4): e(f"ds_write_b32 v56, v20 offset:{L_OB+32*r}")
    e(f"ds_write_b64 v57, v[24:25] offset:{L_MLB}\nv_add_u32 v56, {L_OA}, v56\nv_add_u32 v57, {L_ML}, v57\ns_mov_b32 s87, 0")
    e(f"s_mul_i32 s40, s3, {18*256}\nv_lshrrev_b32 v60, 2, v1\nv_add_u32 v58, s40, v60\nv_mov_b32 v59, v58")
    e(f"s_lshl_b32 s40, s51, 8\ns_add_u32 s40, s40, {WS_TK}\ns_add_u32 s74, s46, s40\ns_addc_u32 s75, s47, 0\ns_lshl_b32 s73, s51, 15\ns_add_u32 s73, s73, {WS_SG}\nv_mov_b32 v61, {L_PX}")
    fstamp()
    e("s_barrier")
    e("ds_read_b64 v[28:29], v61")
    for w in range(4):
        rb = (32, 40, 48, 12)[w]
        e(f"ds_read_b128 v[{rb}:{rb+3}], v26 offset:{L_QP+512*w}\nds_read_b128 v[{rb+4}:{rb+7}], v26 offset:{L_QP+512*w+16}")
    e("s_waitcnt lgkmcnt(0)")
    for j in range(8):
        e(f"v_add_f32 v{32+j}, v{32+j}, v{40+j}\nv_add_f32 v{48+j}, v{48+j}, v{12+j}\nv_add_f32 v{32+j}, v{32+j}, v{48+j}")
    for j in range(4): e(f"v_cvt_pk_bf16_f32 v{4+j}, v{32+2*j}, v{33+2*j}")
    e("v_readfirstlane_b32 s71, v28\nv_readfirstlane_b32 s70, v29")
    def A(i): return f"v{32+i}"
    def kblk(src, wait, issue, glob=False):
        fstamp()
        for i in range(16):
            e(f"s_waitcnt vmcnt({wait(i)})")
            for j in range(4):
                e(f"v_dot2_f32_bf16 {A(i)}, v{src+4*i+j}, v{4+j}, {'0' if j == 0 else A(i)}")
            issue(i)
        for i in range(8):
            e(f"v_add_f32_dpp {A(i)}, {A(i)}, {A(i)} row_ror:8 row_mask:0xf bank_mask:0x3")
            e(f"v_add_f32_dpp {A(i)}, {A(i+8)}, {A(i+8)} row_ror:8 row_mask:0xf bank_mask:0xc")
        for i in range(4):
            e(f"v_add_f32_dpp {A(i)}, {A(i)}, {A(i)} row_half_mirror row_mask:0xf bank_mask:0x5")
            e(f"v_add_f32_dpp {A(i)}, {A(i+4)}, {A(i+4)} row_half_mirror row_mask:0xf bank_mask:0xa")
        e(f"v_cndmask_b32 v28, {A(1)}, {A(0)}, s[36:37]\nv_cndmask_b32 v29, {A(0)}, {A(1)}, s[36:37]")
        e(f"v_cndmask_b32 v30, {A(3)}, {A(2)}, s[36:37]\nv_cndmask_b32 v31, {A(2)}, {A(3)}, s[36:37]")
        e("v_add_f32_dpp v29, v28, v29 quad_perm:[1,0,3,2] row_mask:0xf bank_mask:0xf")
        e("v_add_f32_dpp v31, v30, v31 quad_perm:[1,0,3,2] row_mask:0xf bank_mask:0xf")
        e("v_cndmask_b32 v28, v31, v29, s[38:39]\nv_cndmask_b32 v30, v29, v31, s[38:39]\ns_nop 0")
        e("v_add_f32_dpp v30, v28, v30 quad_perm:[2,3,0,1] row_mask:0xf bank_mask:0xf")
        a.rbf("v30"); e("v_mul_f32 v30, 0x3db504f3, v30"); a.rbf("v30")
        e("v_max_f32 v24, v30, v24")
        if glob: e("buffer_store_dword v30, v60, s[12:15], s58 offen sc1")
        else:
            e(f"ds_write_b32 v58, v30 offset:{L_SC}\nv_add_u32 v58, 256, v58")
            e("s_add_u32 s65, s65, 1\nv_mov_b32 v26, s65\nds_max_u32 v27, v26")
    def vblk(src, wait, issue, pre):
        fstamp()
        e(f"v_sub_f32 v30, v31, v24\nv_mul_f32 v30, {LOG2E}, v30\nv_exp_f32 v30, v30")
        pre()
        e("s_nop 0\nv_add_f32 v25, v25, v30\nv_cvt_pk_bf16_f32 v30, v30, v30\ns_nop 1")
        for i in range(16):
            bb = 12 + 4 * (i & 1)
            for r in range(4):
                e(f"v_and_b32_dpp v{bb+r}, v30, v{8+r} row_newbcast:{i} row_mask:0xf bank_mask:0xf")
            e(f"s_waitcnt vmcnt({wait(i)})\ns_nop 0")
            e(f"v_mfma_f32_16x16x32_bf16 v[20:23], v[{src+4*i}:{src+4*i+3}], v[{bb}:{bb+3}], v[20:23]")
            issue(i)
    none = lambda i: None
    def ask(off): e(f"s_mov_b32 s72, s55\ns_atomic_add s72, s[74:75], {off} glc")
    def decode(base, fail):
        e(f"s_waitcnt lgkmcnt(0)\ns_sub_u32 s72, s72, {base}\ns_and_b32 s42, s72, 0xffff\ns_lshr_b32 s43, s72, 16\ns_add_u32 s42, s42, s43\ns_cmp_ge_u32 s42, {NM4}\ns_cbranch_scc1 {fail}")
        e(f"s_lshr_b32 s72, s72, s56\ns_and_b32 s72, s72, 0xffff\ns_add_u32 s72, s72, {4*NS}")
        setoff("s72", "s52")
        e("s_lshl_b32 s59, s40, 8\ns_add_u32 s59, s59, s73")
    kblk(RA, lambda i: 47, lambda i: ld(i, RA))
    kblk(RB, lambda i: 47 - i, none)
    kblk(RC, lambda i: 31 - i, none)
    if kdyn:
        e(f"L_k:\ns_add_u32 s52, s52, s53\ns_cmp_lg_u32 s65, {NS-2}\ns_cbranch_scc1 L_k2")
        ask(0)
        e("L_k2:")
        kblk(RA, lambda i: 15, lambda i: ld(i, RA))
        e(f"s_cmp_lt_u32 s65, {NS-1}\ns_cbranch_scc1 L_k\ns_mov_b32 s86, 0")
        decode("s71", "L_kl0")
        ask(0)
        e("s_mov_b32 s86, 1\ns_branch L_kl1\nL_kl0:\ns_mov_b32 s52, s57\ns_mov_b32 s4, s8\ns_mov_b32 s5, s9\nL_kl1:")
        kblk(RA, lambda i: 15, lambda i: ld(i, RA))
        e("s_cmp_eq_u32 s86, 0\ns_cbranch_scc1 L_kdone")
        e("L_kd:\ns_mov_b32 s58, s59\ns_mov_b32 s86, 0")
        decode("s71", "L_kd0")
        ask(0)
        e("s_mov_b32 s86, 1\ns_branch L_kd1\nL_kd0:\ns_mov_b32 s52, s57\ns_mov_b32 s4, s8\ns_mov_b32 s5, s9\nL_kd1:")
        kblk(RA, lambda i: 15, lambda i: ld(i, RA), glob=True)
        e("s_cmp_lg_u32 s86, 0\ns_cbranch_scc1 L_kd\nL_kdone:")
    else:
        e("L_k:\ns_add_u32 s52, s52, s53")
        kblk(RA, lambda i: 15, lambda i: ld(i, RA))
        e(f"s_cmp_lt_u32 s65, {NS}\ns_cbranch_scc1 L_k\ns_add_u32 s72, s3, {4*NS}")
        setoff("s72", "s58")
        e(f"s_lshl_b32 s58, s40, 8\ns_add_u32 s58, s58, s73\ns_ashr_i32 s59, s53, 6\ns_mov_b32 s64, {NS}")
        e("L_kd:\ns_add_u32 s52, s52, s53\ns_cmp_lt_u32 s64, 15\ns_cbranch_scc1 L_kd1\ns_mov_b32 s52, s57\ns_mov_b32 s4, s8\ns_mov_b32 s5, s9\nL_kd1:")
        kblk(RA, lambda i: 15, lambda i: ld(i, RA), glob=True)
        e("s_add_u32 s58, s58, s59\ns_add_u32 s64, s64, 1\ns_cmp_lt_u32 s64, 16\ns_cbranch_scc1 L_kd")
    if stamps: e("s_memrealtime s[68:69]\ns_waitcnt lgkmcnt(0)\nv_writelane_b32 v62, s68, 63")
    allsum("v24", "v29", "max")
    e(f"s_lshl_b32 s40, s3, 2\nv_add_u32 v28, s40, v61\nds_write_b32 v28, v24 offset:16\ns_waitcnt lgkmcnt(0)\nds_read_b32 v31, v59 offset:{L_SC}\nv_add_u32 v59, 256, v59\ns_mov_b32 s64, 0")
    FL[0] = vf
    def pre_own(): e(f"ds_read_b32 v31, v59 offset:{L_SC}\nv_add_u32 v59, 256, v59")
    e(f"L_v:\ns_add_u32 s52, s52, s53\ns_waitcnt lgkmcnt(0)\ns_cmp_lg_u32 s64, {NS-2}\ns_cbranch_scc1 L_v2")
    e("L_vw:\nds_read_b128 v[32:35], v61\nds_read_b128 v[36:39], v61 offset:16\ns_waitcnt lgkmcnt(0)\nv_readfirstlane_b32 s40, v34\ns_cmp_lg_u32 s40, 0\ns_cbranch_scc1 L_vw1\ns_sleep 8\ns_branch L_vw\nL_vw1:")
    e(f"v_max3_f32 v35, v35, v36, v37\nv_max3_f32 v35, v35, v38, v39\nv_sub_f32 v29, v24, v35\nv_mul_f32 v29, {LOG2E}, v29\nv_exp_f32 v29, v29\nv_mov_b32 v24, v35\nv_mul_f32 v25, v25, v29")
    for r in range(4): e(f"v_mul_f32 v{20+r}, v{20+r}, v29")
    ask(4)
    e("L_v2:")
    vblk(RA, lambda i: 15, lambda i: ld(i, RA), pre_own)
    e("s_add_u32 s64, s64, 1\ns_add_u32 s65, s65, 1\nv_mov_b32 v26, s65\nds_max_u32 v27, v26\ns_cmp_lg_u32 s64, 3\ns_cbranch_scc1 L_v3")
    e("v_mov_b32 v26, 1\ns_mov_b64 exec, 1\nds_add_u32 v27, v26 offset:20\ns_mov_b64 exec, -1\nL_v3:")
    e(f"s_cmp_lt_u32 s64, {NS-1}\ns_cbranch_scc1 L_v")
    e("L_vd:")
    decode("s70", "L_vlast")
    ask(4)
    def pre_sh(): e("buffer_load_dword v31, v60, s[12:15], s59 offen sc1")
    vblk(RA, lambda i: 15, lambda i: ld(i, RA), pre_sh)
    e("s_waitcnt vmcnt(16)\ns_branch L_vd\nL_vlast:")
    if steal:
        e("s_mov_b32 s86, 0\ns_cmp_lg_u32 s87, 0\ns_cbranch_scc1 L_nosib\nds_read_b128 v[48:51], v61 offset:32\ns_waitcnt lgkmcnt(0)\nv_readfirstlane_b32 s40, v48\nv_readfirstlane_b32 s70, v50\ns_cmp_eq_u32 s40, 0\ns_cbranch_scc1 L_nosib")
        e("s_xor_b32 s74, s74, 256\ns_xor_b32 s54, s54, 0x200000\ns_xor_b32 s73, s73, 0x8000")
        ask(4)
        e("s_mov_b32 s86, 1\nL_nosib:")
    vblk(RA, lambda i: 15 - i, none, lambda: None)
    fstamp()
    allsum("v25", "v29")
    for r in range(4): e(f"ds_write_b32 v56, v{20+r} offset:{32*r}")
    e("ds_write_b64 v57, v[24:25]")
    if steal:
        e("s_cmp_eq_u32 s86, 0\ns_cbranch_scc1 L_done")
        decode("s70", "L_done")
        pre_sh()
        for i in range(16): ld(i, RA)
        e(f"s_mov_b32 s87, 1\nv_add_u32 v56, {L_OB-L_OA}, v56\nv_add_u32 v57, {L_MLB-L_ML}, v57")
        ask(4)
        e("v_mov_b32 v20, 0\nv_mov_b32 v21, 0\nv_mov_b32 v22, 0\nv_mov_b32 v23, 0\nv_mov_b32 v24, v49\nv_mov_b32 v25, 0\ns_waitcnt vmcnt(16)\ns_branch L_vd\nL_done:")
    e("v_mov_b32 v26, 1\ns_mov_b64 exec, 1\ns_waitcnt lgkmcnt(0)\nds_add_u32 v27, v26 offset:16\ns_mov_b64 exec, -1")
    e("L_sfin:")
    if stamps:
        e("s_cmp_lg_u32 s3, 0\ns_cbranch_scc1 L_end")
        fstamp_store("v62", 0)
    e("s_endpgm")
    e("L_helper:")
    S = "v63"
    fstamp(S)
    e("s_sub_u32 s3, s3, 4")
    if prio: e(f"s_setprio {prio}")
    e("s_lshl_b32 s58, s50, 1\ns_add_u32 s58, s58, s48")
    e("v_lshlrev_b32 v26, 13, v2\nv_lshl_add_u32 v26, v3, 4, v26")
    e(f"v_mov_b32 v20, 0\nv_mov_b32 v21, 0\nv_mov_b32 v22, 0\nv_mov_b32 v23, 0\nv_mov_b32 v28, {L_PR}\nds_write_b128 v28, v[20:23]\nds_write_b128 v28, v[20:23] offset:16")
    e("s_lshl_b32 s40, s49, 8\ns_lshl_b32 s41, s58, 19\ns_add_u32 s40, s40, s41\ns_lshl_b32 s41, s3, 17\ns_add_u32 s40, s40, s41")
    e("s_lshl_b32 s41, s3, 10\ns_waitcnt lgkmcnt(0)")
    if dbgt:
        e("s_cmp_lg_u32 s3, 0\ns_cbranch_scc1 L_d0"); dstamp(2, True); e("L_d0:")
    a.srd(16, 20, 4096)
    e("buffer_load_dwordx4 v[48:51], v1, s[16:19], s41 offen")
    a.srd(16, 24, 512 * 4096 * 2)
    if abl & 8: e("s_mov_b32 s18, 0")
    if kfirst: e("s_barrier")
    for t in range(4):
        e(f"buffer_load_dwordx4 v[{64+4*t}:{67+4*t}], v26, s[16:19], s40 offen {wqf}\ns_add_u32 s40, s40, 0x8000")
    if not kfirst: e("s_barrier")
    a.srd(12, 46, WSZ)
    e(f"s_lshl_b32 s42, s49, 8\ns_add_u32 s76, s42, {WS_EP}\ns_add_u32 s42, s46, s76\ns_addc_u32 s43, s47, 0\ns_load_dwordx2 s[56:57], s[42:43], 0 glc\ns_xor_b32 s42, s42, 256\ns_load_dwordx2 s[82:83], s[42:43], 0 glc")
    e(f"s_lshl_b32 s42, s51, 8\ns_add_u32 s42, s42, {WS_TK}\ns_add_u32 s42, s46, s42\ns_addc_u32 s43, s47, 0\ns_mov_b32 s72, 0\ns_mov_b32 s73, 0\ns_cmp_lg_u32 s3, s50\ns_cbranch_scc1 L_nobase\ns_load_dwordx2 s[72:73], s[42:43], 0 glc\nL_nobase:")
    masks()
    e(f"s_lshl_b32 s67, s3, 12\ns_add_u32 s67, s67, {L_TR}\nv_add_u32 v24, s67, v1\nv_mov_b32 v28, {L_PR}")
    e("s_mov_b32 s62, 0x01000100\ns_mov_b32 s63, 0x03020302")
    e("s_lshl_b32 s40, s3, 11\nv_lshlrev_b32 v58, 1, v1\nv_add_u32 v58, s40, v58")
    e("s_lshl_b32 s41, s58, 8\ns_add_u32 s40, s40, s41\nv_lshlrev_b32 v59, 4, v3\nv_lshl_add_u32 v59, v2, 2, v59\nv_add_u32 v59, s40, v59")
    e("s_waitcnt vmcnt(4)")
    fstamp(S)
    for i in range(4):
        e(f"v_lshlrev_b32 v{40+2*i}, 16, v{48+i}\nv_and_b32 v{41+2*i}, 0xffff0000, v{48+i}")
    ln8(40, 52)
    for i in (3, 2, 1, 0): e(f"v_perm_b32 v{41+2*i}, v{40+i}, v{40+i}, s63\nv_perm_b32 v{40+2*i}, v{40+i}, v{40+i}, s62")
    e(f"ds_write_b128 v58, v[40:43] offset:{L_XD}\nds_write_b128 v58, v[44:47] offset:{L_XD+16}")
    for t in range(4): e(f"s_waitcnt vmcnt({3-t})\nds_write_b128 v24, v[{64+4*t}:{67+4*t}] offset:{1024*t}")
    fstamp(S)
    gsync(12)
    e(f"ds_read_b32 v53, v59 offset:{L_XD}")
    for t in range(16): e(f"ds_read_b128 v[{64+4*t}:{67+4*t}], v1 offset:{L_TR+1024*t}")
    e(f"s_cmp_lg_u32 s3, s50\ns_cbranch_scc1 L_nobase2\nv_mov_b32 v44, s72\nv_mov_b32 v45, s73\nv_mov_b32 v46, 0\nv_mov_b32 v47, 0\nv_mov_b32 v54, {L_PX}\nds_write_b128 v54, v[44:47]\nds_write_b32 v54, v46 offset:32\ns_waitcnt lgkmcnt(0)\nL_nobase2:")
    e("s_add_u32 s56, s56, 1\ns_addc_u32 s57, s57, 0\nv_mov_b32 v42, s56\nv_mov_b32 v43, s57\nv_mov_b32 v46, s56\nv_mov_b32 v47, s57")
    e("s_lshl_b32 s40, s49, 2\ns_add_u32 s40, s40, s3\ns_lshl_b32 s40, s40, 3\ns_add_u32 s40, s40, s58\ns_lshl_b32 s40, s40, 10")
    e(f"s_add_u32 s40, s40, {WS_Q}\nv_lshlrev_b32 v52, 8, v2\nv_lshl_add_u32 v52, v3, 4, v52\ns_waitcnt lgkmcnt(15)")
    for t in range(16):
        bb = 12 + 4 * (t & 1)
        for r in range(4):
            e(f"v_and_b32_dpp v{bb+r}, v53, v{8+r} row_newbcast:{t} row_mask:0xf bank_mask:0xf")
        e(f"s_waitcnt lgkmcnt({15-t})\ns_nop 0")
        e(f"v_mfma_f32_16x16x32_bf16 v[20:23], v[{64+4*t}:{67+4*t}], v[{bb}:{bb+3}], v[20:23]")
    e("s_lshl_b32 s61, s49, 2\ns_add_u32 s61, s61, s50\ns_lshl_b32 s61, s61, 3\ns_lshl_b32 s42, s3, 1\ns_add_u32 s61, s61, s42\ns_lshl_b32 s61, s61, 10")
    e(f"s_add_u32 s61, s61, {WS_Q}\ns_mov_b32 exec_lo, 0x00ff00ff\ns_mov_b32 exec_hi, 0x00ff00ff")
    e("v_mov_b32 v40, v20\nv_mov_b32 v41, v21\nv_mov_b32 v44, v22\nv_mov_b32 v45, v23")
    e("buffer_store_dwordx4 v[40:43], v52, s[12:15], s40 offen sc1\nbuffer_store_dwordx4 v[44:47], v52, s[12:15], s40 offen offset:128 sc1")
    e("s_mov_b64 exec, -1")
    fstamp(S)
    a.srd(16, 26, 4096 * 512 * 2)
    if abl & 1: e("s_mov_b32 s18, 0")
    if abl & 2: e("s_mov_b32 s14, 0")
    e("v_bfe_u32 v27, v0, 3, 3\nv_lshlrev_b32 v27, 10, v27\nv_and_b32 v28, 7, v0\nv_lshl_add_u32 v27, v28, 4, v27")
    e("s_lshl_b32 s40, s49, 17\ns_lshl_b32 s41, s58, 7\ns_add_u32 s40, s40, s41\ns_lshl_b32 s41, s3, 15\ns_add_u32 s40, s40, s41")
    for t in range(4): e(f"buffer_load_dwordx4 v[{96+4*t}:{99+4*t}], v27, s[16:19], s40 offen {wf}\ns_add_u32 s40, s40, 8192")
    e("v_mov_b32 v28, -1\nv_mov_b32 v29, -1\nv_mov_b32 v30, -1\nv_mov_b32 v31, -1\nv_and_b32 v27, 255, v0")
    e(f"s_lshl_b32 s40, s51, 2\ns_add_u32 s40, s40, s48\ns_lshl_b32 s54, s40, 10\ns_add_u32 s54, s54, {WS_O}\ns_xor_b32 s85, s54, 0x1800\nv_lshlrev_b32 v32, 2, v27")
    e("buffer_store_dword v28, v32, s[12:15], s54 offen sc1\nbuffer_store_dword v28, v32, s[12:15], s85 offen sc1")
    e("v_lshlrev_b32 v33, 16, v2\nv_bfe_u32 v34, v0, 3, 1\nv_lshl_add_u32 v33, v34, 10, v33\nv_and_b32 v34, 7, v0\nv_lshl_add_u32 v33, v34, 2, v33")
    e(f"s_lshl_b32 s60, s58, 13\ns_lshl_b32 s40, s3, 11\ns_add_u32 s60, s60, s40\ns_lshl_b32 s40, s49, 5\ns_add_u32 s60, s60, s40\ns_add_u32 s60, s60, {WS_Y}")
    e("buffer_store_dword v28, v33, s[12:15], s60 offen sc1")
    e("s_lshr_b32 s79, s2, 3\ns_sub_u32 s79, s79, 16\ns_lshl_b32 s79, s79, 2\ns_add_u32 s79, s79, s77\ns_lshl_b32 s79, s79, 2\ns_add_u32 s79, s79, s3\ns_cmp_eq_u32 s48, 1\ns_cselect_b32 s79, s79, 0x10000")
    e("v_bfe_u32 v36, v0, 2, 1\nv_bfe_u32 v37, v0, 3, 1\nv_lshl_add_u32 v36, v37, 1, v36\nv_bfe_u32 v37, v0, 5, 1\nv_lshl_add_u32 v36, v37, 2, v36")
    e("v_and_b32 v37, 3, v0\nv_bfe_u32 v38, v0, 4, 1\nv_lshl_add_u32 v37, v38, 2, v37\nv_lshlrev_b32 v37, 13, v37\nv_lshl_add_u32 v37, v36, 2, v37")
    e(f"s_lshl_b32 s55, s79, 5\ns_add_u32 s55, s55, {WS_H}\ns_cmp_lt_u32 s79, 256\ns_cselect_b32 s55, s55, 0x40000000\nbuffer_store_dword v28, v37, s[12:15], s55 offen sc1")
    e(f"s_lshl_b32 s59, s2, 13\ns_add_u32 s59, s59, {WS_D}\ns_cmp_lt_u32 s2, {NG}\ns_cselect_b32 s59, s59, 0x40000000\ns_add_u32 s40, s59, 4096\nv_lshlrev_b32 v27, 4, v27")
    e("buffer_store_dwordx4 v[28:31], v27, s[12:15], s59 offen sc1\nbuffer_store_dwordx4 v[28:31], v27, s[12:15], s40 offen sc1")
    a.srd(16, 20, 4096)
    e("v_lshlrev_b32 v38, 1, v36\ns_lshl_b32 s40, s79, 4\nbuffer_load_ushort v39, v38, s[16:19], s40 offen")
    e("v_and_b32 v52, 7, v0\nv_and_b32 v53, 63, v0\nv_lshlrev_b32 v53, 1, v53\nv_sub_u32 v52, v53, v52\nv_lshlrev_b32 v52, 2, v52\ns_lshl_b32 s40, s3, 9\nv_add_u32 v52, s40, v52")
    if abl & 2: e("s_mov_b32 s14, 0x40000000")
    if abl & 4: e("s_waitcnt vmcnt(0)\ns_branch L_pq_ok")
    e("s_mov_b32 s66, 0\nL_pq:")
    e("buffer_load_dwordx4 v[64:67], v1, s[12:15], s61 offen sc1\nbuffer_load_dwordx4 v[68:71], v1, s[12:15], s61 offen offset:1024 sc1\ns_waitcnt vmcnt(0)")
    e("v_xor_b32 v72, s56, v66\nv_xor_b32 v73, s57, v67\nv_xor_b32 v74, s56, v70\nv_xor_b32 v75, s57, v71\nv_or3_b32 v72, v72, v73, v74\nv_or_b32 v72, v72, v75")
    e(f"v_cmp_ne_u32 vcc, 0, v72\ns_cbranch_vccz L_pq_ok\ns_mov_b64 exec, vcc\ns_add_u32 s66, s66, 1\ns_cmp_gt_u32 s66, 400000\ns_cbranch_scc1 L_pq_ok\ns_sleep {qsleep}\ns_branch L_pq\nL_pq_ok:\ns_mov_b64 exec, -1")
    e(f"v_add_f32 v64, v64, v68\nv_add_f32 v65, v65, v69\nds_write_b32 v52, v64 offset:{L_QP}\nds_write_b32 v52, v65 offset:{L_QP+32}\ns_waitcnt lgkmcnt(0)")
    fstamp(S)
    e("s_barrier")
    if hexit == 1: e("s_endpgm")
    e(f"v_lshlrev_b32 v39, 16, v39\nv_mov_b32 v28, {L_PR}\nv_mov_b32 v29, 1\ns_mov_b64 exec, 1\nds_add_rtn_u32 v29, v28, v29 offset:4\ns_waitcnt lgkmcnt(0)\ns_mov_b64 exec, -1\nv_readfirstlane_b32 s70, v29")
    e(f"v_bfe_u32 v25, v0, 2, 2\nv_lshlrev_b32 v25, 7, v25\nv_lshl_add_u32 v25, v2, 10, v25\nv_and_b32 v28, 3, v0\nv_lshl_add_u32 v25, v28, 3, v25\ns_lshl_b32 s41, s3, 5\ns_add_u32 s41, s41, {L_TR}\nv_add_u32 v25, s41, v25")
    for t in range(4): e(f"ds_write_b128 v24, v[{96+4*t}:{99+4*t}] offset:{1024*t}")
    gsync(12)
    for ks in range(4):
        for hh in range(2):
            e(f"ds_read_b64_tr_b16 v[{112+4*ks+2*hh}:{113+4*ks+2*hh}], v25 offset:{4096*ks+512*hh}")
    def wait_progress(lbl, sreg):
        e(f"v_mov_b32 v28, {L_PR}\n{lbl}:\nds_read_b32 v29, v28\ns_waitcnt lgkmcnt(0)\nv_readfirstlane_b32 s40, v29\ns_cmp_ge_u32 s40, {sreg}\ns_cbranch_scc1 {lbl}_ok\ns_sleep 32\ns_branch {lbl}\n{lbl}_ok:")
    def glu_loads():
        a.srd(16, 32, 512 * 1792 * 2)
        e("v_lshlrev_b32 v26, 13, v2\nv_lshl_add_u32 v26, v3, 3, v26\ns_lshl_b32 s40, s78, 15\ns_lshl_b32 s41, s3, 8\ns_add_u32 s40, s40, s41")
        for ee in range(8):
            if ee == 4: e("s_add_u32 s40, s40, 4096")
            e(f"buffer_load_dwordx2 v[{64+4*ee}:{65+4*ee}], v26, s[16:19], s40 offen offset:{(ee%4)*1024} {wf}")
            e(f"buffer_load_dwordx2 v[{66+4*ee}:{67+4*ee}], v26, s[16:19], s40 offen offset:{(ee%4)*1024+128} {wf}")
        e("s_cmp_lt_u32 s3, 2\ns_cselect_b32 s42, s28, s30\ns_cselect_b32 s43, s29, s31")
        a.srd(16, 42, 512 * 1792 * 2)
        e("v_bfe_u32 v26, v0, 2, 4\nv_mul_u32_u24 v26, 3584, v26\nv_and_b32 v28, 3, v0\nv_lshl_add_u32 v26, v28, 4, v26")
        e(f"s_lshl_b32 s40, s78, 6\ns_and_b32 s41, s3, 1\ns_mul_i32 s41, s41, {256*3584}\ns_add_u32 s40, s40, s41")
        for t in range(16): e(f"buffer_load_dwordx4 v[{128+4*t}:{131+4*t}], v26, s[16:19], s40 offen {guf}\ns_add_u32 s40, s40, {16*3584}")
    e("s_lshr_b32 s78, s51, 1\ns_and_b32 s40, s51, 1")
    if gmap == 2: e("s_bfe_u32 s41, s2, 0x10004\ns_xor_b32 s40, s40, s41")
    e(f"s_or_b32 s40, s40, s48\ns_cmp_eq_u32 s40, 0\ns_cselect_b32 s78, s78, 255\ns_cmp_ge_u32 s78, {NG}\ns_cbranch_scc1 L_nogw")
    if gmap: e("s_and_b32 s40, s78, 1\ns_bfe_u32 s41, s78, 0x10001\ns_andn2_b32 s78, s78, 3\ns_lshl_b32 s40, s40, 1\ns_or_b32 s78, s78, s40\ns_or_b32 s78, s78, s41")
    glu_loads()
    e("s_mov_b32 s80, 0x05040100\ns_mov_b32 s81, 0x07060302")
    e(f"s_lshl_b32 s41, s3, 14\ns_add_u32 s41, s41, {L_GU}\nv_add_u32 v24, s41, v1")
    e(f"v_bfe_u32 v25, v0, 2, 2\nv_lshlrev_b32 v25, 6, v25\nv_lshl_add_u32 v25, v2, 9, v25\nv_and_b32 v28, 3, v0\nv_lshl_add_u32 v25, v28, 3, v25")
    e(f"s_lshr_b32 s41, s3, 1\ns_lshl_b32 s41, s41, 15\ns_and_b32 s42, s3, 1\ns_lshl_b32 s42, s42, 5\ns_add_u32 s41, s41, s42\ns_add_u32 s41, s41, {L_GU}\nv_add_u32 v25, s41, v25")
    e("s_waitcnt vmcnt(16)")
    for j in range(8):
        for q in range(4):
            e(f"v_perm_b32 v{192+4*j+q}, v{64+4*(2*q+1)+(j>>1)}, v{64+4*(2*q)+(j>>1)}, {'s80' if j%2==0 else 's81'}")
    for t in range(16): e(f"s_waitcnt vmcnt({15-t})\nds_write_b128 v24, v[{128+4*t}:{131+4*t}] offset:{1024*t}")
    gsync(12)
    for ks in range(16):
        for hh in range(2):
            e(f"ds_read_b64_tr_b16 v[{128+4*ks+2*hh}:{129+4*ks+2*hh}], v25 offset:{2048*ks+256*hh}")
    e(f"s_and_b32 s40, s78, 7\ns_lshl_b32 s40, s40, 13\ns_lshl_b32 s41, s3, 11\ns_add_u32 s73, s40, s41\ns_add_u32 s73, s73, {WS_H}\nv_lshlrev_b32 v46, 1, v1")
    e(f"s_mul_i32 s40, s3, 1040\nv_add_u32 v47, s40, v1\nv_and_b32 v43, 3, v0\nv_mul_u32_u24 v43, 1040, v43\nv_lshl_add_u32 v43, v2, 4, v43")
    e("v_lshlrev_b32 v40, 2, v3\ns_lshr_b32 s40, s3, 1\ns_lshl_b32 s40, s40, 9\ns_and_b32 s41, s3, 1\ns_lshl_b32 s41, s41, 6\ns_add_u32 s40, s40, s41\nv_add_u32 v40, s40, v40")
    e("v_bfe_u32 v41, v0, 2, 2\nv_lshlrev_b32 v41, 7, v41\nv_lshl_add_u32 v41, v2, 5, v41\nv_and_b32 v61, 3, v0\nv_lshl_add_u32 v41, v61, 3, v41")
    e(f"v_lshlrev_b32 v42, 11, v2\nv_lshl_add_u32 v42, v3, 4, v42\ns_lshl_b32 s59, s78, 13\ns_lshl_b32 s40, s3, 9\ns_add_u32 s59, s59, s40\ns_add_u32 s59, s59, {WS_D}")
    e("L_nogw:")
    e("s_cmp_lg_u32 s70, 3\ns_cbranch_scc1 L_noinit\ns_bfe_u32 s41, s2, 0x20003\ns_add_u32 s41, s41, 1")
    wait_progress("L_iw", "s41")
    e("s_mov_b32 s64, 1\ns_atomic_add s64, s[44:45], 0\nL_noinit:")
    e("v_lshlrev_b32 v34, 10, v2\nv_lshl_add_u32 v35, v3, 5, v34")
    e(f"s_lshl_b32 s40, s49, 12\ns_lshl_b32 s41, s3, 17\ns_add_u32 s88, s40, s41\ns_add_u32 s88, s88, {WS_O}")
    e("v_lshlrev_b32 v4, 4, v3\nv_lshl_add_u32 v4, v2, 2, v4\nv_bfe_u32 v5, v0, 4, 1\nv_bfe_u32 v6, v0, 5, 1\nv_lshlrev_b32 v4, 4, v3\nv_lshl_add_u32 v4, v6, 3, v4\nv_lshl_add_u32 v4, v5, 2, v4\ns_mul_i32 s40, s3, 272\nv_add_u32 v4, s40, v4")
    e("v_bfe_u32 v5, v0, 2, 2\nv_mul_u32_u24 v5, 272, v5\nv_lshl_add_u32 v5, v2, 4, v5")
    e("s_lshl_b32 s40, s3, 5\nv_lshlrev_b32 v6, 2, v36\nv_add_u32 v6, s40, v6\nv_and_b32 v7, 7, v0\nv_lshlrev_b32 v7, 4, v7\nv_bfe_u32 v37, v0, 3, 3\nv_lshl_add_u32 v37, v37, 13, v7")
    e(f"s_lshl_b32 s62, s79, 10\ns_add_u32 s62, s62, {WS_Y}\nv_and_b32 v44, 31, v0\nv_lshlrev_b32 v44, 5, v44\nv_bfe_u32 v45, v0, 5, 1\nv_lshl_add_u32 v44, v45, 4, v44")
    e(f"v_lshlrev_b32 v45, 9, v1\ns_lshl_b32 s63, s79, 5\ns_add_u32 s63, s63, {WS_D}\ns_lshl_b32 s67, s79, 4")
    e(f"s_cmp_lg_u32 s3, 1\ns_cbranch_scc1 L_nokd\nv_mov_b32 v28, {L_PR}\nL_kw:\nds_read_b32 v29, v28 offset:20\ns_waitcnt lgkmcnt(0)\nv_readfirstlane_b32 s40, v29\ns_cmp_ge_u32 s40, 4\ns_cbranch_scc1 L_kw1\ns_sleep 16\ns_branch L_kw\nL_kw1:")
    dstamp(3); dstamp(6, True)
    e(f"v_mov_b32 v28, {L_PX}\nds_read_b128 v[48:51], v28 offset:16\nds_read_b32 v52, v28 offset:4\ns_lshl_b32 s40, s51, 1\ns_add_u32 s40, s40, s48\ns_lshl_b32 s40, s40, 6\ns_add_u32 s40, s40, {WS_KD}\nv_mov_b32 v29, 0\ns_waitcnt lgkmcnt(0)")
    e("v_max_f32 v48, v48, v49\nv_max3_f32 v48, v48, v50, v51\nv_mov_b32 v49, v52\nv_mov_b32 v50, s56\nv_mov_b32 v51, s57\ns_mov_b64 exec, 1\nbuffer_store_dwordx4 v[48:51], v29, s[12:15], s40 offen sc1\ns_xor_b32 s40, s40, 64\ns_mov_b32 s66, 0")
    e("L_kp:\nbuffer_load_dwordx4 v[52:55], v29, s[12:15], s40 offen sc1\ns_waitcnt vmcnt(0)\nv_xor_b32 v54, s56, v54\nv_xor_b32 v55, s57, v55\nv_or_b32 v54, v54, v55\nv_cmp_ne_u32 vcc, 0, v54\ns_cbranch_vccz L_kp1\ns_add_u32 s66, s66, 1\ns_cmp_gt_u32 s66, 400000\ns_cbranch_scc1 L_kp1\ns_sleep 8\ns_branch L_kp")
    e("L_kp1:\nv_mov_b32 v53, v52\nv_mov_b32 v52, 1\nds_write_b64 v28, v[52:53] offset:8\ns_mov_b64 exec, -1\nL_nokd:")
    if steal:
        e("s_cmp_lg_u32 s3, 2\ns_cbranch_scc1 L_nosk")
        wait_progress("L_sw", NS + 4)
        e(f"s_add_u32 s82, s82, 1\ns_addc_u32 s83, s83, 0\ns_xor_b32 s40, s51, 1\ns_lshl_b32 s41, s40, 7\ns_add_u32 s41, s41, {WS_KD}\nv_mov_b32 v29, 0\nv_mov_b32 v28, {L_PX}\ns_mov_b64 exec, 1\ns_mov_b32 s66, 0")
        e("L_sp:\nbuffer_load_dwordx4 v[48:51], v29, s[12:15], s41 offen sc1\nbuffer_load_dwordx4 v[52:55], v29, s[12:15], s41 offen offset:64 sc1\ns_waitcnt vmcnt(0)")
        e("v_xor_b32 v50, s82, v50\nv_xor_b32 v51, s83, v51\nv_xor_b32 v54, s82, v54\nv_xor_b32 v55, s83, v55\nv_or3_b32 v50, v50, v51, v54\nv_or_b32 v50, v50, v55\nv_cmp_ne_u32 vcc, 0, v50\ns_cbranch_vccz L_sp1\ns_add_u32 s66, s66, 1\ns_cmp_gt_u32 s66, 64\ns_cbranch_scc1 L_sp2\ns_sleep 32\ns_branch L_sp")
        e("L_sp1:\nv_max_f32 v50, v48, v52\nv_mov_b32 v48, 1\nds_write_b32 v28, v50 offset:36\nds_write_b32 v28, v49 offset:40\ns_waitcnt lgkmcnt(0)\nds_write_b32 v28, v48 offset:32\nL_sp2:\ns_mov_b64 exec, -1\nL_nosk:")
    wait_progress("L_w2", NS + 3)
    if cpf and cpf2:
        e("v_and_b32 v28, 255, v0\nv_lshlrev_b32 v28, 4, v28\nv_add_u32 v29, (L_lastF-L_pc)&0xffffff80, v28\nv_add_u32 v28, (L_wf-L_pc)&0xffffff80, v28\nv_min_u32 v28, (L_end-L_pc-16)&0xfffffff0, v28")
        e("global_load_dword v61, v28, s[90:91]\nglobal_load_dword v61, v29, s[90:91]")
    e("v_lshrrev_b32 v28, 1, v1\nv_mov_b32 v29, 0")
    a.srd(16, 44, 256)
    e("s_mov_b32 s66, 0\nL_initchk:\nbuffer_load_dword v31, v29, s[16:19], 0 offen sc1\ns_waitcnt vmcnt(0)\nv_readfirstlane_b32 s64, v31\ns_cmp_ge_u32 s64, 256\ns_cbranch_scc1 L_initok\ns_add_u32 s66, s66, 1\ns_cmp_gt_u32 s66, 200000\ns_cbranch_scc1 L_initok\ns_sleep 8\ns_branch L_initchk\nL_initok:")
    if hexit == 2: e("s_endpgm")
    e(f"s_setprio 0\nv_mov_b32 v27, {L_PR}\nL_wf:\nds_read_b32 v30, v27 offset:16\ns_waitcnt lgkmcnt(0)\nv_readfirstlane_b32 s40, v30\ns_cmp_ge_u32 s40, 4\ns_cbranch_scc1 L_wf_ok\ns_sleep {wsleep}\ns_branch L_wf\nL_wf_ok:\ns_setprio {prio}")
    e(f"v_lshrrev_b32 v28, 1, v1\ns_cmp_eq_u32 s3, 0\ns_cselect_b32 s54, s54, s85\ns_mov_b32 s40, {L_OB}\ns_cselect_b32 s40, {L_OA}, s40\nv_add_u32 v30, s40, v28\ns_mov_b32 s40, {L_MLB}\ns_cselect_b32 s40, {L_ML}, s40\nv_mov_b32 v29, s40")
    a.srd(16, 34, 4096)
    fstamp(S)
    if dbgt:
        e("s_cmp_lg_u32 s3, 3\ns_cbranch_scc1 L_d1"); dstamp(4); dstamp(7, True); e("L_d1:")
    e("s_cmp_ge_u32 s3, 2\ns_cbranch_scc1 L_st2")
    e("ds_read_b128 v[48:51], v29\nds_read_b128 v[52:55], v29 offset:16")
    for w in range(4): e(f"ds_read_b64 v[{64+2*w}:{65+2*w}], v30 offset:{1024*w}")
    e("s_waitcnt lgkmcnt(4)\nv_max_f32 v56, v48, v50\nv_max3_f32 v56, v56, v52, v54")
    for w in range(4): e(f"v_sub_f32 v{58+w}, v{48+2*w}, v56")
    for w in range(4): e(f"v_mul_f32 v{58+w}, {LOG2E}, v{58+w}")
    for w in range(4): e(f"v_exp_f32 v{58+w}, v{58+w}")
    e("s_waitcnt lgkmcnt(0)\nv_mul_f32 v57, v58, v49\nv_mul_f32 v64, v64, v58\nv_mul_f32 v65, v65, v58")
    for w in range(1, 4): e(f"v_fmac_f32 v57, v{58+w}, v{49+2*w}\nv_fmac_f32 v64, v{64+2*w}, v{58+w}\nv_fmac_f32 v65, v{65+2*w}, v{58+w}")
    e("v_min_u32 v64, -2, v64\nv_min_u32 v65, -2, v65\nv_min_u32 v56, -2, v56\nv_min_u32 v57, -2, v57")
    e("buffer_store_dwordx2 v[64:65], v28, s[12:15], s54 offen sc1\ns_mov_b64 exec, 1\nbuffer_store_dwordx2 v[56:57], v28, s[12:15], s54 offen offset:512 sc1\ns_mov_b64 exec, -1")
    fstamp(S)
    e("L_st2:")
    poll("L_p1", ["buffer_load_dwordx4 v[64:67], v35, s[12:15], s88 offen sc1", "buffer_load_dwordx4 v[68:71], v35, s[12:15], s88 offen offset:16 sc1",
                  "buffer_load_dwordx2 v[56:57], v34, s[12:15], s88 offen offset:512 sc1"], [f"v{i}" for i in range(64, 72)] + ["v56", "v57"], slp=lsleep)
    e("v_mov_b32 v58, v56\nv_mov_b32 v59, v56\ns_nop 1\nv_permlane16_swap_b32 v58, v59\ns_nop 0\nv_max_f32 v58, v58, v59\nv_mov_b32 v59, v58\ns_nop 1\nv_permlane32_swap_b32 v58, v59\ns_nop 0\nv_max_f32 v58, v58, v59")
    e(f"v_sub_f32 v56, v56, v58\nv_mul_f32 v56, {LOG2E}, v56\nv_exp_f32 v56, v56\ns_nop 0\nv_mul_f32 v57, v57, v56")
    for k in range(8): e(f"v_mul_f32 v{64+k}, v{64+k}, v56")
    e("v_mov_b32 v59, v57\ns_nop 0")
    for k in range(4): e(f"v_permlane32_swap_b32 v{64+k}, v{68+k}")
    e("v_permlane16_swap_b32 v57, v59")
    for k in range(4): e(f"v_add_f32 v{64+k}, v{64+k}, v{68+k}")
    e("v_add_f32 v57, v57, v59\nv_mov_b32 v59, v57\nv_permlane16_swap_b32 v64, v66\nv_permlane16_swap_b32 v65, v67\nv_permlane32_swap_b32 v57, v59\ns_nop 0")
    e("v_add_f32 v57, v57, v59\nv_rcp_f32 v57, v57\nv_add_f32 v64, v64, v66\nv_add_f32 v65, v65, v67\nv_mul_f32 v64, v64, v57\nv_mul_f32 v65, v65, v57")
    e(f"v_cvt_pk_bf16_f32 v64, v64, v65\nds_write_b32 v4, v64 offset:{L_ON}\ns_waitcnt lgkmcnt(0)\ns_barrier")
    for ks in range(4): e(f"ds_read_b128 v[{80+4*ks}:{83+4*ks}], v5 offset:{L_ON+64*ks}")
    for ks in range(4):
        e(f"s_waitcnt lgkmcnt({3-ks})")
        e(f"v_mfma_f32_16x16x32_bf16 v[20:23], v[{80+4*ks}:{83+4*ks}], v[{112+4*ks}:{115+4*ks}], {'0' if ks == 0 else 'v[20:23]'}")
    e("s_nop 7\nv_min_u32 v20, -2, v20\nbuffer_store_dword v20, v33, s[12:15], s60 offen sc1")
    fstamp(S)
    e("s_cmp_ge_u32 s79, 256\ns_cbranch_scc1 L_glu")
    poll("L_p3", ["buffer_load_dwordx4 v[48:51], v44, s[12:15], s62 offen sc1"], [f"v{i}" for i in range(48, 52)], slp=s3sleep)
    e("s_nop 3")
    red4()
    a.rbf("v48"); e("v_add_f32 v48, v48, v39"); a.rbf("v48")
    e(f"v_min_u32 v39, -2, v48\nds_write_b32 v6, v39 offset:{L_HG}\ns_waitcnt lgkmcnt(0)\ns_barrier\ns_cmp_lg_u32 s3, 0\ns_cbranch_scc1 L_nohp")
    e(f"ds_read_b128 v[48:51], v7 offset:{L_HG}\ns_waitcnt lgkmcnt(0)\nbuffer_store_dwordx4 v[48:51], v37, s[12:15], s55 offen sc1\nL_nohp:")
    fstamp(S)
    e(f"L_glu:\ns_cmp_ge_u32 s78, {NG}\ns_cbranch_scc1 L_s5")
    poll("L_p4", ["buffer_load_dwordx4 v[48:51], v46, s[12:15], s73 offen sc1", "buffer_load_dwordx4 v[52:55], v46, s[12:15], s73 offen offset:16 sc1"], [f"v{i}" for i in range(48, 56)], slp=hsleep)
    fstamp(S)
    ln8(48, 56)
    e(f"ds_write_b128 v47, v[48:51] offset:{L_HN}")
    e("s_mov_b64 exec, -1\ns_waitcnt lgkmcnt(0)\ns_barrier")
    if gst: fstamp(S)
    for ks in range(12): e(f"ds_read_b128 v[{64+4*ks}:{67+4*ks}], v43 offset:{L_HN+64*ks}")
    for ks in range(12, 16): e(f"ds_read_b128 v[{224+4*(ks-12)}:{227+4*(ks-12)}], v43 offset:{L_HN+64*ks}")
    for ks in range(16):
        e(f"s_waitcnt lgkmcnt({15-ks})")
        c = "0" if ks < 2 else f"v[{20+4*(ks&1)}:{23+4*(ks&1)}]"
        ar = 64 + 4 * ks if ks < 12 else 224 + 4 * (ks - 12)
        e(f"v_mfma_f32_16x16x32_bf16 v[{20+4*(ks&1)}:{23+4*(ks&1)}], v[{ar}:{ar+3}], v[{128+4*ks}:{131+4*ks}], {c}")
    e("s_mov_b64 exec, 0xffff\ns_nop 6")
    for r in range(4): e(f"v_add_f32 v{20+r}, v{20+r}, v{24+r}\nds_write_b32 v40, v{20+r} offset:{L_AC+128*r}")
    e("s_mov_b64 exec, -1\ns_waitcnt lgkmcnt(0)\ns_barrier")
    if gst: fstamp(S)
    e(f"ds_read_b64 v[20:21], v41 offset:{L_AC}\nds_read_b64 v[22:23], v41 offset:{L_AC+512}\ns_waitcnt lgkmcnt(1)")
    e("v_cvt_pk_bf16_f32 v20, v20, v21\nv_and_b32 v21, 0xffff0000, v20\nv_lshlrev_b32 v20, 16, v20\nv_mul_f32 v21, 0xbfb8aa3b, v21\nv_mul_f32 v20, 0xbfb8aa3b, v20\nv_exp_f32 v21, v21\nv_exp_f32 v20, v20")
    e("s_waitcnt lgkmcnt(0)\nv_cvt_pk_bf16_f32 v22, v22, v23\nv_add_f32 v21, 1.0, v21\nv_add_f32 v20, 1.0, v20\nv_rcp_f32 v21, v21\nv_rcp_f32 v20, v20\nv_and_b32 v23, 0xffff0000, v22\nv_lshlrev_b32 v22, 16, v22")
    e("v_cvt_pk_bf16_f32 v20, v20, v21\nv_and_b32 v21, 0xffff0000, v20\nv_lshlrev_b32 v20, 16, v20\nv_mul_f32 v21, v21, v23\nv_mul_f32 v20, v20, v22\nv_cvt_pk_bf16_f32 v36, v20, v21\ns_nop 1")
    for q in range(4): e(f"v_mov_b32_dpp v{32+q}, v36 quad_perm:[{q},{q},{q},{q}] row_mask:0xf bank_mask:0xf")
    e("s_nop 1")
    for j in range(8):
        e(f"v_mfma_f32_16x16x32_bf16 v[{64+4*j}:{67+4*j}], v[32:35], v[{192+4*j}:{195+4*j}], 0")
    e("s_nop 0")
    for j in range(4): e(f"v_min_u32 v{96+j}, -2, v{64+4*j}")
    e("s_nop 0\nbuffer_store_dwordx4 v[96:99], v42, s[12:15], s59 offen sc1")
    for j in range(4, 8): e(f"v_min_u32 v{96+j}, -2, v{64+4*j}")
    e("buffer_store_dwordx4 v[100:103], v42, s[12:15], s59 offen offset:256 sc1")
    fstamp(S)
    e("L_s5:\ns_cmp_ge_u32 s79, 256\ns_cbranch_scc1 L_fin")
    for j in range(8): e(f"v_mov_b32 v{48+j}, 0")
    e(f"s_mov_b32 exec_lo, -1\ns_mov_b32 exec_hi, {(1 << (NG - 32)) - 1:#x}")
    poll("L_p6", ["buffer_load_dwordx4 v[48:51], v45, s[12:15], s63 offen sc1", "buffer_load_dwordx4 v[52:55], v45, s[12:15], s63 offen offset:16 sc1"], [f"v{i}" for i in range(48, 56)], slp=s5sleep)
    e("s_nop 3")
    for i in range(4): e(f"v_permlane32_swap_b32 v{48+i}, v{52+i}")
    e("s_nop 1")
    for i in range(4): e(f"v_add_f32 v{48+i}, v{48+i}, v{52+i}")
    e("s_nop 0")
    red4()
    a.rbf("v48"); e("v_add_f32 v48, v48, v39\nv_cvt_pk_bf16_f32 v48, v48, v48\ns_mov_b32 exec_lo, 0x1111\ns_mov_b32 exec_hi, 0x1111")
    e("buffer_store_short v48, v38, s[16:19], s67 offen")
    dstamp(5)
    fstamp(S)
    e("L_fin:")
    e("s_cmp_lg_u32 s3, 0\ns_cbranch_scc1 L_end")
    e("s_cmp_lg_u32 s58, 0\ns_cbranch_scc1 L_noep\ns_mov_b64 exec, 1\nv_mov_b32 v48, s56\nv_mov_b32 v49, s57\nv_mov_b32 v50, 0\nbuffer_store_dwordx2 v[48:49], v50, s[12:15], s76 offen sc1\nL_noep:")
    fstamp_store(S, 65536)
    e("L_end:\ns_endpgm")
    e('.section .rodata,"a"\n.p2align 6')
    a.descriptor(KN, 256, 96, accum=256)
    return a.text()

if __name__ == "__main__":
    import os, json
    os.makedirs("v15", exist_ok=True)
    names = []
    for spec in sys.argv[1:]:
        kw = {}
        if spec != "base":
            for p in spec.split(","):
                k, v = p.split("=")
                kw[k] = v.replace("+", " ") if k in ("wf", "wqf", "kf", "vf", "guf") else int(v)
        fn = "v15/v15_" + spec.replace(",", "_").replace("=", "") + ".s"
        open(fn, "w").write(gen(**kw))
        names.append(fn)
    print(" ".join(names))
    base = ["work/bench.py", "work/fst9.py", "sequential_preLN__mha_block_cached__glu_gated_glu__decode_np.py", "cdna_kernels/cdna_launch.py", "cdna_kernels/cdna_unwritten_srd_check.py", "work/pair/pair_NS10.s"]
    print(json.dumps(base + ["work/" + f for f in names]))
```

```python
import sys
from asmlib import *
WSZ = 0x40000000
WS_O, WS_Y, WS_H, WS_D, WS_Q, WS_EP, WS_TK, WS_KD, WS_ST, WS_SG = 0x000000, 0x080000, 0x100000, 0x110000, 0x180000, 0x280000, 0x290000, 0x2a0000, 0x300000, 0x400000
NG = 56
LOG2E = "0x3fb8aa3b"
L_XD = 0
L_QP = 8192
L_OA = 10240
L_ML = 14336
L_PX = 19584
L_PR = 14368
L_HN = 14400
L_AC = 18560
L_ON = 0
L_HG = 1152
L_QP2 = 19584
L_OB = L_QP2 + 2048
L_MLB = L_OB + 4096
L_SC = L_MLB + 64
L_TR = L_SC + 4 * 18 * 256
L_GU = L_TR + 16384
LDS_BYTES = L_GU + 65536

def gen(stamps=0, sleep=2, wf="nt", wqf="", prio=3, lsleep=4, thr=32, NS=12, qsleep=4, kfirst=0, hexit=0, dyn=1, s5sleep=3, s3sleep=3, hsleep=3,
        gst=0, D=16, kf="nt", vf="nt", GT=24, wsleep=2, abl=0, steal=1, cpf=0, cpf2=0, comp=2, asc=0, dbgt=0, kdyn=0):
    NM4 = 4 * (32 - 2 * NS)
    a = Asm(); e = a.e
    KN = NAME + "_kernel"
    e(HEADER_COMMENT.rstrip("\n"))
    e(f"; @launch grid=(256,1,1) block=(512,1,1) lds={LDS_BYTES}")
    e('.amdgcn_target "amdgcn-amd-amdhsa--gfx950"\n.text')
    a.kernel_begin(KN)
    def fstamp(reg="v62"):
        if stamps:
            e(f"s_memrealtime s[68:69]\ns_waitcnt lgkmcnt(0)\nv_writelane_b32 {reg}, s68, m0\ns_add_u32 m0, m0, 1")
    def fstamp_store(reg, off):
        if stamps:
            e(f"s_mov_b64 exec, -1\nv_and_b32 v2, 63, v0\nv_lshlrev_b32 v2, 2, v2\ns_lshl_b32 s41, s2, 8\ns_add_u32 s41, s41, {WS_ST+off}\nbuffer_store_dword {reg}, v2, s[12:15], s41 offen sc1")
    def dstamp(word, inv=False):
        if dbgt:
            e("s_memrealtime s[94:95]\ns_waitcnt lgkmcnt(0)")
            if inv: e("s_not_b32 s94, s94")
            e(f"s_atomic_umax s94, s[44:45], {4*word}")
    def allsum(v, t, op="add"):
        e("s_nop 1")
        for ctl in ("quad_perm:[1,0,3,2]", "quad_perm:[2,3,0,1]", "row_half_mirror", "row_mirror"):
            e(f"v_{op}_f32_dpp {v}, {v}, {v} {ctl} row_mask:0xf bank_mask:0xf\ns_nop 1")
        e(f"v_mov_b32 {t}, {v}\ns_nop 1\nv_permlane16_swap_b32 {v}, {t}\ns_nop 1\nv_{op}_f32 {v}, {v}, {t}\nv_mov_b32 {t}, {v}\ns_nop 1\nv_permlane32_swap_b32 {v}, {t}\ns_nop 1\nv_{op}_f32 {v}, {v}, {t}")
    def ln8(X, T):
        s1, s2, t1, t2, u = (f"v{T+i}" for i in range(5))
        e(f"v_readfirstlane_b32 s40, v{X}\ns_nop 1")
        e(f"v_subrev_f32 {s1}, s40, v{X}\nv_mul_f32 {s2}, {s1}, {s1}")
        for i in range(1, 8):
            e(f"v_subrev_f32 {u}, s40, v{X+i}\nv_add_f32 {s1}, {s1}, {u}\nv_fmac_f32 {s2}, {u}, {u}")
        e("s_nop 0")
        for ctl in ("quad_perm:[1,0,3,2]", "quad_perm:[2,3,0,1]", "row_half_mirror", "row_mirror"):
            e(f"v_add_f32_dpp {s1}, {s1}, {s1} {ctl} row_mask:0xf bank_mask:0xf\nv_add_f32_dpp {s2}, {s2}, {s2} {ctl} row_mask:0xf bank_mask:0xf\ns_nop 0")
        for sw in ("v_permlane16_swap_b32", "v_permlane32_swap_b32"):
            e(f"v_mov_b32 {t1}, {s1}\nv_mov_b32 {t2}, {s2}\ns_nop 0\n{sw} {s1}, {t1}\n{sw} {s2}, {t2}\ns_nop 0\nv_add_f32 {s1}, {s1}, {t1}\nv_add_f32 {s2}, {s2}, {t2}")
        e(f"v_mul_f32 {s1}, 0x3b000000, {s1}\nv_mul_f32 {s2}, 0x3b000000, {s2}\nv_fma_f32 {s2}, -{s1}, {s1}, {s2}\nv_max_f32 {s2}, 0, {s2}\nv_add_f32 {s1}, s40, {s1}")
        a.rbf(s2); a.rbf(s1)
        e(f"v_add_f32 {s2}, 0x3727c5ac, {s2}"); a.rbf(s2)
        e(f"v_sqrt_f32 {s2}, {s2}")
        for i in range(8): e(f"v_sub_f32 v{X+i}, v{X+i}, {s1}")
        a.rbf(s2)
        e(f"v_rcp_f32 {s2}, {s2}")
        for i in range(4): e(f"v_cvt_pk_bf16_f32 v{X+2*i}, v{X+2*i}, v{X+2*i+1}")
        for i in range(4): e(f"v_and_b32 v{X+2*i+1}, 0xffff0000, v{X+2*i}\nv_lshlrev_b32 v{X+2*i}, 16, v{X+2*i}")
        for i in range(8): e(f"v_mul_f32 v{X+i}, v{X+i}, {s2}")
        for i in range(4): e(f"v_cvt_pk_bf16_f32 v{X+i}, v{X+2*i}, v{X+2*i+1}")
    def masks():
        for r in range(4):
            e(f"v_mov_b32 v{8+r}, 0\nv_mov_b32 v28, 0xffff\nv_cmp_eq_u32 vcc, {2*r}, v3\ns_nop 1\nv_cndmask_b32 v{8+r}, v{8+r}, v28, vcc")
            e(f"v_mov_b32 v28, 0xffff0000\nv_cmp_eq_u32 vcc, {2*r+1}, v3\ns_nop 1\nv_cndmask_b32 v{8+r}, v{8+r}, v28, vcc")
    cnt = {12: 0, 24: 0}
    def gsync(off):
        cnt[off] += 1
        L = a.label("L_gs")
        e(f"v_mov_b32 v28, {L_PR}\nv_mov_b32 v29, 1\ns_mov_b64 exec, 1\ns_waitcnt lgkmcnt(0)\nds_add_u32 v28, v29 offset:{off}\n{L}:\nds_read_b32 v29, v28 offset:{off}\ns_waitcnt lgkmcnt(0)\nv_readfirstlane_b32 s43, v29\ns_cmp_lt_u32 s43, {4*cnt[off]}\ns_cbranch_scc1 {L}\ns_mov_b64 exec, -1")
    def poll(label, loads, words, slp=None):
        e(f"s_mov_b32 s66, 0\n{label}:")
        for l in loads: e(l)
        e("s_waitcnt vmcnt(0)")
        w = list(words)
        e(f"v_max_u32 v31, {w[0]}, {w[1]}")
        w = w[2:]
        while len(w) >= 2:
            e(f"v_max3_u32 v31, v31, {w[0]}, {w[1]}"); w = w[2:]
        if w: e(f"v_max_u32 v31, v31, {w[0]}")
        e(f"v_cmp_eq_u32 vcc, -1, v31\ns_cbranch_vccz {label}_ok\ns_mov_b64 exec, vcc\ns_add_u32 s66, s66, 1\ns_cmp_gt_u32 s66, 400000\ns_cbranch_scc1 {label}_ok")
        e(f"s_sleep {slp or sleep}\ns_branch {label}\n{label}_ok:\ns_mov_b64 exec, -1")
    def red4():
        for i in range(2):
            e(f"v_add_f32_dpp v{48+i}, v{48+i}, v{48+i} row_ror:8 row_mask:0xf bank_mask:0x3")
            e(f"v_add_f32_dpp v{48+i}, v{50+i}, v{50+i} row_ror:8 row_mask:0xf bank_mask:0xc")
        e("v_add_f32_dpp v48, v48, v48 row_half_mirror row_mask:0xf bank_mask:0x5\ns_nop 0\nv_add_f32_dpp v48, v49, v49 row_half_mirror row_mask:0xf bank_mask:0xa\ns_nop 1")
        e("v_add_f32_dpp v48, v48, v48 quad_perm:[1,0,3,2] row_mask:0xf bank_mask:0xf\ns_nop 1\nv_add_f32_dpp v48, v48, v48 quad_perm:[2,3,0,1] row_mask:0xf bank_mask:0xf")
        e("v_mov_b32 v49, v48\ns_nop 1\nv_permlane16_swap_b32 v48, v49\ns_nop 1\nv_add_f32 v48, v48, v49")

    e("s_cmp_ge_u32 s2, 256\ns_cbranch_scc1 L_end")
    if stamps: e("s_mov_b32 m0, 0\nv_mov_b32 v62, 0\nv_mov_b32 v63, 0")
    e("s_load_dwordx4 s[4:7], s[0:1], 8")
    e("s_load_dwordx4 s[44:47], s[0:1], 80")
    e("s_load_dwordx2 s[20:21], s[0:1], 0")
    e("s_load_dwordx4 s[24:27], s[0:1], 24")
    e("s_load_dwordx4 s[28:31], s[0:1], 48\ns_load_dwordx4 s[32:35], s[0:1], 64")
    if cpf:
        e("s_getpc_b64 s[90:91]\nL_pc:\nv_lshlrev_b32 v4, 4, v0\nv_add_u32 v5, 8192, v4\nv_add_u32 v6, 16384, v4\nv_min_u32 v6, (L_end-L_pc-16)&0xfffffff0, v6")
        e("global_load_dword v61, v4, s[90:91]\nglobal_load_dword v61, v5, s[90:91]\nglobal_load_dword v61, v6, s[90:91]")
    e("v_and_b32 v1, 63, v0\nv_lshrrev_b32 v2, 6, v0\nv_lshlrev_b32 v1, 4, v1\nv_readfirstlane_b32 s3, v2")
    e("s_mov_b32 s36, 0xaaaaaaaa\ns_mov_b32 s37, 0xaaaaaaaa\ns_mov_b32 s38, 0xcccccccc\ns_mov_b32 s39, 0xcccccccc")
    e("s_lshr_b32 s40, s2, 1\ns_xor_b32 s41, s40, s2\ns_and_b32 s41, s41, 1\ns_and_b32 s48, s40, 1")
    e("s_bfe_u32 s40, s2, 0x10002\ns_lshl_b32 s40, s40, 1\ns_or_b32 s77, s41, s40")
    e("s_lshr_b32 s51, s2, 3\ns_lshl_b32 s51, s51, 2\ns_add_u32 s51, s51, s77\ns_and_b32 s49, s51, 31\ns_lshr_b32 s50, s2, 6")
    e("v_bfe_u32 v2, v0, 4, 2\nv_and_b32 v3, 15, v0")
    e("s_cmp_ge_u32 s3, 4\ns_cbranch_scc1 L_helper")
    fstamp()
    e("s_lshl_b32 s54, s51, 21")
    def setoff(k, dst):
        e(f"s_sub_u32 s40, 127, {k}\ns_cmp_eq_u32 s48, 0\ns_cselect_b32 s40, {k}, s40\ns_lshr_b32 s41, s40, 2\ns_lshl_b32 s41, s41, 16\ns_and_b32 s42, s40, 3\ns_lshl_b32 s42, s42, 12\ns_add_u32 {dst}, s54, s41\ns_add_u32 {dst}, {dst}, s42")
    setoff("s3", "s52")
    e("s_mov_b32 s57, s52\ns_mov_b32 s53, 0x10000\ns_cmp_eq_u32 s48, 0\ns_cselect_b32 s53, s53, 0xffff0000\ns_cselect_b32 s55, 1, 0x10000\ns_cselect_b32 s56, 0, 16")
    e("s_waitcnt lgkmcnt(0)\ns_mov_b32 s8, s6\ns_mov_b32 s9, s7")
    a.srd(4, 4, 1 << 28); a.srd(12, 46, WSZ)
    RA, RB, RC = 128, 192, 64
    FL = [kf]
    def ld(i, rb):
        if i % 4 == 0: e(f"s_add_u32 s22, s52, {(i//4)*16384}")
        e(f"buffer_load_dwordx4 v[{rb+4*i}:{rb+4*i+3}], v1, s[4:7], s22 offen offset:{(i%4)*1024} {FL[0]}")
    for blk, rb in enumerate((RA, RB, RC)):
        for i in range(16):
            if blk == 0 and i == kfirst: e("s_barrier")
            ld(i, rb)
        e("s_add_u32 s52, s52, s53")
        if stamps >= 2 and blk < 2: fstamp()
    masks()
    e("v_mov_b32 v20, 0\nv_mov_b32 v21, 0\nv_mov_b32 v22, 0\nv_mov_b32 v23, 0\nv_mov_b32 v24, 0xff7fffff\nv_mov_b32 v25, 0")
    e(f"v_lshlrev_b32 v26, 5, v3\nv_mov_b32 v27, {L_PR}\ns_mov_b32 s65, 0")
    e(f"v_and_b32 v56, 7, v0\nv_lshl_add_u32 v56, v2, 5, v56\nv_bfe_u32 v29, v0, 3, 1\nv_lshl_add_u32 v56, v29, 7, v56\nv_lshlrev_b32 v56, 2, v56\ns_lshl_b32 s40, s3, 10\nv_add_u32 v56, s40, v56\ns_lshl_b32 s40, s3, 3\nv_mov_b32 v57, s40")
    for r in range(4): e(f"ds_write_b32 v56, v20 offset:{L_OB+32*r}")
    e(f"ds_write_b64 v57, v[24:25] offset:{L_MLB}\nv_add_u32 v56, {L_OA}, v56\nv_add_u32 v57, {L_ML}, v57\ns_mov_b32 s87, 0")
    e(f"s_mul_i32 s40, s3, {18*256}\nv_lshrrev_b32 v60, 2, v1\nv_add_u32 v58, s40, v60\nv_mov_b32 v59, v58")
    e(f"s_lshl_b32 s40, s51, 8\ns_add_u32 s40, s40, {WS_TK}\ns_add_u32 s74, s46, s40\ns_addc_u32 s75, s47, 0\ns_lshl_b32 s73, s51, 15\ns_add_u32 s73, s73, {WS_SG}\nv_mov_b32 v61, {L_PX}")
    fstamp()
    e("s_barrier")
    e("ds_read_b64 v[28:29], v61")
    for w in range(4):
        rb = (32, 40, 48, 12)[w]
        e(f"ds_read_b128 v[{rb}:{rb+3}], v26 offset:{L_QP+512*w}\nds_read_b128 v[{rb+4}:{rb+7}], v26 offset:{L_QP+512*w+16}")
    e("s_waitcnt lgkmcnt(0)")
    for j in range(8):
        e(f"v_add_f32 v{32+j}, v{32+j}, v{40+j}\nv_add_f32 v{48+j}, v{48+j}, v{12+j}\nv_add_f32 v{32+j}, v{32+j}, v{48+j}")
    for j in range(4): e(f"v_cvt_pk_bf16_f32 v{4+j}, v{32+2*j}, v{33+2*j}")
    e("v_readfirstlane_b32 s71, v28\nv_readfirstlane_b32 s70, v29")
    def A(i): return f"v{32+i}"
    def kblk(src, wait, issue, glob=False):
        fstamp()
        for i in range(16):
            e(f"s_waitcnt vmcnt({wait(i)})")
            for j in range(4):
                e(f"v_dot2_f32_bf16 {A(i)}, v{src+4*i+j}, v{4+j}, {'0' if j == 0 else A(i)}")
            issue(i)
        for i in range(8):
            e(f"v_add_f32_dpp {A(i)}, {A(i)}, {A(i)} row_ror:8 row_mask:0xf bank_mask:0x3")
            e(f"v_add_f32_dpp {A(i)}, {A(i+8)}, {A(i+8)} row_ror:8 row_mask:0xf bank_mask:0xc")
        for i in range(4):
            e(f"v_add_f32_dpp {A(i)}, {A(i)}, {A(i)} row_half_mirror row_mask:0xf bank_mask:0x5")
            e(f"v_add_f32_dpp {A(i)}, {A(i+4)}, {A(i+4)} row_half_mirror row_mask:0xf bank_mask:0xa")
        e(f"v_cndmask_b32 v28, {A(1)}, {A(0)}, s[36:37]\nv_cndmask_b32 v29, {A(0)}, {A(1)}, s[36:37]")
        e(f"v_cndmask_b32 v30, {A(3)}, {A(2)}, s[36:37]\nv_cndmask_b32 v31, {A(2)}, {A(3)}, s[36:37]")
        e("v_add_f32_dpp v29, v28, v29 quad_perm:[1,0,3,2] row_mask:0xf bank_mask:0xf")
        e("v_add_f32_dpp v31, v30, v31 quad_perm:[1,0,3,2] row_mask:0xf bank_mask:0xf")
        e("v_cndmask_b32 v28, v31, v29, s[38:39]\nv_cndmask_b32 v30, v29, v31, s[38:39]\ns_nop 0")
        e("v_add_f32_dpp v30, v28, v30 quad_perm:[2,3,0,1] row_mask:0xf bank_mask:0xf")
        a.rbf("v30"); e("v_mul_f32 v30, 0x3db504f3, v30"); a.rbf("v30")
        e("v_max_f32 v24, v30, v24")
        if glob: e("buffer_store_dword v30, v60, s[12:15], s58 offen sc1")
        else:
            e(f"ds_write_b32 v58, v30 offset:{L_SC}\nv_add_u32 v58, 256, v58")
            e("s_add_u32 s65, s65, 1\nv_mov_b32 v26, s65\nds_max_u32 v27, v26")
    def vblk(src, wait, issue, pre):
        fstamp()
        e(f"v_sub_f32 v30, v31, v24\nv_mul_f32 v30, {LOG2E}, v30\nv_exp_f32 v30, v30")
        pre()
        e("s_nop 0\nv_add_f32 v25, v25, v30\nv_cvt_pk_bf16_f32 v30, v30, v30\ns_nop 1")
        for i in range(16):
            bb = 12 + 4 * (i & 1)
            for r in range(4):
                e(f"v_and_b32_dpp v{bb+r}, v30, v{8+r} row_newbcast:{i} row_mask:0xf bank_mask:0xf")
            e(f"s_waitcnt vmcnt({wait(i)})\ns_nop 0")
            e(f"v_mfma_f32_16x16x32_bf16 v[20:23], v[{src+4*i}:{src+4*i+3}], v[{bb}:{bb+3}], v[20:23]")
            issue(i)
    none = lambda i: None
    def ask(off): e(f"s_mov_b32 s72, s55\ns_atomic_add s72, s[74:75], {off} glc")
    def decode(base, fail):
        e(f"s_waitcnt lgkmcnt(0)\ns_sub_u32 s72, s72, {base}\ns_and_b32 s42, s72, 0xffff\ns_lshr_b32 s43, s72, 16\ns_add_u32 s42, s42, s43\ns_cmp_ge_u32 s42, {NM4}\ns_cbranch_scc1 {fail}")
        e(f"s_lshr_b32 s72, s72, s56\ns_and_b32 s72, s72, 0xffff\ns_add_u32 s72, s72, {4*NS}")
        setoff("s72", "s52")
        e("s_lshl_b32 s59, s40, 8\ns_add_u32 s59, s59, s73")
    kblk(RA, lambda i: 47, lambda i: ld(i, RA))
    kblk(RB, lambda i: 47 - i, none)
    kblk(RC, lambda i: 31 - i, none)
    if kdyn:
        e(f"L_k:\ns_add_u32 s52, s52, s53\ns_cmp_lg_u32 s65, {NS-2}\ns_cbranch_scc1 L_k2")
        ask(0)
        e("L_k2:")
        kblk(RA, lambda i: 15, lambda i: ld(i, RA))
        e(f"s_cmp_lt_u32 s65, {NS-1}\ns_cbranch_scc1 L_k\ns_mov_b32 s86, 0")
        decode("s71", "L_kl0")
        ask(0)
        e("s_mov_b32 s86, 1\ns_branch L_kl1\nL_kl0:\ns_mov_b32 s52, s57\ns_mov_b32 s4, s8\ns_mov_b32 s5, s9\nL_kl1:")
        kblk(RA, lambda i: 15, lambda i: ld(i, RA))
        e("s_cmp_eq_u32 s86, 0\ns_cbranch_scc1 L_kdone")
        e("L_kd:\ns_mov_b32 s58, s59\ns_mov_b32 s86, 0")
        decode("s71", "L_kd0")
        ask(0)
        e("s_mov_b32 s86, 1\ns_branch L_kd1\nL_kd0:\ns_mov_b32 s52, s57\ns_mov_b32 s4, s8\ns_mov_b32 s5, s9\nL_kd1:")
        kblk(RA, lambda i: 15, lambda i: ld(i, RA), glob=True)
        e("s_cmp_lg_u32 s86, 0\ns_cbranch_scc1 L_kd\nL_kdone:")
    else:
        e("L_k:\ns_add_u32 s52, s52, s53")
        kblk(RA, lambda i: 15, lambda i: ld(i, RA))
        e(f"s_cmp_lt_u32 s65, {NS}\ns_cbranch_scc1 L_k\ns_add_u32 s72, s3, {4*NS}")
        setoff("s72", "s58")
        e(f"s_lshl_b32 s58, s40, 8\ns_add_u32 s58, s58, s73\ns_ashr_i32 s59, s53, 6\ns_mov_b32 s64, {NS}")
        e("L_kd:\ns_add_u32 s52, s52, s53\ns_cmp_lt_u32 s64, 15\ns_cbranch_scc1 L_kd1\ns_mov_b32 s52, s57\ns_mov_b32 s4, s8\ns_mov_b32 s5, s9\nL_kd1:")
        kblk(RA, lambda i: 15, lambda i: ld(i, RA), glob=True)
        e("s_add_u32 s58, s58, s59\ns_add_u32 s64, s64, 1\ns_cmp_lt_u32 s64, 16\ns_cbranch_scc1 L_kd")
    allsum("v24", "v29", "max")
    e(f"s_lshl_b32 s40, s3, 2\nv_add_u32 v28, s40, v61\nds_write_b32 v28, v24 offset:16\ns_waitcnt lgkmcnt(0)\nds_read_b32 v31, v59 offset:{L_SC}\nv_add_u32 v59, 256, v59\ns_mov_b32 s64, 0")
    FL[0] = vf
    def pre_own(): e(f"ds_read_b32 v31, v59 offset:{L_SC}\nv_add_u32 v59, 256, v59")
    e(f"L_v:\ns_add_u32 s52, s52, s53\ns_waitcnt lgkmcnt(0)\ns_cmp_lg_u32 s64, {NS-2}\ns_cbranch_scc1 L_v2")
    e("L_vw:\nds_read_b128 v[32:35], v61\nds_read_b128 v[36:39], v61 offset:16\ns_waitcnt lgkmcnt(0)\nv_readfirstlane_b32 s40, v34\ns_cmp_lg_u32 s40, 0\ns_cbranch_scc1 L_vw1\ns_sleep 8\ns_branch L_vw\nL_vw1:")
    e(f"v_max3_f32 v35, v35, v36, v37\nv_max3_f32 v35, v35, v38, v39\nv_sub_f32 v29, v24, v35\nv_mul_f32 v29, {LOG2E}, v29\nv_exp_f32 v29, v29\nv_mov_b32 v24, v35\nv_mul_f32 v25, v25, v29")
    for r in range(4): e(f"v_mul_f32 v{20+r}, v{20+r}, v29")
    ask(4)
    e("L_v2:")
    vblk(RA, lambda i: 15, lambda i: ld(i, RA), pre_own)
    e("s_add_u32 s64, s64, 1\ns_add_u32 s65, s65, 1\nv_mov_b32 v26, s65\nds_max_u32 v27, v26\ns_cmp_lg_u32 s64, 1\ns_cbranch_scc1 L_v3")
    e("v_mov_b32 v26, 1\ns_mov_b64 exec, 1\nds_add_u32 v27, v26 offset:20\ns_mov_b64 exec, -1\nL_v3:")
    e(f"s_cmp_lt_u32 s64, {NS-1}\ns_cbranch_scc1 L_v")
    e("L_vd:")
    decode("s70", "L_vlast")
    ask(4)
    def pre_sh(): e("buffer_load_dword v31, v60, s[12:15], s59 offen sc1")
    vblk(RA, lambda i: 15, lambda i: ld(i, RA), pre_sh)
    e("s_waitcnt vmcnt(16)\ns_branch L_vd\nL_vlast:")
    if steal:
        e("s_mov_b32 s86, 0\ns_cmp_lg_u32 s87, 0\ns_cbranch_scc1 L_nosib\nds_read_b128 v[48:51], v61 offset:32\ns_waitcnt lgkmcnt(0)\nv_readfirstlane_b32 s40, v48\nv_readfirstlane_b32 s70, v50\ns_cmp_eq_u32 s40, 0\ns_cbranch_scc1 L_nosib")
        e("s_xor_b32 s74, s74, 256\ns_xor_b32 s54, s54, 0x200000\ns_xor_b32 s73, s73, 0x8000")
        ask(4)
        e("s_mov_b32 s86, 1\nL_nosib:")
    vblk(RA, lambda i: 15 - i, none, lambda: None)
    fstamp()
    allsum("v25", "v29")
    for r in range(4): e(f"ds_write_b32 v56, v{20+r} offset:{32*r}")
    e("ds_write_b64 v57, v[24:25]")
    if steal:
        e("s_cmp_eq_u32 s86, 0\ns_cbranch_scc1 L_done")
        decode("s70", "L_done")
        pre_sh()
        for i in range(16): ld(i, RA)
        e(f"s_mov_b32 s87, 1\nv_add_u32 v56, {L_OB-L_OA}, v56\nv_add_u32 v57, {L_MLB-L_ML}, v57")
        ask(4)
        e("v_mov_b32 v20, 0\nv_mov_b32 v21, 0\nv_mov_b32 v22, 0\nv_mov_b32 v23, 0\nv_mov_b32 v24, v49\nv_mov_b32 v25, 0\ns_waitcnt vmcnt(16)\ns_branch L_vd\nL_done:")
    e("v_mov_b32 v26, 1\ns_mov_b64 exec, 1\ns_waitcnt lgkmcnt(0)\nds_add_u32 v27, v26 offset:16\ns_mov_b64 exec, -1")
    e("L_sfin:")
    if stamps:
        e("s_cmp_lg_u32 s3, 0\ns_cbranch_scc1 L_end")
        fstamp_store("v62", 0)
    e("s_endpgm")
    e("L_helper:")
    S = "v63"
    fstamp(S)
    e("s_sub_u32 s3, s3, 4")
    if prio: e(f"s_setprio {prio}")
    e("s_lshl_b32 s58, s50, 1\ns_add_u32 s58, s58, s48")
    e("v_lshlrev_b32 v26, 13, v2\nv_lshl_add_u32 v26, v3, 4, v26")
    e(f"v_mov_b32 v20, 0\nv_mov_b32 v21, 0\nv_mov_b32 v22, 0\nv_mov_b32 v23, 0\nv_mov_b32 v28, {L_PR}\nds_write_b128 v28, v[20:23]\nds_write_b128 v28, v[20:23] offset:16")
    e("s_lshl_b32 s40, s49, 8\ns_lshl_b32 s41, s58, 19\ns_add_u32 s40, s40, s41\ns_lshl_b32 s41, s3, 17\ns_add_u32 s40, s40, s41")
    e("s_lshl_b32 s41, s3, 10\ns_waitcnt lgkmcnt(0)")
    if dbgt:
        e("s_cmp_lg_u32 s3, 0\ns_cbranch_scc1 L_d0"); dstamp(2, True); e("L_d0:")
    a.srd(16, 20, 4096)
    e("buffer_load_dwordx4 v[48:51], v1, s[16:19], s41 offen")
    a.srd(16, 24, 512 * 4096 * 2)
    if abl & 8: e("s_mov_b32 s18, 0")
    if kfirst: e("s_barrier")
    for t in range(4):
        e(f"buffer_load_dwordx4 v[{64+4*t}:{67+4*t}], v26, s[16:19], s40 offen {wqf}\ns_add_u32 s40, s40, 0x8000")
    if not kfirst: e("s_barrier")
    a.srd(12, 46, WSZ)
    e(f"s_lshl_b32 s42, s49, 8\ns_add_u32 s76, s42, {WS_EP}\ns_add_u32 s42, s46, s76\ns_addc_u32 s43, s47, 0\ns_load_dwordx2 s[56:57], s[42:43], 0 glc\ns_xor_b32 s42, s42, 256\ns_load_dwordx2 s[82:83], s[42:43], 0 glc")
    e(f"s_lshl_b32 s42, s51, 8\ns_add_u32 s42, s42, {WS_TK}\ns_add_u32 s42, s46, s42\ns_addc_u32 s43, s47, 0\ns_mov_b32 s72, 0\ns_mov_b32 s73, 0\ns_cmp_lg_u32 s3, s50\ns_cbranch_scc1 L_nobase\ns_load_dwordx2 s[72:73], s[42:43], 0 glc\nL_nobase:")
    masks()
    e(f"s_lshl_b32 s67, s3, 12\ns_add_u32 s67, s67, {L_TR}\nv_add_u32 v24, s67, v1\nv_mov_b32 v28, {L_PR}")
    e("s_mov_b32 s62, 0x01000100\ns_mov_b32 s63, 0x03020302")
    e("s_lshl_b32 s40, s3, 11\nv_lshlrev_b32 v58, 1, v1\nv_add_u32 v58, s40, v58")
    e("s_lshl_b32 s41, s58, 8\ns_add_u32 s40, s40, s41\nv_lshlrev_b32 v59, 4, v3\nv_lshl_add_u32 v59, v2, 2, v59\nv_add_u32 v59, s40, v59")
    e("s_waitcnt vmcnt(4)")
    fstamp(S)
    for i in range(4):
        e(f"v_lshlrev_b32 v{40+2*i}, 16, v{48+i}\nv_and_b32 v{41+2*i}, 0xffff0000, v{48+i}")
    ln8(40, 52)
    for i in (3, 2, 1, 0): e(f"v_perm_b32 v{41+2*i}, v{40+i}, v{40+i}, s63\nv_perm_b32 v{40+2*i}, v{40+i}, v{40+i}, s62")
    e(f"ds_write_b128 v58, v[40:43] offset:{L_XD}\nds_write_b128 v58, v[44:47] offset:{L_XD+16}")
    for t in range(4): e(f"s_waitcnt vmcnt({3-t})\nds_write_b128 v24, v[{64+4*t}:{67+4*t}] offset:{1024*t}")
    fstamp(S)
    gsync(12)
    e(f"ds_read_b32 v53, v59 offset:{L_XD}")
    for t in range(16): e(f"ds_read_b128 v[{64+4*t}:{67+4*t}], v1 offset:{L_TR+1024*t}")
    e(f"s_cmp_lg_u32 s3, s50\ns_cbranch_scc1 L_nobase2\nv_mov_b32 v44, s72\nv_mov_b32 v45, s73\nv_mov_b32 v46, 0\nv_mov_b32 v47, 0\nv_mov_b32 v54, {L_PX}\nds_write_b128 v54, v[44:47]\nds_write_b32 v54, v46 offset:32\ns_waitcnt lgkmcnt(0)\nL_nobase2:")
    e("s_add_u32 s56, s56, 1\ns_addc_u32 s57, s57, 0\nv_mov_b32 v42, s56\nv_mov_b32 v43, s57\nv_mov_b32 v46, s56\nv_mov_b32 v47, s57")
    e("s_lshl_b32 s40, s49, 2\ns_add_u32 s40, s40, s3\ns_lshl_b32 s40, s40, 3\ns_add_u32 s40, s40, s58\ns_lshl_b32 s40, s40, 10")
    e(f"s_add_u32 s40, s40, {WS_Q}\nv_lshlrev_b32 v52, 8, v2\nv_lshl_add_u32 v52, v3, 4, v52\ns_waitcnt lgkmcnt(15)")
    for t in range(16):
        bb = 12 + 4 * (t & 1)
        for r in range(4):
            e(f"v_and_b32_dpp v{bb+r}, v53, v{8+r} row_newbcast:{t} row_mask:0xf bank_mask:0xf")
        e(f"s_waitcnt lgkmcnt({15-t})\ns_nop 0")
        e(f"v_mfma_f32_16x16x32_bf16 v[20:23], v[{64+4*t}:{67+4*t}], v[{bb}:{bb+3}], v[20:23]")
    e("s_lshl_b32 s61, s49, 2\ns_add_u32 s61, s61, s50\ns_lshl_b32 s61, s61, 3\ns_lshl_b32 s42, s3, 1\ns_add_u32 s61, s61, s42\ns_lshl_b32 s61, s61, 10")
    e(f"s_add_u32 s61, s61, {WS_Q}\ns_mov_b32 exec_lo, 0x00ff00ff\ns_mov_b32 exec_hi, 0x00ff00ff")
    e("v_mov_b32 v40, v20\nv_mov_b32 v41, v21\nv_mov_b32 v44, v22\nv_mov_b32 v45, v23")
    e("buffer_store_dwordx4 v[40:43], v52, s[12:15], s40 offen sc1\nbuffer_store_dwordx4 v[44:47], v52, s[12:15], s40 offen offset:128 sc1")
    e("s_mov_b64 exec, -1")
    fstamp(S)
    a.srd(16, 26, 4096 * 512 * 2)
    if abl & 1: e("s_mov_b32 s18, 0")
    if abl & 2: e("s_mov_b32 s14, 0")
    e("v_bfe_u32 v27, v0, 3, 3\nv_lshlrev_b32 v27, 10, v27\nv_and_b32 v28, 7, v0\nv_lshl_add_u32 v27, v28, 4, v27")
    e("s_lshl_b32 s40, s49, 17\ns_lshl_b32 s41, s58, 7\ns_add_u32 s40, s40, s41\ns_lshl_b32 s41, s3, 15\ns_add_u32 s40, s40, s41")
    for t in range(4): e(f"buffer_load_dwordx4 v[{96+4*t}:{99+4*t}], v27, s[16:19], s40 offen {wf}\ns_add_u32 s40, s40, 8192")
    e("v_mov_b32 v28, -1\nv_mov_b32 v29, -1\nv_mov_b32 v30, -1\nv_mov_b32 v31, -1\nv_and_b32 v27, 255, v0")
    e(f"s_lshl_b32 s40, s51, 2\ns_add_u32 s40, s40, s48\ns_lshl_b32 s54, s40, 10\ns_add_u32 s54, s54, {WS_O}\ns_xor_b32 s85, s54, 0x1800\nv_lshlrev_b32 v32, 2, v27")
    e("buffer_store_dword v28, v32, s[12:15], s54 offen sc1\nbuffer_store_dword v28, v32, s[12:15], s85 offen sc1")
    e("v_lshlrev_b32 v33, 16, v2\nv_bfe_u32 v34, v0, 3, 1\nv_lshl_add_u32 v33, v34, 10, v33\nv_and_b32 v34, 7, v0\nv_lshl_add_u32 v33, v34, 2, v33")
    e(f"s_lshl_b32 s60, s58, 13\ns_lshl_b32 s40, s3, 11\ns_add_u32 s60, s60, s40\ns_lshl_b32 s40, s49, 5\ns_add_u32 s60, s60, s40\ns_add_u32 s60, s60, {WS_Y}")
    e("buffer_store_dword v28, v33, s[12:15], s60 offen sc1")
    e("s_lshr_b32 s79, s2, 3\ns_sub_u32 s79, s79, 16\ns_lshl_b32 s79, s79, 2\ns_add_u32 s79, s79, s77\ns_lshl_b32 s79, s79, 2\ns_add_u32 s79, s79, s3\ns_cmp_eq_u32 s48, 1\ns_cselect_b32 s79, s79, 0x10000")
    e("v_bfe_u32 v36, v0, 2, 1\nv_bfe_u32 v37, v0, 3, 1\nv_lshl_add_u32 v36, v37, 1, v36\nv_bfe_u32 v37, v0, 5, 1\nv_lshl_add_u32 v36, v37, 2, v36")
    e("v_and_b32 v37, 3, v0\nv_bfe_u32 v38, v0, 4, 1\nv_lshl_add_u32 v37, v38, 2, v37\nv_lshlrev_b32 v37, 13, v37\nv_lshl_add_u32 v37, v36, 2, v37")
    e(f"s_lshl_b32 s55, s79, 5\ns_add_u32 s55, s55, {WS_H}\ns_cmp_lt_u32 s79, 256\ns_cselect_b32 s55, s55, 0x40000000\nbuffer_store_dword v28, v37, s[12:15], s55 offen sc1")
    e(f"s_lshl_b32 s59, s2, 13\ns_add_u32 s59, s59, {WS_D}\ns_cmp_lt_u32 s2, {NG}\ns_cselect_b32 s59, s59, 0x40000000\ns_add_u32 s40, s59, 4096\nv_lshlrev_b32 v27, 4, v27")
    e("buffer_store_dwordx4 v[28:31], v27, s[12:15], s59 offen sc1\nbuffer_store_dwordx4 v[28:31], v27, s[12:15], s40 offen sc1")
    a.srd(16, 20, 4096)
    e("v_lshlrev_b32 v38, 1, v36\ns_lshl_b32 s40, s79, 4\nbuffer_load_ushort v39, v38, s[16:19], s40 offen")
    e("v_and_b32 v52, 7, v0\nv_and_b32 v53, 63, v0\nv_lshlrev_b32 v53, 1, v53\nv_sub_u32 v52, v53, v52\nv_lshlrev_b32 v52, 2, v52\ns_lshl_b32 s40, s3, 9\nv_add_u32 v52, s40, v52")
    if abl & 2: e("s_mov_b32 s14, 0x40000000")
    if abl & 4: e("s_waitcnt vmcnt(0)\ns_branch L_pq_ok")
    e("s_mov_b32 s66, 0\nL_pq:")
    e("buffer_load_dwordx4 v[64:67], v1, s[12:15], s61 offen sc1\nbuffer_load_dwordx4 v[68:71], v1, s[12:15], s61 offen offset:1024 sc1\ns_waitcnt vmcnt(0)")
    e("v_xor_b32 v72, s56, v66\nv_xor_b32 v73, s57, v67\nv_xor_b32 v74, s56, v70\nv_xor_b32 v75, s57, v71\nv_or3_b32 v72, v72, v73, v74\nv_or_b32 v72, v72, v75")
    e(f"v_cmp_ne_u32 vcc, 0, v72\ns_cbranch_vccz L_pq_ok\ns_mov_b64 exec, vcc\ns_add_u32 s66, s66, 1\ns_cmp_gt_u32 s66, 400000\ns_cbranch_scc1 L_pq_ok\ns_sleep {qsleep}\ns_branch L_pq\nL_pq_ok:\ns_mov_b64 exec, -1")
    e(f"v_add_f32 v64, v64, v68\nv_add_f32 v65, v65, v69\nds_write_b32 v52, v64 offset:{L_QP}\nds_write_b32 v52, v65 offset:{L_QP+32}\ns_waitcnt lgkmcnt(0)")
    fstamp(S)
    e("s_barrier")
    if hexit == 1: e("s_endpgm")
    e(f"v_lshlrev_b32 v39, 16, v39\nv_mov_b32 v28, {L_PR}\nv_mov_b32 v29, 1\ns_mov_b64 exec, 1\nds_add_rtn_u32 v29, v28, v29 offset:4\ns_waitcnt lgkmcnt(0)\ns_mov_b64 exec, -1\nv_readfirstlane_b32 s70, v29")
    e(f"v_bfe_u32 v25, v0, 2, 2\nv_lshlrev_b32 v25, 7, v25\nv_lshl_add_u32 v25, v2, 10, v25\nv_and_b32 v28, 3, v0\nv_lshl_add_u32 v25, v28, 3, v25\ns_lshl_b32 s41, s3, 5\ns_add_u32 s41, s41, {L_TR}\nv_add_u32 v25, s41, v25")
    for t in range(4): e(f"ds_write_b128 v24, v[{96+4*t}:{99+4*t}] offset:{1024*t}")
    gsync(12)
    for ks in range(4):
        for hh in range(2):
            e(f"ds_read_b64_tr_b16 v[{112+4*ks+2*hh}:{113+4*ks+2*hh}], v25 offset:{4096*ks+512*hh}")
    def wait_progress(lbl, sreg):
        e(f"v_mov_b32 v28, {L_PR}\n{lbl}:\nds_read_b32 v29, v28\ns_waitcnt lgkmcnt(0)\nv_readfirstlane_b32 s40, v29\ns_cmp_ge_u32 s40, {sreg}\ns_cbranch_scc1 {lbl}_ok\ns_sleep 32\ns_branch {lbl}\n{lbl}_ok:")
    def glu_loads():
        a.srd(16, 32, 512 * 1792 * 2)
        e("v_lshlrev_b32 v26, 13, v2\nv_lshl_add_u32 v26, v3, 3, v26\ns_lshl_b32 s40, s78, 15\ns_lshl_b32 s41, s3, 8\ns_add_u32 s40, s40, s41")
        for ee in range(8):
            if ee == 4: e("s_add_u32 s40, s40, 4096")
            e(f"buffer_load_dwordx2 v[{64+4*ee}:{65+4*ee}], v26, s[16:19], s40 offen offset:{(ee%4)*1024} {wf}")
            e(f"buffer_load_dwordx2 v[{66+4*ee}:{67+4*ee}], v26, s[16:19], s40 offen offset:{(ee%4)*1024+128} {wf}")
        e("s_cmp_lt_u32 s3, 2\ns_cselect_b32 s42, s28, s30\ns_cselect_b32 s43, s29, s31")
        a.srd(16, 42, 512 * 1792 * 2)
        e("v_bfe_u32 v26, v0, 2, 4\nv_mul_u32_u24 v26, 3584, v26\nv_and_b32 v28, 3, v0\nv_lshl_add_u32 v26, v28, 4, v26")
        e(f"s_lshl_b32 s40, s78, 6\ns_and_b32 s41, s3, 1\ns_mul_i32 s41, s41, {256*3584}\ns_add_u32 s40, s40, s41")
        for t in range(16): e(f"buffer_load_dwordx4 v[{128+4*t}:{131+4*t}], v26, s[16:19], s40 offen {wf}\ns_add_u32 s40, s40, {16*3584}")
    e(f"s_lshr_b32 s78, s51, 1\ns_and_b32 s40, s51, 1\ns_or_b32 s40, s40, s48\ns_cmp_eq_u32 s40, 0\ns_cselect_b32 s78, s78, 255\ns_cmp_ge_u32 s78, {NG}\ns_cbranch_scc1 L_nogw")
    glu_loads()
    e("s_mov_b32 s80, 0x05040100\ns_mov_b32 s81, 0x07060302")
    e(f"s_lshl_b32 s41, s3, 14\ns_add_u32 s41, s41, {L_GU}\nv_add_u32 v24, s41, v1")
    e(f"v_bfe_u32 v25, v0, 2, 2\nv_lshlrev_b32 v25, 6, v25\nv_lshl_add_u32 v25, v2, 9, v25\nv_and_b32 v28, 3, v0\nv_lshl_add_u32 v25, v28, 3, v25")
    e(f"s_lshr_b32 s41, s3, 1\ns_lshl_b32 s41, s41, 15\ns_and_b32 s42, s3, 1\ns_lshl_b32 s42, s42, 5\ns_add_u32 s41, s41, s42\ns_add_u32 s41, s41, {L_GU}\nv_add_u32 v25, s41, v25")
    e("s_waitcnt vmcnt(16)")
    for j in range(8):
        for q in range(4):
            e(f"v_perm_b32 v{192+4*j+q}, v{64+4*(2*q+1)+(j>>1)}, v{64+4*(2*q)+(j>>1)}, {'s80' if j%2==0 else 's81'}")
    for t in range(16): e(f"s_waitcnt vmcnt({15-t})\nds_write_b128 v24, v[{128+4*t}:{131+4*t}] offset:{1024*t}")
    gsync(12)
    for ks in range(16):
        for hh in range(2):
            e(f"ds_read_b64_tr_b16 v[{128+4*ks+2*hh}:{129+4*ks+2*hh}], v25 offset:{2048*ks+256*hh}")
    e(f"s_and_b32 s40, s78, 7\ns_lshl_b32 s40, s40, 13\ns_lshl_b32 s41, s3, 11\ns_add_u32 s73, s40, s41\ns_add_u32 s73, s73, {WS_H}\nv_lshlrev_b32 v46, 1, v1")
    e(f"s_mul_i32 s40, s3, 1040\nv_add_u32 v47, s40, v1\nv_and_b32 v43, 3, v0\nv_mul_u32_u24 v43, 1040, v43\nv_lshl_add_u32 v43, v2, 4, v43")
    e("v_lshlrev_b32 v40, 2, v3\ns_lshr_b32 s40, s3, 1\ns_lshl_b32 s40, s40, 9\ns_and_b32 s41, s3, 1\ns_lshl_b32 s41, s41, 6\ns_add_u32 s40, s40, s41\nv_add_u32 v40, s40, v40")
    e("v_bfe_u32 v41, v0, 2, 2\nv_lshlrev_b32 v41, 7, v41\nv_lshl_add_u32 v41, v2, 5, v41\nv_and_b32 v61, 3, v0\nv_lshl_add_u32 v41, v61, 3, v41")
    e(f"v_lshlrev_b32 v42, 11, v2\nv_lshl_add_u32 v42, v3, 4, v42\ns_lshl_b32 s59, s78, 13\ns_lshl_b32 s40, s3, 9\ns_add_u32 s59, s59, s40\ns_add_u32 s59, s59, {WS_D}")
    e("L_nogw:")
    e("s_cmp_lg_u32 s70, 3\ns_cbranch_scc1 L_noinit\ns_bfe_u32 s41, s2, 0x20003\ns_add_u32 s41, s41, 1")
    wait_progress("L_iw", "s41")
    e("s_mov_b32 s64, 1\ns_atomic_add s64, s[44:45], 0\nL_noinit:")
    e("v_lshlrev_b32 v34, 10, v2\nv_lshl_add_u32 v35, v3, 5, v34")
    e(f"s_lshl_b32 s40, s49, 12\ns_lshl_b32 s41, s3, 17\ns_add_u32 s88, s40, s41\ns_add_u32 s88, s88, {WS_O}")
    e("v_lshlrev_b32 v4, 4, v3\nv_lshl_add_u32 v4, v2, 2, v4\nv_bfe_u32 v5, v0, 4, 1\nv_bfe_u32 v6, v0, 5, 1\nv_lshlrev_b32 v4, 4, v3\nv_lshl_add_u32 v4, v6, 3, v4\nv_lshl_add_u32 v4, v5, 2, v4\ns_mul_i32 s40, s3, 272\nv_add_u32 v4, s40, v4")
    e("v_bfe_u32 v5, v0, 2, 2\nv_mul_u32_u24 v5, 272, v5\nv_lshl_add_u32 v5, v2, 4, v5")
    e("s_lshl_b32 s40, s3, 5\nv_lshlrev_b32 v6, 2, v36\nv_add_u32 v6, s40, v6\nv_and_b32 v7, 7, v0\nv_lshlrev_b32 v7, 4, v7\nv_bfe_u32 v37, v0, 3, 3\nv_lshl_add_u32 v37, v37, 13, v7")
    e(f"s_lshl_b32 s62, s79, 10\ns_add_u32 s62, s62, {WS_Y}\nv_and_b32 v44, 31, v0\nv_lshlrev_b32 v44, 5, v44\nv_bfe_u32 v45, v0, 5, 1\nv_lshl_add_u32 v44, v45, 4, v44")
    e(f"v_lshlrev_b32 v45, 9, v1\ns_lshl_b32 s63, s79, 5\ns_add_u32 s63, s63, {WS_D}\ns_lshl_b32 s67, s79, 4")
    e(f"s_cmp_lg_u32 s3, 1\ns_cbranch_scc1 L_nokd\nv_mov_b32 v28, {L_PR}\nL_kw:\nds_read_b32 v29, v28 offset:20\ns_waitcnt lgkmcnt(0)\nv_readfirstlane_b32 s40, v29\ns_cmp_ge_u32 s40, 4\ns_cbranch_scc1 L_kw1\ns_sleep 16\ns_branch L_kw\nL_kw1:")
    dstamp(3); dstamp(6, True)
    e(f"v_mov_b32 v28, {L_PX}\nds_read_b128 v[48:51], v28 offset:16\nds_read_b32 v52, v28 offset:4\ns_lshl_b32 s40, s51, 1\ns_add_u32 s40, s40, s48\ns_lshl_b32 s40, s40, 6\ns_add_u32 s40, s40, {WS_KD}\nv_mov_b32 v29, 0\ns_waitcnt lgkmcnt(0)")
    e("v_max_f32 v48, v48, v49\nv_max3_f32 v48, v48, v50, v51\nv_mov_b32 v49, v52\nv_mov_b32 v50, s56\nv_mov_b32 v51, s57\ns_mov_b64 exec, 1\nbuffer_store_dwordx4 v[48:51], v29, s[12:15], s40 offen sc1\ns_xor_b32 s40, s40, 64\ns_mov_b32 s66, 0")
    e("L_kp:\nbuffer_load_dwordx4 v[52:55], v29, s[12:15], s40 offen sc1\ns_waitcnt vmcnt(0)\nv_xor_b32 v54, s56, v54\nv_xor_b32 v55, s57, v55\nv_or_b32 v54, v54, v55\nv_cmp_ne_u32 vcc, 0, v54\ns_cbranch_vccz L_kp1\ns_add_u32 s66, s66, 1\ns_cmp_gt_u32 s66, 400000\ns_cbranch_scc1 L_kp1\ns_sleep 8\ns_branch L_kp")
    e("L_kp1:\nv_mov_b32 v53, v52\nv_mov_b32 v52, 1\nds_write_b64 v28, v[52:53] offset:8\ns_mov_b64 exec, -1\nL_nokd:")
    if steal:
        e("s_cmp_lg_u32 s3, 2\ns_cbranch_scc1 L_nosk")
        wait_progress("L_sw", NS + 4)
        e(f"s_add_u32 s82, s82, 1\ns_addc_u32 s83, s83, 0\ns_xor_b32 s40, s51, 1\ns_lshl_b32 s41, s40, 7\ns_add_u32 s41, s41, {WS_KD}\nv_mov_b32 v29, 0\nv_mov_b32 v28, {L_PX}\ns_mov_b64 exec, 1\ns_mov_b32 s66, 0")
        e("L_sp:\nbuffer_load_dwordx4 v[48:51], v29, s[12:15], s41 offen sc1\nbuffer_load_dwordx4 v[52:55], v29, s[12:15], s41 offen offset:64 sc1\ns_waitcnt vmcnt(0)")
        e("v_xor_b32 v50, s82, v50\nv_xor_b32 v51, s83, v51\nv_xor_b32 v54, s82, v54\nv_xor_b32 v55, s83, v55\nv_or3_b32 v50, v50, v51, v54\nv_or_b32 v50, v50, v55\nv_cmp_ne_u32 vcc, 0, v50\ns_cbranch_vccz L_sp1\ns_add_u32 s66, s66, 1\ns_cmp_gt_u32 s66, 64\ns_cbranch_scc1 L_sp2\ns_sleep 32\ns_branch L_sp")
        e("L_sp1:\nv_max_f32 v50, v48, v52\nv_mov_b32 v48, 1\nds_write_b32 v28, v50 offset:36\nds_write_b32 v28, v49 offset:40\ns_waitcnt lgkmcnt(0)\nds_write_b32 v28, v48 offset:32\nL_sp2:\ns_mov_b64 exec, -1\nL_nosk:")
    wait_progress("L_w2", NS + 3)
    if cpf and cpf2:
        e("v_and_b32 v28, 255, v0\nv_lshlrev_b32 v28, 4, v28\nv_add_u32 v29, (L_lastF-L_pc)&0xffffff80, v28\nv_add_u32 v28, (L_wf-L_pc)&0xffffff80, v28\nv_min_u32 v28, (L_end-L_pc-16)&0xfffffff0, v28")
        e("global_load_dword v61, v28, s[90:91]\nglobal_load_dword v61, v29, s[90:91]")
    e("v_lshrrev_b32 v28, 1, v1\nv_mov_b32 v29, 0")
    a.srd(16, 44, 256)
    e("s_mov_b32 s66, 0\nL_initchk:\nbuffer_load_dword v31, v29, s[16:19], 0 offen sc1\ns_waitcnt vmcnt(0)\nv_readfirstlane_b32 s64, v31\ns_cmp_ge_u32 s64, 256\ns_cbranch_scc1 L_initok\ns_add_u32 s66, s66, 1\ns_cmp_gt_u32 s66, 200000\ns_cbranch_scc1 L_initok\ns_sleep 8\ns_branch L_initchk\nL_initok:")
    if hexit == 2: e("s_endpgm")
    e(f"s_setprio 0\nv_mov_b32 v27, {L_PR}\nL_wf:\nds_read_b32 v30, v27 offset:16\ns_waitcnt lgkmcnt(0)\nv_readfirstlane_b32 s40, v30\ns_cmp_ge_u32 s40, 4\ns_cbranch_scc1 L_wf_ok\ns_sleep {wsleep}\ns_branch L_wf\nL_wf_ok:\ns_setprio {prio}")
    e(f"v_lshrrev_b32 v28, 1, v1\ns_cmp_eq_u32 s3, 0\ns_cselect_b32 s54, s54, s85\ns_mov_b32 s40, {L_OB}\ns_cselect_b32 s40, {L_OA}, s40\nv_add_u32 v30, s40, v28\ns_mov_b32 s40, {L_MLB}\ns_cselect_b32 s40, {L_ML}, s40\nv_mov_b32 v29, s40")
    a.srd(16, 34, 4096)
    fstamp(S)
    if dbgt:
        e("s_cmp_lg_u32 s3, 3\ns_cbranch_scc1 L_d1"); dstamp(4); dstamp(7, True); e("L_d1:")
    e("s_cmp_ge_u32 s3, 2\ns_cbranch_scc1 L_st2")
    e("ds_read_b128 v[48:51], v29\nds_read_b128 v[52:55], v29 offset:16")
    for w in range(4): e(f"ds_read_b64 v[{64+2*w}:{65+2*w}], v30 offset:{1024*w}")
    e("s_waitcnt lgkmcnt(4)\nv_max_f32 v56, v48, v50\nv_max3_f32 v56, v56, v52, v54")
    for w in range(4): e(f"v_sub_f32 v{58+w}, v{48+2*w}, v56")
    for w in range(4): e(f"v_mul_f32 v{58+w}, {LOG2E}, v{58+w}")
    for w in range(4): e(f"v_exp_f32 v{58+w}, v{58+w}")
    e("s_waitcnt lgkmcnt(0)\nv_mul_f32 v57, v58, v49\nv_mul_f32 v64, v64, v58\nv_mul_f32 v65, v65, v58")
    for w in range(1, 4): e(f"v_fmac_f32 v57, v{58+w}, v{49+2*w}\nv_fmac_f32 v64, v{64+2*w}, v{58+w}\nv_fmac_f32 v65, v{65+2*w}, v{58+w}")
    e("v_min_u32 v64, -2, v64\nv_min_u32 v65, -2, v65\nv_min_u32 v56, -2, v56\nv_min_u32 v57, -2, v57")
    e("buffer_store_dwordx2 v[64:65], v28, s[12:15], s54 offen sc1\ns_mov_b64 exec, 1\nbuffer_store_dwordx2 v[56:57], v28, s[12:15], s54 offen offset:512 sc1\ns_mov_b64 exec, -1")
    fstamp(S)
    e("L_st2:")
    poll("L_p1", ["buffer_load_dwordx4 v[64:67], v35, s[12:15], s88 offen sc1", "buffer_load_dwordx4 v[68:71], v35, s[12:15], s88 offen offset:16 sc1",
                  "buffer_load_dwordx2 v[56:57], v34, s[12:15], s88 offen offset:512 sc1"], [f"v{i}" for i in range(64, 72)] + ["v56", "v57"], slp=lsleep)
    e("v_mov_b32 v58, v56\nv_mov_b32 v59, v56\ns_nop 1\nv_permlane16_swap_b32 v58, v59\ns_nop 0\nv_max_f32 v58, v58, v59\nv_mov_b32 v59, v58\ns_nop 1\nv_permlane32_swap_b32 v58, v59\ns_nop 0\nv_max_f32 v58, v58, v59")
    e(f"v_sub_f32 v56, v56, v58\nv_mul_f32 v56, {LOG2E}, v56\nv_exp_f32 v56, v56\ns_nop 0\nv_mul_f32 v57, v57, v56")
    for k in range(8): e(f"v_mul_f32 v{64+k}, v{64+k}, v56")
    e("v_mov_b32 v59, v57\ns_nop 0")
    for k in range(4): e(f"v_permlane32_swap_b32 v{64+k}, v{68+k}")
    e("v_permlane16_swap_b32 v57, v59")
    for k in range(4): e(f"v_add_f32 v{64+k}, v{64+k}, v{68+k}")
    e("v_add_f32 v57, v57, v59\nv_mov_b32 v59, v57\nv_permlane16_swap_b32 v64, v66\nv_permlane16_swap_b32 v65, v67\nv_permlane32_swap_b32 v57, v59\ns_nop 0")
    e("v_add_f32 v57, v57, v59\nv_rcp_f32 v57, v57\nv_add_f32 v64, v64, v66\nv_add_f32 v65, v65, v67\nv_mul_f32 v64, v64, v57\nv_mul_f32 v65, v65, v57")
    e(f"v_cvt_pk_bf16_f32 v64, v64, v65\nds_write_b32 v4, v64 offset:{L_ON}\ns_waitcnt lgkmcnt(0)\ns_barrier")
    for ks in range(4): e(f"ds_read_b128 v[{80+4*ks}:{83+4*ks}], v5 offset:{L_ON+64*ks}")
    for ks in range(4):
        e(f"s_waitcnt lgkmcnt({3-ks})")
        e(f"v_mfma_f32_16x16x32_bf16 v[20:23], v[{80+4*ks}:{83+4*ks}], v[{112+4*ks}:{115+4*ks}], {'0' if ks == 0 else 'v[20:23]'}")
    e("s_nop 7\nv_min_u32 v20, -2, v20\nbuffer_store_dword v20, v33, s[12:15], s60 offen sc1")
    fstamp(S)
    e("s_cmp_ge_u32 s79, 256\ns_cbranch_scc1 L_glu")
    poll("L_p3", ["buffer_load_dwordx4 v[48:51], v44, s[12:15], s62 offen sc1"], [f"v{i}" for i in range(48, 52)], slp=s3sleep)
    e("s_nop 3")
    red4()
    a.rbf("v48"); e("v_add_f32 v48, v48, v39"); a.rbf("v48")
    e(f"v_min_u32 v39, -2, v48\nds_write_b32 v6, v39 offset:{L_HG}\ns_waitcnt lgkmcnt(0)\ns_barrier\ns_cmp_lg_u32 s3, 0\ns_cbranch_scc1 L_nohp")
    e(f"ds_read_b128 v[48:51], v7 offset:{L_HG}\ns_waitcnt lgkmcnt(0)\nbuffer_store_dwordx4 v[48:51], v37, s[12:15], s55 offen sc1\nL_nohp:")
    fstamp(S)
    e(f"L_glu:\ns_cmp_ge_u32 s78, {NG}\ns_cbranch_scc1 L_s5")
    poll("L_p4", ["buffer_load_dwordx4 v[48:51], v46, s[12:15], s73 offen sc1", "buffer_load_dwordx4 v[52:55], v46, s[12:15], s73 offen offset:16 sc1"], [f"v{i}" for i in range(48, 56)], slp=hsleep)
    fstamp(S)
    ln8(48, 56)
    e(f"ds_write_b128 v47, v[48:51] offset:{L_HN}")
    e("s_mov_b64 exec, -1\ns_waitcnt lgkmcnt(0)\ns_barrier")
    if gst: fstamp(S)
    for ks in range(12): e(f"ds_read_b128 v[{64+4*ks}:{67+4*ks}], v43 offset:{L_HN+64*ks}")
    for ks in range(12, 16): e(f"ds_read_b128 v[{224+4*(ks-12)}:{227+4*(ks-12)}], v43 offset:{L_HN+64*ks}")
    for ks in range(16):
        e(f"s_waitcnt lgkmcnt({15-ks})")
        c = "0" if ks < 2 else f"v[{20+4*(ks&1)}:{23+4*(ks&1)}]"
        ar = 64 + 4 * ks if ks < 12 else 224 + 4 * (ks - 12)
        e(f"v_mfma_f32_16x16x32_bf16 v[{20+4*(ks&1)}:{23+4*(ks&1)}], v[{ar}:{ar+3}], v[{128+4*ks}:{131+4*ks}], {c}")
    e("s_mov_b64 exec, 0xffff\ns_nop 6")
    for r in range(4): e(f"v_add_f32 v{20+r}, v{20+r}, v{24+r}\nds_write_b32 v40, v{20+r} offset:{L_AC+128*r}")
    e("s_mov_b64 exec, -1\ns_waitcnt lgkmcnt(0)\ns_barrier")
    if gst: fstamp(S)
    e(f"ds_read_b64 v[20:21], v41 offset:{L_AC}\nds_read_b64 v[22:23], v41 offset:{L_AC+512}\ns_waitcnt lgkmcnt(1)")
    e("v_cvt_pk_bf16_f32 v20, v20, v21\nv_and_b32 v21, 0xffff0000, v20\nv_lshlrev_b32 v20, 16, v20\nv_mul_f32 v21, 0xbfb8aa3b, v21\nv_mul_f32 v20, 0xbfb8aa3b, v20\nv_exp_f32 v21, v21\nv_exp_f32 v20, v20")
    e("s_waitcnt lgkmcnt(0)\nv_cvt_pk_bf16_f32 v22, v22, v23\nv_add_f32 v21, 1.0, v21\nv_add_f32 v20, 1.0, v20\nv_rcp_f32 v21, v21\nv_rcp_f32 v20, v20\nv_and_b32 v23, 0xffff0000, v22\nv_lshlrev_b32 v22, 16, v22")
    e("v_cvt_pk_bf16_f32 v20, v20, v21\nv_and_b32 v21, 0xffff0000, v20\nv_lshlrev_b32 v20, 16, v20\nv_mul_f32 v21, v21, v23\nv_mul_f32 v20, v20, v22\nv_cvt_pk_bf16_f32 v36, v20, v21\ns_nop 1")
    for q in range(4): e(f"v_mov_b32_dpp v{32+q}, v36 quad_perm:[{q},{q},{q},{q}] row_mask:0xf bank_mask:0xf")
    e("s_nop 1")
    for j in range(8):
        e(f"v_mfma_f32_16x16x32_bf16 v[{64+4*j}:{67+4*j}], v[32:35], v[{192+4*j}:{195+4*j}], 0")
    e("s_nop 0")
    for j in range(4): e(f"v_min_u32 v{96+j}, -2, v{64+4*j}")
    e("s_nop 0\nbuffer_store_dwordx4 v[96:99], v42, s[12:15], s59 offen sc1")
    for j in range(4, 8): e(f"v_min_u32 v{96+j}, -2, v{64+4*j}")
    e("buffer_store_dwordx4 v[100:103], v42, s[12:15], s59 offen offset:256 sc1")
    fstamp(S)
    e("L_s5:\ns_cmp_ge_u32 s79, 256\ns_cbranch_scc1 L_fin")
    for j in range(8): e(f"v_mov_b32 v{48+j}, 0")
    e(f"s_mov_b32 exec_lo, -1\ns_mov_b32 exec_hi, {(1 << (NG - 32)) - 1:#x}")
    poll("L_p6", ["buffer_load_dwordx4 v[48:51], v45, s[12:15], s63 offen sc1", "buffer_load_dwordx4 v[52:55], v45, s[12:15], s63 offen offset:16 sc1"], [f"v{i}" for i in range(48, 56)], slp=s5sleep)
    e("s_nop 3")
    for i in range(4): e(f"v_permlane32_swap_b32 v{48+i}, v{52+i}")
    e("s_nop 1")
    for i in range(4): e(f"v_add_f32 v{48+i}, v{48+i}, v{52+i}")
    e("s_nop 0")
    red4()
    a.rbf("v48"); e("v_add_f32 v48, v48, v39\nv_cvt_pk_bf16_f32 v48, v48, v48\ns_mov_b32 exec_lo, 0x1111\ns_mov_b32 exec_hi, 0x1111")
    e("buffer_store_short v48, v38, s[16:19], s67 offen")
    dstamp(5)
    fstamp(S)
    e("L_fin:")
    e("s_cmp_lg_u32 s3, 0\ns_cbranch_scc1 L_end")
    e("s_cmp_lg_u32 s58, 0\ns_cbranch_scc1 L_noep\ns_mov_b64 exec, 1\nv_mov_b32 v48, s56\nv_mov_b32 v49, s57\nv_mov_b32 v50, 0\nbuffer_store_dwordx2 v[48:49], v50, s[12:15], s76 offen sc1\nL_noep:")
    fstamp_store(S, 65536)
    e("L_end:\ns_endpgm")
    e('.section .rodata,"a"\n.p2align 6')
    a.descriptor(KN, 256, 96, accum=256)
    return a.text()

if __name__ == "__main__":
    import os, json
    os.makedirs("v15", exist_ok=True)
    names = []
    for spec in sys.argv[1:]:
        kw = {}
        if spec != "base":
            for p in spec.split(","):
                k, v = p.split("=")
                kw[k] = v.replace("+", " ") if k in ("wf", "wqf", "kf", "vf") else int(v)
        fn = "v15/v15_" + spec.replace(",", "_").replace("=", "") + ".s"
        open(fn, "w").write(gen(**kw))
        names.append(fn)
    print(" ".join(names))
    base = ["work/bench.py", "work/fst9.py", "sequential_preLN__mha_block_cached__glu_gated_glu__decode_np.py", "cdna_kernels/cdna_launch.py", "cdna_kernels/cdna_unwritten_srd_check.py", "work/pair/pair_NS10.s"]
    print(json.dumps(base + ["work/" + f for f in names]))
```

```python
import sys
from asmlib import *
WSZ = 0x40000000
WS_O, WS_Y, WS_H, WS_D, WS_Q, WS_EP, WS_TK, WS_KD, WS_ST, WS_SG = 0x000000, 0x080000, 0x100000, 0x110000, 0x180000, 0x280000, 0x290000, 0x2a0000, 0x300000, 0x400000
NG = 56
LOG2E = "0x3fb8aa3b"
L_XD = 0
L_QP = 8192
L_OA = 10240
L_ML = 14336
L_PX = 19584
L_PR = 14368
L_HN = 14400
L_AC = 18560
L_ON = 0
L_HG = 1152
L_QP2 = 19584
L_OB = L_QP2 + 2048
L_MLB = L_OB + 4096
L_SC = L_MLB + 64
L_TR = L_SC + 4 * 18 * 256
L_GU = L_TR + 16384
LDS_BYTES = L_GU + 65536

DOC = '''; One fused launch: 256 workgroups (one per CU) x 8 waves.  Written by a generator script (work/gen_v18.py).
'''

def gen(stamps=0, sleep=2, wf="nt", wqf="", prio=3, lsleep=2, thr=32, NS=12, qsleep=4, kfirst=0, hexit=0, dyn=1, s5sleep=1, s3sleep=1, hsleep=1,
        gst=0, D=16, kf="nt", vf="nt", GT=24, wsleep=1, abl=0, steal=1, cpf=0, cpf2=0, comp=2, asc=0, dbgt=0, kdyn=1, gmap=1, guf="", pre=3, gtrig=4, hostR=0, touch=1):
    NM4 = 4 * (32 - 2 * NS)
    a = Asm(); e = a.e
    KN = NAME + "_kernel"
    e(HEADER_COMMENT.rstrip("\n"))
    e(DOC.rstrip("\n"))
    e(f"; @launch grid=(256,1,1) block=(512,1,1) lds={LDS_BYTES}")
    e('.amdgcn_target "amdgcn-amd-amdhsa--gfx950"\n.text')
    a.kernel_begin(KN)
    def fstamp(reg="v62"):
        if stamps:
            e(f"s_memrealtime s[68:69]\ns_waitcnt lgkmcnt(0)\nv_writelane_b32 {reg}, s68, m0\ns_add_u32 m0, m0, 1")
    def fstamp_store(reg, off):
        if stamps:
            e(f"s_mov_b64 exec, -1\nv_and_b32 v2, 63, v0\nv_lshlrev_b32 v2, 2, v2\ns_lshl_b32 s41, s2, 8\ns_add_u32 s41, s41, {WS_ST+off}\nbuffer_store_dword {reg}, v2, s[12:15], s41 offen sc1")
    def dstamp(word, inv=False):
        if dbgt:
            e("s_memrealtime s[94:95]\ns_waitcnt lgkmcnt(0)")
            if inv: e("s_not_b32 s94, s94")
            e(f"s_atomic_umax s94, s[44:45], {4*word}")
    def allsum(v, t, op="add"):
        e("s_nop 1")
        for ctl in ("quad_perm:[1,0,3,2]", "quad_perm:[2,3,0,1]", "row_half_mirror", "row_mirror"):
            e(f"v_{op}_f32_dpp {v}, {v}, {v} {ctl} row_mask:0xf bank_mask:0xf\ns_nop 1")
        e(f"v_mov_b32 {t}, {v}\ns_nop 1\nv_permlane16_swap_b32 {v}, {t}\ns_nop 1\nv_{op}_f32 {v}, {v}, {t}\nv_mov_b32 {t}, {v}\ns_nop 1\nv_permlane32_swap_b32 {v}, {t}\ns_nop 1\nv_{op}_f32 {v}, {v}, {t}")
    def ln8(X, T):
        s1, s2, t1, t2, u = (f"v{T+i}" for i in range(5))
        e(f"v_readfirstlane_b32 s40, v{X}\ns_nop 1")
        e(f"v_subrev_f32 {s1}, s40, v{X}\nv_mul_f32 {s2}, {s1}, {s1}")
        for i in range(1, 8):
            e(f"v_subrev_f32 {u}, s40, v{X+i}\nv_add_f32 {s1}, {s1}, {u}\nv_fmac_f32 {s2}, {u}, {u}")
        e("s_nop 0")
        for ctl in ("quad_perm:[1,0,3,2]", "quad_perm:[2,3,0,1]", "row_half_mirror", "row_mirror"):
            e(f"v_add_f32_dpp {s1}, {s1}, {s1} {ctl} row_mask:0xf bank_mask:0xf\nv_add_f32_dpp {s2}, {s2}, {s2} {ctl} row_mask:0xf bank_mask:0xf\ns_nop 0")
        for sw in ("v_permlane16_swap_b32", "v_permlane32_swap_b32"):
            e(f"v_mov_b32 {t1}, {s1}\nv_mov_b32 {t2}, {s2}\ns_nop 0\n{sw} {s1}, {t1}\n{sw} {s2}, {t2}\ns_nop 0\nv_add_f32 {s1}, {s1}, {t1}\nv_add_f32 {s2}, {s2}, {t2}")
        e(f"v_mul_f32 {s1}, 0x3b000000, {s1}\nv_mul_f32 {s2}, 0x3b000000, {s2}\nv_fma_f32 {s2}, -{s1}, {s1}, {s2}\nv_max_f32 {s2}, 0, {s2}\nv_add_f32 {s1}, s40, {s1}")
        a.rbf(s2); a.rbf(s1)
        e(f"v_add_f32 {s2}, 0x3727c5ac, {s2}"); a.rbf(s2)
        e(f"v_sqrt_f32 {s2}, {s2}")
        for i in range(8): e(f"v_sub_f32 v{X+i}, v{X+i}, {s1}")
        a.rbf(s2)
        e(f"v_rcp_f32 {s2}, {s2}")
        for i in range(4): e(f"v_cvt_pk_bf16_f32 v{X+2*i}, v{X+2*i}, v{X+2*i+1}")
        for i in range(4): e(f"v_and_b32 v{X+2*i+1}, 0xffff0000, v{X+2*i}\nv_lshlrev_b32 v{X+2*i}, 16, v{X+2*i}")
        for i in range(8): e(f"v_mul_f32 v{X+i}, v{X+i}, {s2}")
        for i in range(4): e(f"v_cvt_pk_bf16_f32 v{X+i}, v{X+2*i}, v{X+2*i+1}")
    def masks():
        for r in range(4):
            e(f"v_mov_b32 v{8+r}, 0\nv_mov_b32 v28, 0xffff\nv_cmp_eq_u32 vcc, {2*r}, v3\ns_nop 1\nv_cndmask_b32 v{8+r}, v{8+r}, v28, vcc")
            e(f"v_mov_b32 v28, 0xffff0000\nv_cmp_eq_u32 vcc, {2*r+1}, v3\ns_nop 1\nv_cndmask_b32 v{8+r}, v{8+r}, v28, vcc")
    cnt = {12: 0, 24: 0}
    def gsync(off):
        cnt[off] += 1
        L = a.label("L_gs")
        e(f"v_mov_b32 v28, {L_PR}\nv_mov_b32 v29, 1\ns_mov_b64 exec, 1\ns_waitcnt lgkmcnt(0)\nds_add_u32 v28, v29 offset:{off}\n{L}:\nds_read_b32 v29, v28 offset:{off}\ns_waitcnt lgkmcnt(0)\nv_readfirstlane_b32 s43, v29\ns_cmp_lt_u32 s43, {4*cnt[off]}\ns_cbranch_scc1 {L}\ns_mov_b64 exec, -1")
    def poll(label, loads, words, slp=None):
        e(f"s_mov_b32 s66, 0\n{label}:")
        for l in loads: e(l)
        e("s_waitcnt vmcnt(0)")
        w = list(words)
        e(f"v_max_u32 v31, {w[0]}, {w[1]}")
        w = w[2:]
        while len(w) >= 2:
            e(f"v_max3_u32 v31, v31, {w[0]}, {w[1]}"); w = w[2:]
        if w: e(f"v_max_u32 v31, v31, {w[0]}")
        e(f"v_cmp_eq_u32 vcc, -1, v31\ns_cbranch_vccz {label}_ok\ns_mov_b64 exec, vcc\ns_add_u32 s66, s66, 1\ns_cmp_gt_u32 s66, 400000\ns_cbranch_scc1 {label}_ok")
        e(f"s_sleep {slp or sleep}\ns_branch {label}\n{label}_ok:\ns_mov_b64 exec, -1")
    def red4():
        for i in range(2):
            e(f"v_add_f32_dpp v{48+i}, v{48+i}, v{48+i} row_ror:8 row_mask:0xf bank_mask:0x3")
            e(f"v_add_f32_dpp v{48+i}, v{50+i}, v{50+i} row_ror:8 row_mask:0xf bank_mask:0xc")
        e("v_add_f32_dpp v48, v48, v48 row_half_mirror row_mask:0xf bank_mask:0x5\ns_nop 0\nv_add_f32_dpp v48, v49, v49 row_half_mirror row_mask:0xf bank_mask:0xa\ns_nop 1")
        e("v_add_f32_dpp v48, v48, v48 quad_perm:[1,0,3,2] row_mask:0xf bank_mask:0xf\ns_nop 1\nv_add_f32_dpp v48, v48, v48 quad_perm:[2,3,0,1] row_mask:0xf bank_mask:0xf")
        e("v_mov_b32 v49, v48\ns_nop 1\nv_permlane16_swap_b32 v48, v49\ns_nop 1\nv_add_f32 v48, v48, v49")

    e("s_cmp_ge_u32 s2, 256\ns_cbranch_scc1 L_end")
    if stamps: e("s_mov_b32 m0, 0\nv_mov_b32 v62, 0\nv_mov_b32 v63, 0")
    e("s_load_dwordx4 s[4:7], s[0:1], 8")
    e("s_load_dwordx4 s[44:47], s[0:1], 80")
    e("s_load_dwordx2 s[20:21], s[0:1], 0")
    e("s_load_dwordx4 s[24:27], s[0:1], 24")
    e("s_load_dwordx4 s[28:31], s[0:1], 48\ns_load_dwordx4 s[32:35], s[0:1], 64")
    if cpf:
        e("s_getpc_b64 s[90:91]\nL_pc:\nv_lshlrev_b32 v4, 4, v0\nv_add_u32 v5, 8192, v4\nv_add_u32 v6, 16384, v4\nv_min_u32 v6, (L_end-L_pc-16)&0xfffffff0, v6")
        e("global_load_dword v61, v4, s[90:91]\nglobal_load_dword v61, v5, s[90:91]\nglobal_load_dword v61, v6, s[90:91]")
    e("v_and_b32 v1, 63, v0\nv_lshrrev_b32 v2, 6, v0\nv_lshlrev_b32 v1, 4, v1\nv_readfirstlane_b32 s3, v2")
    e("s_mov_b32 s36, 0xaaaaaaaa\ns_mov_b32 s37, 0xaaaaaaaa\ns_mov_b32 s38, 0xcccccccc\ns_mov_b32 s39, 0xcccccccc")
    e("s_lshr_b32 s40, s2, 1\ns_xor_b32 s41, s40, s2\ns_and_b32 s41, s41, 1\ns_and_b32 s48, s40, 1")
    e("s_bfe_u32 s40, s2, 0x10002\ns_lshl_b32 s40, s40, 1\ns_or_b32 s77, s41, s40")
    e("s_lshr_b32 s51, s2, 3\ns_lshl_b32 s51, s51, 2\ns_add_u32 s51, s51, s77\ns_and_b32 s49, s51, 31\ns_lshr_b32 s50, s2, 6")
    e("v_bfe_u32 v2, v0, 4, 2\nv_and_b32 v3, 15, v0")
    e("s_cmp_ge_u32 s3, 4\ns_cbranch_scc1 L_helper")
    fstamp()
    e("s_lshl_b32 s54, s51, 21")
    def setoff(k, dst):
        e(f"s_sub_u32 s40, 127, {k}\ns_cmp_eq_u32 s48, 0\ns_cselect_b32 s40, {k}, s40\ns_lshr_b32 s41, s40, 2\ns_lshl_b32 s41, s41, 16\ns_and_b32 s42, s40, 3\ns_lshl_b32 s42, s42, 12\ns_add_u32 {dst}, s54, s41\ns_add_u32 {dst}, {dst}, s42")
    setoff("s3", "s52")
    e("s_mov_b32 s57, s52\ns_mov_b32 s53, 0x10000\ns_cmp_eq_u32 s48, 0\ns_cselect_b32 s53, s53, 0xffff0000\ns_cselect_b32 s55, 1, 0x10000\ns_cselect_b32 s56, 0, 16")
    e("s_waitcnt lgkmcnt(0)\ns_mov_b32 s8, s6\ns_mov_b32 s9, s7")
    a.srd(4, 4, 1 << 28); a.srd(12, 46, WSZ)
    RA, RB, RC = 128, 192, 64
    FL = [kf]
    def ld(i, rb):
        if i % 4 == 0: e(f"s_add_u32 s22, s52, {(i//4)*16384}")
        e(f"buffer_load_dwordx4 v[{rb+4*i}:{rb+4*i+3}], v1, s[4:7], s22 offen offset:{(i%4)*1024} {FL[0]}")
    for blk, rb in enumerate((RA, RB, RC)[:pre]):
        for i in range(16):
            if blk == 0 and i == kfirst: e("s_barrier")
            ld(i, rb)
        e("s_add_u32 s52, s52, s53")
        if stamps >= 2 and blk < 2: fstamp()
    masks()
    e("v_mov_b32 v20, 0\nv_mov_b32 v21, 0\nv_mov_b32 v22, 0\nv_mov_b32 v23, 0\nv_mov_b32 v24, 0xff7fffff\nv_mov_b32 v25, 0")
    e(f"v_lshlrev_b32 v26, 5, v3\nv_mov_b32 v27, {L_PR}\ns_mov_b32 s65, 0")
    e(f"v_and_b32 v56, 7, v0\nv_lshl_add_u32 v56, v2, 5, v56\nv_bfe_u32 v29, v0, 3, 1\nv_lshl_add_u32 v56, v29, 7, v56\nv_lshlrev_b32 v56, 2, v56\ns_lshl_b32 s40, s3, 10\nv_add_u32 v56, s40, v56\ns_lshl_b32 s40, s3, 3\nv_mov_b32 v57, s40")
    for r in range(4): e(f"ds_write_b32 v56, v20 offset:{L_OB+32*r}")
    e(f"ds_write_b64 v57, v[24:25] offset:{L_MLB}\nv_add_u32 v56, {L_OA}, v56\nv_add_u32 v57, {L_ML}, v57\ns_mov_b32 s87, 0\ns_mov_b32 s88, 0xffff")
    if hostR: e(f"s_cmp_lt_u32 s2, 112\ns_cselect_b32 s40, 1, 0\ns_cmp_eq_u32 s48, 0\ns_cselect_b32 s87, s40, 0\ns_cmp_eq_u32 s87, 1\ns_cselect_b32 s88, {NM4-hostR}, s88")
    e(f"s_mul_i32 s40, s3, {18*256}\nv_lshrrev_b32 v60, 2, v1\nv_add_u32 v58, s40, v60\nv_mov_b32 v59, v58")
    e(f"s_lshl_b32 s40, s51, 8\ns_add_u32 s40, s40, {WS_TK}\ns_add_u32 s74, s46, s40\ns_addc_u32 s75, s47, 0\ns_lshl_b32 s73, s51, 15\ns_add_u32 s73, s73, {WS_SG}\nv_mov_b32 v61, {L_PX}")
    fstamp()
    e("s_barrier")
    e("ds_read_b64 v[28:29], v61")
    for w in range(4):
        rb = (32, 40, 48, 12)[w]
        e(f"ds_read_b128 v[{rb}:{rb+3}], v26 offset:{L_QP+512*w}\nds_read_b128 v[{rb+4}:{rb+7}], v26 offset:{L_QP+512*w+16}")
    e("s_waitcnt lgkmcnt(0)")
    for j in range(8):
        e(f"v_add_f32 v{32+j}, v{32+j}, v{40+j}\nv_add_f32 v{48+j}, v{48+j}, v{12+j}\nv_add_f32 v{32+j}, v{32+j}, v{48+j}")
    for j in range(4): e(f"v_cvt_pk_bf16_f32 v{4+j}, v{32+2*j}, v{33+2*j}")
    e("v_readfirstlane_b32 s71, v28\nv_readfirstlane_b32 s70, v29")
    def A(i): return f"v{32+i}"
    def kblk(src, wait, issue, glob=False):
        fstamp()
        for i in range(16):
            e(f"s_waitcnt vmcnt({wait(i)})")
            for j in range(4):
                e(f"v_dot2_f32_bf16 {A(i)}, v{src+4*i+j}, v{4+j}, {'0' if j == 0 else A(i)}")
            issue(i)
        for i in range(8):
            e(f"v_add_f32_dpp {A(i)}, {A(i)}, {A(i)} row_ror:8 row_mask:0xf bank_mask:0x3")
            e(f"v_add_f32_dpp {A(i)}, {A(i+8)}, {A(i+8)} row_ror:8 row_mask:0xf bank_mask:0xc")
        for i in range(4):
            e(f"v_add_f32_dpp {A(i)}, {A(i)}, {A(i)} row_half_mirror row_mask:0xf bank_mask:0x5")
            e(f"v_add_f32_dpp {A(i)}, {A(i+4)}, {A(i+4)} row_half_mirror row_mask:0xf bank_mask:0xa")
        e(f"v_cndmask_b32 v28, {A(1)}, {A(0)}, s[36:37]\nv_cndmask_b32 v29, {A(0)}, {A(1)}, s[36:37]")
        e(f"v_cndmask_b32 v30, {A(3)}, {A(2)}, s[36:37]\nv_cndmask_b32 v31, {A(2)}, {A(3)}, s[36:37]")
        e("v_add_f32_dpp v29, v28, v29 quad_perm:[1,0,3,2] row_mask:0xf bank_mask:0xf")
        e("v_add_f32_dpp v31, v30, v31 quad_perm:[1,0,3,2] row_mask:0xf bank_mask:0xf")
        e("v_cndmask_b32 v28, v31, v29, s[38:39]\nv_cndmask_b32 v30, v29, v31, s[38:39]\ns_nop 0")
        e("v_add_f32_dpp v30, v28, v30 quad_perm:[2,3,0,1] row_mask:0xf bank_mask:0xf")
        a.rbf("v30"); e("v_mul_f32 v30, 0x3db504f3, v30"); a.rbf("v30")
        e("v_max_f32 v24, v30, v24")
        if glob:
            if not abl & 64: e("buffer_store_dword v30, v60, s[12:15], s58 offen sc1")
        else:
            e(f"ds_write_b32 v58, v30 offset:{L_SC}\nv_add_u32 v58, 256, v58")
            e("s_add_u32 s65, s65, 1\nv_mov_b32 v26, s65\nds_max_u32 v27, v26")
    def vblk(src, wait, issue, pre):
        fstamp()
        e(f"v_sub_f32 v30, v31, v24\nv_mul_f32 v30, {LOG2E}, v30\nv_exp_f32 v30, v30")
        pre()
        e("s_nop 0\nv_add_f32 v25, v25, v30\nv_cvt_pk_bf16_f32 v30, v30, v30\ns_nop 1")
        for i in range(16):
            bb = 12 + 4 * (i & 1)
            for r in range(4):
                e(f"v_and_b32_dpp v{bb+r}, v30, v{8+r} row_newbcast:{i} row_mask:0xf bank_mask:0xf")
            e(f"s_waitcnt vmcnt({wait(i)})\ns_nop 0")
            e(f"v_mfma_f32_16x16x32_bf16 v[20:23], v[{src+4*i}:{src+4*i+3}], v[{bb}:{bb+3}], v[20:23]")
            issue(i)
    none = lambda i: None
    def ask(off): e(f"s_mov_b32 s72, s55\ns_atomic_add s72, s[74:75], {off} glc")
    def decode(base, fail, keep=False):
        e(f"s_waitcnt lgkmcnt(0)\ns_sub_u32 s72, s72, {base}\ns_and_b32 s42, s72, 0xffff\ns_lshr_b32 s43, s72, 16\ns_add_u32 s42, s42, s43\ns_cmp_ge_u32 s42, {NM4}\ns_cbranch_scc1 {fail}")
        if keep: e("s_mov_b32 s89, s42")
        e(f"s_lshr_b32 s72, s72, s56\ns_and_b32 s72, s72, 0xffff\ns_add_u32 s72, s72, {4*NS}")
        setoff("s72", "s52")
        e("s_lshl_b32 s59, s40, 8\ns_add_u32 s59, s59, s73")
    if pre == 3:
        kblk(RA, lambda i: 47, lambda i: ld(i, RA))
        kblk(RB, lambda i: 47 - i, none)
        kblk(RC, lambda i: 31 - i, none)
    else:
        kblk(RA, lambda i: 31, lambda i: ld(i, RA))
        kblk(RB, lambda i: 31 - i, none)
    if kdyn:
        e(f"L_k:\ns_add_u32 s52, s52, s53\ns_cmp_lg_u32 s65, {NS-2}\ns_cbranch_scc1 L_k2")
        ask(0)
        e("L_k2:")
        kblk(RA, lambda i: 15, lambda i: ld(i, RA))
        e(f"s_cmp_lt_u32 s65, {NS-1}\ns_cbranch_scc1 L_k\ns_mov_b32 s86, 0")
        decode("s71", "L_kl0")
        ask(0)
        e("s_mov_b32 s86, 1\ns_branch L_kl1\nL_kl0:\ns_mov_b32 s52, s57\ns_mov_b32 s4, s8\ns_mov_b32 s5, s9\nL_kl1:")
        kblk(RA, lambda i: 15, lambda i: ld(i, RA))
        e("s_cmp_eq_u32 s86, 0\ns_cbranch_scc1 L_kdone")
        e("L_kd:\ns_mov_b32 s58, s59\ns_mov_b32 s86, 0")
        decode("s71", "L_kd0")
        ask(0)
        e("s_mov_b32 s86, 1\ns_branch L_kd1\nL_kd0:\ns_mov_b32 s52, s57\ns_mov_b32 s4, s8\ns_mov_b32 s5, s9\nL_kd1:")
        kblk(RA, lambda i: 15, lambda i: ld(i, RA), glob=True)
        e("s_cmp_lg_u32 s86, 0\ns_cbranch_scc1 L_kd\nL_kdone:")
    else:
        e("L_k:\ns_add_u32 s52, s52, s53")
        kblk(RA, lambda i: 15, lambda i: ld(i, RA))
        e(f"s_cmp_lt_u32 s65, {NS}\ns_cbranch_scc1 L_k\ns_add_u32 s72, s3, {4*NS}")
        setoff("s72", "s58")
        e(f"s_lshl_b32 s58, s40, 8\ns_add_u32 s58, s58, s73\ns_ashr_i32 s59, s53, 6\ns_mov_b32 s64, {NS}")
        e("L_kd:\ns_add_u32 s52, s52, s53\ns_cmp_lt_u32 s64, 15\ns_cbranch_scc1 L_kd1\ns_mov_b32 s52, s57\ns_mov_b32 s4, s8\ns_mov_b32 s5, s9\nL_kd1:")
        kblk(RA, lambda i: 15, lambda i: ld(i, RA), glob=True)
        e("s_add_u32 s58, s58, s59\ns_add_u32 s64, s64, 1\ns_cmp_lt_u32 s64, 16\ns_cbranch_scc1 L_kd")
    if stamps: e("s_memrealtime s[68:69]\ns_waitcnt lgkmcnt(0)\nv_writelane_b32 v62, s68, 63")
    allsum("v24", "v29", "max")
    e(f"s_lshl_b32 s40, s3, 2\nv_add_u32 v28, s40, v61\nds_write_b32 v28, v24 offset:16\ns_waitcnt lgkmcnt(0)\nds_read_b32 v31, v59 offset:{L_SC}\nv_add_u32 v59, 256, v59\ns_mov_b32 s64, 0")
    FL[0] = vf
    def pre_own(): e(f"ds_read_b32 v31, v59 offset:{L_SC}\nv_add_u32 v59, 256, v59")
    e(f"L_v:\ns_add_u32 s52, s52, s53\ns_waitcnt lgkmcnt(0)\ns_cmp_lg_u32 s64, {NS-2}\ns_cbranch_scc1 L_v2")
    e("L_vw:\nds_read_b128 v[32:35], v61\nds_read_b128 v[36:39], v61 offset:16\ns_waitcnt lgkmcnt(0)\nv_readfirstlane_b32 s40, v34\ns_cmp_lg_u32 s40, 0\ns_cbranch_scc1 L_vw1\ns_sleep 8\ns_branch L_vw\nL_vw1:")
    e(f"v_max3_f32 v35, v35, v36, v37\nv_max3_f32 v35, v35, v38, v39\nv_sub_f32 v29, v24, v35\nv_mul_f32 v29, {LOG2E}, v29\nv_exp_f32 v29, v29\nv_mov_b32 v24, v35\nv_mul_f32 v25, v25, v29")
    for r in range(4): e(f"v_mul_f32 v{20+r}, v{20+r}, v29")
    ask(4)
    e("L_v2:")
    vblk(RA, lambda i: 15, lambda i: ld(i, RA), pre_own)
    e("s_add_u32 s64, s64, 1\ns_add_u32 s65, s65, 1\nv_mov_b32 v26, s65\nds_max_u32 v27, v26\ns_cmp_lg_u32 s64, 3\ns_cbranch_scc1 L_v3")
    e("v_mov_b32 v26, 1\ns_mov_b64 exec, 1\nds_add_u32 v27, v26 offset:20\ns_mov_b64 exec, -1\nL_v3:")
    e(f"s_cmp_lt_u32 s64, {NS-1}\ns_cbranch_scc1 L_v")
    e("L_vd:")
    decode("s70", "L_vlast", keep=True)
    e(f"s_add_u32 s72, s70, {NM4}\ns_cmp_ge_u32 s89, s88\ns_cbranch_scc1 L_noask")
    ask(4)
    e("L_noask:")
    def pre_sh(): e("buffer_load_dword v31, v60, s[12:15], s59 offen sc1" if not abl & 64 else "s_nop 0")
    vblk(RA, lambda i: 15, lambda i: ld(i, RA), pre_sh)
    e("s_waitcnt vmcnt(16)\ns_branch L_vd\nL_vlast:")
    if steal:
        e("s_mov_b32 s86, 0\ns_cmp_lg_u32 s87, 0\ns_cbranch_scc1 L_nosib\nds_read_b128 v[48:51], v61 offset:32\ns_waitcnt lgkmcnt(0)\nv_readfirstlane_b32 s40, v48\nv_readfirstlane_b32 s70, v50\ns_cmp_eq_u32 s40, 0\ns_cbranch_scc1 L_nosib")
        e("s_xor_b32 s74, s74, 256\ns_xor_b32 s54, s54, 0x200000\ns_xor_b32 s73, s73, 0x8000")
        ask(4)
        e("s_mov_b32 s86, 1\nL_nosib:")
    vblk(RA, lambda i: 15 - i, none, lambda: None)
    fstamp()
    allsum("v25", "v29")
    for r in range(4): e(f"ds_write_b32 v56, v{20+r} offset:{32*r}")
    e("ds_write_b64 v57, v[24:25]")
    if steal:
        e("s_cmp_eq_u32 s86, 0\ns_cbranch_scc1 L_done")
        decode("s70", "L_done")
        pre_sh()
        for i in range(16): ld(i, RA)
        e(f"s_mov_b32 s87, 1\nv_add_u32 v56, {L_OB-L_OA}, v56\nv_add_u32 v57, {L_MLB-L_ML}, v57")
        ask(4)
        e("v_mov_b32 v20, 0\nv_mov_b32 v21, 0\nv_mov_b32 v22, 0\nv_mov_b32 v23, 0\nv_mov_b32 v24, v49\nv_mov_b32 v25, 0\ns_waitcnt vmcnt(16)\ns_branch L_vd\nL_done:")
    e("v_mov_b32 v26, 1\ns_mov_b64 exec, 1\ns_waitcnt lgkmcnt(0)\nds_add_u32 v27, v26 offset:16\ns_mov_b64 exec, -1")
    e("L_sfin:")
    if stamps:
        e("s_cmp_lg_u32 s3, 0\ns_cbranch_scc1 L_end")
        fstamp_store("v62", 0)
    e("s_endpgm")
    e("L_helper:")
    S = "v63"
    fstamp(S)
    e("s_sub_u32 s3, s3, 4")
    if prio: e(f"s_setprio {prio}")
    e("s_lshl_b32 s58, s50, 1\ns_add_u32 s58, s58, s48")
    e("v_lshlrev_b32 v26, 13, v2\nv_lshl_add_u32 v26, v3, 4, v26")
    e(f"v_mov_b32 v20, 0\nv_mov_b32 v21, 0\nv_mov_b32 v22, 0\nv_mov_b32 v23, 0\nv_mov_b32 v28, {L_PR}\nds_write_b128 v28, v[20:23]\nds_write_b128 v28, v[20:23] offset:16")
    e("s_lshl_b32 s40, s49, 8\ns_lshl_b32 s41, s58, 19\ns_add_u32 s40, s40, s41\ns_lshl_b32 s41, s3, 17\ns_add_u32 s40, s40, s41")
    e("s_lshl_b32 s41, s3, 10\ns_waitcnt lgkmcnt(0)")
    if dbgt:
        e("s_cmp_lg_u32 s3, 0\ns_cbranch_scc1 L_d0"); dstamp(2, True); e("L_d0:")
    a.srd(16, 20, 4096)
    e("buffer_load_dwordx4 v[48:51], v1, s[16:19], s41 offen")
    a.srd(16, 24, 512 * 4096 * 2)
    if abl & 8: e("s_mov_b32 s18, 0")
    if kfirst: e("s_barrier")
    for t in range(4):
        e(f"buffer_load_dwordx4 v[{64+4*t}:{67+4*t}], v26, s[16:19], s40 offen {wqf}\ns_add_u32 s40, s40, 0x8000")
    if not kfirst: e("s_barrier")
    a.srd(12, 46, WSZ)
    e(f"s_lshl_b32 s42, s49, 8\ns_add_u32 s76, s42, {WS_EP}\ns_add_u32 s42, s46, s76\ns_addc_u32 s43, s47, 0\ns_load_dwordx2 s[56:57], s[42:43], 0 glc\ns_xor_b32 s42, s42, 256\ns_load_dwordx2 s[82:83], s[42:43], 0 glc")
    e(f"s_lshl_b32 s42, s51, 8\ns_add_u32 s42, s42, {WS_TK}\ns_add_u32 s42, s46, s42\ns_addc_u32 s43, s47, 0\ns_mov_b32 s72, 0\ns_mov_b32 s73, 0\ns_cmp_lg_u32 s3, s50\ns_cbranch_scc1 L_nobase\ns_load_dwordx2 s[72:73], s[42:43], 0 glc\nL_nobase:")
    masks()
    e(f"s_lshl_b32 s67, s3, 12\ns_add_u32 s67, s67, {L_TR}\nv_add_u32 v24, s67, v1\nv_mov_b32 v28, {L_PR}")
    e("s_mov_b32 s62, 0x01000100\ns_mov_b32 s63, 0x03020302")
    e("s_lshl_b32 s40, s3, 11\nv_lshlrev_b32 v58, 1, v1\nv_add_u32 v58, s40, v58")
    e("s_lshl_b32 s41, s58, 8\ns_add_u32 s40, s40, s41\nv_lshlrev_b32 v59, 4, v3\nv_lshl_add_u32 v59, v2, 2, v59\nv_add_u32 v59, s40, v59")
    e("s_waitcnt vmcnt(4)")
    fstamp(S)
    for i in range(4):
        e(f"v_lshlrev_b32 v{40+2*i}, 16, v{48+i}\nv_and_b32 v{41+2*i}, 0xffff0000, v{48+i}")
    ln8(40, 52)
    for i in (3, 2, 1, 0): e(f"v_perm_b32 v{41+2*i}, v{40+i}, v{40+i}, s63\nv_perm_b32 v{40+2*i}, v{40+i}, v{40+i}, s62")
    e(f"ds_write_b128 v58, v[40:43] offset:{L_XD}\nds_write_b128 v58, v[44:47] offset:{L_XD+16}")
    for t in range(4): e(f"s_waitcnt vmcnt({3-t})\nds_write_b128 v24, v[{64+4*t}:{67+4*t}] offset:{1024*t}")
    fstamp(S)
    gsync(12)
    e(f"ds_read_b32 v53, v59 offset:{L_XD}")
    for t in range(16): e(f"ds_read_b128 v[{64+4*t}:{67+4*t}], v1 offset:{L_TR+1024*t}")
    e(f"s_cmp_lg_u32 s3, s50\ns_cbranch_scc1 L_nobase2\nv_mov_b32 v44, s72\nv_mov_b32 v45, s73\nv_mov_b32 v46, 0\nv_mov_b32 v47, 0\nv_mov_b32 v54, {L_PX}\nds_write_b128 v54, v[44:47]\nds_write_b32 v54, v46 offset:32\ns_waitcnt lgkmcnt(0)\nL_nobase2:")
    e("s_add_u32 s56, s56, 1\ns_addc_u32 s57, s57, 0\nv_mov_b32 v42, s56\nv_mov_b32 v43, s57\nv_mov_b32 v46, s56\nv_mov_b32 v47, s57")
    e("s_lshl_b32 s40, s49, 2\ns_add_u32 s40, s40, s3\ns_lshl_b32 s40, s40, 3\ns_add_u32 s40, s40, s58\ns_lshl_b32 s40, s40, 10")
    e(f"s_add_u32 s40, s40, {WS_Q}\nv_lshlrev_b32 v52, 8, v2\nv_lshl_add_u32 v52, v3, 4, v52\ns_waitcnt lgkmcnt(15)")
    for t in range(16):
        bb = 12 + 4 * (t & 1)
        for r in range(4):
            e(f"v_and_b32_dpp v{bb+r}, v53, v{8+r} row_newbcast:{t} row_mask:0xf bank_mask:0xf")
        e(f"s_waitcnt lgkmcnt({15-t})\ns_nop 0")
        e(f"v_mfma_f32_16x16x32_bf16 v[20:23], v[{64+4*t}:{67+4*t}], v[{bb}:{bb+3}], v[20:23]")
    e("s_lshl_b32 s61, s49, 2\ns_add_u32 s61, s61, s50\ns_lshl_b32 s61, s61, 3\ns_lshl_b32 s42, s3, 1\ns_add_u32 s61, s61, s42\ns_lshl_b32 s61, s61, 10")
    e(f"s_add_u32 s61, s61, {WS_Q}\ns_mov_b32 exec_lo, 0x00ff00ff\ns_mov_b32 exec_hi, 0x00ff00ff")
    e("v_mov_b32 v40, v20\nv_mov_b32 v41, v21\nv_mov_b32 v44, v22\nv_mov_b32 v45, v23")
    if not abl & 128: e("buffer_store_dwordx4 v[40:43], v52, s[12:15], s40 offen sc1\nbuffer_store_dwordx4 v[44:47], v52, s[12:15], s40 offen offset:128 sc1")
    e("s_mov_b64 exec, -1")
    fstamp(S)
    a.srd(16, 26, 4096 * 512 * 2)
    if abl & 1: e("s_mov_b32 s18, 0")
    if abl & 2: e("s_mov_b32 s14, 0")
    e("s_cmp_eq_u32 s48, 1\ns_cselect_b32 s18, s18, 0\nv_lshlrev_b32 v27, 10, v2\nv_lshl_add_u32 v27, v3, 4, v27")
    e("s_lshl_b32 s40, s49, 17\ns_lshl_b32 s41, s50, 8\ns_add_u32 s40, s40, s41\ns_lshl_b32 s41, s3, 15\ns_add_u32 s40, s40, s41")
    for t in range(8): e(f"buffer_load_dwordx4 v[{128+4*t}:{131+4*t}], v27, s[16:19], s40 offen {wf}\ns_add_u32 s40, s40, 4096")
    e("v_mov_b32 v28, -1\nv_mov_b32 v29, -1\nv_mov_b32 v30, -1\nv_mov_b32 v31, -1\nv_and_b32 v27, 255, v0")
    e(f"s_lshl_b32 s40, s51, 2\ns_add_u32 s40, s40, s48\ns_lshl_b32 s54, s40, 10\ns_add_u32 s54, s54, {WS_O}\ns_xor_b32 s85, s54, 0x1800\nv_lshlrev_b32 v32, 2, v27")
    e("buffer_store_dword v28, v32, s[12:15], s54 offen sc1\nbuffer_store_dword v28, v32, s[12:15], s85 offen sc1")
    e("v_lshlrev_b32 v33, 16, v2\nv_bfe_u32 v34, v0, 3, 1\nv_lshl_add_u32 v33, v34, 10, v33\nv_and_b32 v34, 7, v0\nv_lshl_add_u32 v33, v34, 2, v33")
    e(f"s_lshl_b32 s60, s50, 14\ns_lshl_b32 s40, s3, 12\ns_add_u32 s60, s60, s40\ns_lshl_b32 s40, s49, 5\ns_add_u32 s60, s60, s40\ns_add_u32 s60, s60, {WS_Y}\ns_cmp_eq_u32 s48, 1\ns_cselect_b32 s60, s60, 0x40000000")
    e("buffer_store_dword v28, v33, s[12:15], s60 offen sc1\nbuffer_store_dword v28, v33, s[12:15], s60 offen offset:2048 sc1")
    e("s_lshr_b32 s79, s2, 3\ns_sub_u32 s79, s79, 16\ns_lshl_b32 s79, s79, 2\ns_add_u32 s79, s79, s77\ns_lshl_b32 s79, s79, 2\ns_add_u32 s79, s79, s3\ns_cmp_eq_u32 s48, 1\ns_cselect_b32 s79, s79, 0x10000")
    e("v_bfe_u32 v36, v0, 2, 1\nv_bfe_u32 v37, v0, 3, 1\nv_lshl_add_u32 v36, v37, 1, v36\nv_bfe_u32 v37, v0, 5, 1\nv_lshl_add_u32 v36, v37, 2, v36")
    e("v_and_b32 v37, 3, v0\nv_bfe_u32 v38, v0, 4, 1\nv_lshl_add_u32 v37, v38, 2, v37\nv_lshlrev_b32 v37, 13, v37\nv_lshl_add_u32 v37, v36, 2, v37")
    e(f"s_lshl_b32 s55, s79, 5\ns_add_u32 s55, s55, {WS_H}\ns_cmp_lt_u32 s79, 256\ns_cselect_b32 s55, s55, 0x40000000\nbuffer_store_dword v28, v37, s[12:15], s55 offen sc1")
    e(f"s_lshl_b32 s59, s2, 13\ns_add_u32 s59, s59, {WS_D}\ns_cmp_lt_u32 s2, {NG}\ns_cselect_b32 s59, s59, 0x40000000\ns_add_u32 s40, s59, 4096\nv_lshlrev_b32 v27, 4, v27")
    e("buffer_store_dwordx4 v[28:31], v27, s[12:15], s59 offen sc1\nbuffer_store_dwordx4 v[28:31], v27, s[12:15], s40 offen sc1")
    a.srd(16, 20, 4096)
    e("v_lshlrev_b32 v38, 1, v36\ns_lshl_b32 s40, s79, 4\nbuffer_load_ushort v39, v38, s[16:19], s40 offen")
    e("v_and_b32 v52, 7, v0\nv_and_b32 v53, 63, v0\nv_lshlrev_b32 v53, 1, v53\nv_sub_u32 v52, v53, v52\nv_lshlrev_b32 v52, 2, v52\ns_lshl_b32 s40, s3, 9\nv_add_u32 v52, s40, v52")
    if abl & 2: e("s_mov_b32 s14, 0x40000000")
    if abl & 4: e("s_waitcnt vmcnt(0)\ns_branch L_pq_ok")
    e("s_mov_b32 s66, 0\nL_pq:")
    e("buffer_load_dwordx4 v[64:67], v1, s[12:15], s61 offen sc1\nbuffer_load_dwordx4 v[68:71], v1, s[12:15], s61 offen offset:1024 sc1\ns_waitcnt vmcnt(0)")
    e("v_xor_b32 v72, s56, v66\nv_xor_b32 v73, s57, v67\nv_xor_b32 v74, s56, v70\nv_xor_b32 v75, s57, v71\nv_or3_b32 v72, v72, v73, v74\nv_or_b32 v72, v72, v75")
    e(f"v_cmp_ne_u32 vcc, 0, v72\ns_cbranch_vccz L_pq_ok\ns_mov_b64 exec, vcc\ns_add_u32 s66, s66, 1\ns_cmp_gt_u32 s66, 400000\ns_cbranch_scc1 L_pq_ok\ns_sleep {qsleep}\ns_branch L_pq\nL_pq_ok:\ns_mov_b64 exec, -1")
    e(f"v_add_f32 v64, v64, v68\nv_add_f32 v65, v65, v69\nds_write_b32 v52, v64 offset:{L_QP}\nds_write_b32 v52, v65 offset:{L_QP+32}\ns_waitcnt lgkmcnt(0)")
    fstamp(S)
    e("s_barrier")
    if hexit == 1: e("s_endpgm")
    e(f"v_lshlrev_b32 v39, 16, v39\nv_mov_b32 v28, {L_PR}\nv_mov_b32 v29, 1\ns_mov_b64 exec, 1\nds_add_rtn_u32 v29, v28, v29 offset:4\ns_waitcnt lgkmcnt(0)\ns_mov_b64 exec, -1\nv_readfirstlane_b32 s70, v29")
    e("s_cmp_eq_u32 s48, 0\ns_cbranch_scc1 L_nowo")
    e(f"s_lshl_b32 s41, s3, 13\ns_add_u32 s41, s41, {L_GU}\nv_add_u32 v24, s41, v1")
    e(f"v_bfe_u32 v25, v0, 2, 2\nv_lshlrev_b32 v25, 8, v25\nv_lshl_add_u32 v25, v2, 11, v25\nv_and_b32 v28, 3, v0\nv_lshl_add_u32 v25, v28, 3, v25\ns_lshl_b32 s41, s3, 6\ns_add_u32 s41, s41, {L_GU}\nv_add_u32 v25, s41, v25")
    for t in range(8): e(f"ds_write_b128 v24, v[{128+4*t}:{131+4*t}] offset:{1024*t}")
    gsync(12)
    for tl in range(2):
        for ks in range(4):
            for hh in range(2):
                e(f"ds_read_b64_tr_b16 v[{160+16*tl+4*ks+2*hh}:{161+16*tl+4*ks+2*hh}], v25 offset:{8192*ks+1024*hh+32*tl}")
    e("L_nowo:")
    def wait_progress(lbl, sreg):
        e(f"v_mov_b32 v28, {L_PR}\n{lbl}:\nds_read_b32 v29, v28\ns_waitcnt lgkmcnt(0)\nv_readfirstlane_b32 s40, v29\ns_cmp_ge_u32 s40, {sreg}\ns_cbranch_scc1 {lbl}_ok\ns_sleep 32\ns_branch {lbl}\n{lbl}_ok:")
    def glu_loads():
        e("s_cmp_lt_u32 s3, 2\ns_cselect_b32 s42, s28, s30\ns_cselect_b32 s43, s29, s31")
        a.srd(16, 42, 512 * 1792 * 2)
        e("v_bfe_u32 v26, v0, 2, 4\nv_mul_u32_u24 v26, 3584, v26\nv_and_b32 v28, 3, v0\nv_lshl_add_u32 v26, v28, 4, v26")
        e(f"s_lshl_b32 s40, s78, 6\ns_and_b32 s41, s3, 1\ns_mul_i32 s41, s41, {256*3584}\ns_add_u32 s40, s40, s41")
        for t in range(16): e(f"buffer_load_dwordx4 v[{128+4*t}:{131+4*t}], v26, s[16:19], s40 offen {guf}\ns_add_u32 s40, s40, {16*3584}")
        a.srd(16, 32, 512 * 1792 * 2)
        e("v_lshlrev_b32 v26, 13, v2\nv_lshl_add_u32 v26, v3, 3, v26\ns_lshl_b32 s40, s78, 15\ns_lshl_b32 s41, s3, 8\ns_add_u32 s40, s40, s41")
        for ee in range(8):
            if ee == 4: e("s_add_u32 s40, s40, 4096")
            e(f"buffer_load_dwordx2 v[{64+4*ee}:{65+4*ee}], v26, s[16:19], s40 offen offset:{(ee%4)*1024} {wf}")
            e(f"buffer_load_dwordx2 v[{66+4*ee}:{67+4*ee}], v26, s[16:19], s40 offen offset:{(ee%4)*1024+128} {wf}")
    e(f"s_lshr_b32 s40, s2, 4\ns_lshl_b32 s40, s40, 2\ns_add_u32 s40, s40, s77\ns_lshl_b32 s40, s40, 1\ns_bfe_u32 s78, s2, 0x10003\ns_add_u32 s78, s78, s40\ns_cmp_eq_u32 s48, 0\ns_cselect_b32 s78, s78, 255")
    if touch:
        e(f"s_cmp_ge_u32 s78, {NG}\ns_cbranch_scc1 L_notouch\ns_cmp_lt_u32 s3, 2\ns_cselect_b32 s42, s28, s30\ns_cselect_b32 s43, s29, s31")
        a.srd(16, 42, 512 * 1792 * 2)
        e(f"v_and_b32 v28, 1, v0\nv_mul_u32_u24 v28, {255*3584}, v28\ns_lshl_b32 s40, s78, 6\ns_and_b32 s41, s3, 1\ns_mul_i32 s41, s41, {256*3584}\ns_add_u32 s40, s40, s41\ns_mov_b64 exec, 3\nbuffer_load_dword v61, v28, s[16:19], s40 offen nt")
        a.srd(16, 32, 512 * 1792 * 2)
        e("v_mov_b32 v28, 0\ns_lshl_b32 s40, s78, 15\nbuffer_load_dword v61, v28, s[16:19], s40 offen nt\ns_mov_b64 exec, -1\nL_notouch:")
    e("s_cmp_lg_u32 s70, 3\ns_cbranch_scc1 L_noinit\ns_bfe_u32 s41, s2, 0x20003\ns_add_u32 s41, s41, 1")
    wait_progress("L_iw", "s41")
    e(("s_mov_b32 s64, 1\ns_atomic_add s64, s[44:45], 0\n" if not abl & 256 else "") + "L_noinit:")
    e("v_lshlrev_b32 v34, 10, v2\nv_lshl_add_u32 v35, v3, 5, v34")
    e(f"s_lshl_b32 s40, s49, 12\ns_lshl_b32 s41, s3, 17\ns_add_u32 s88, s40, s41\ns_add_u32 s88, s88, {WS_O}")
    e("v_lshlrev_b32 v4, 4, v3\nv_lshl_add_u32 v4, v2, 2, v4\nv_bfe_u32 v5, v0, 4, 1\nv_bfe_u32 v6, v0, 5, 1\nv_lshlrev_b32 v4, 4, v3\nv_lshl_add_u32 v4, v6, 3, v4\nv_lshl_add_u32 v4, v5, 2, v4\ns_mul_i32 s40, s3, 272\nv_add_u32 v4, s40, v4")
    e("v_bfe_u32 v5, v0, 2, 2\nv_mul_u32_u24 v5, 272, v5\nv_lshl_add_u32 v5, v2, 4, v5")
    e("s_lshl_b32 s40, s3, 5\nv_lshlrev_b32 v6, 2, v36\nv_add_u32 v6, s40, v6\nv_and_b32 v7, 7, v0\nv_lshlrev_b32 v7, 4, v7\nv_bfe_u32 v37, v0, 3, 3\nv_lshl_add_u32 v37, v37, 13, v7")
    e(f"s_lshl_b32 s62, s79, 10\ns_add_u32 s62, s62, {WS_Y}\nv_and_b32 v44, 31, v0\nv_lshlrev_b32 v44, 5, v44\nv_bfe_u32 v45, v0, 5, 1\nv_lshl_add_u32 v44, v45, 4, v44")
    e(f"v_lshlrev_b32 v45, 9, v1\ns_lshl_b32 s63, s79, 5\ns_add_u32 s63, s63, {WS_D}\ns_lshl_b32 s67, s79, 4")
    e(f"s_cmp_lg_u32 s3, 1\ns_cbranch_scc1 L_nokd\nv_mov_b32 v28, {L_PR}\nL_kw:\nds_read_b32 v29, v28 offset:20\ns_waitcnt lgkmcnt(0)\nv_readfirstlane_b32 s40, v29\ns_cmp_ge_u32 s40, 4\ns_cbranch_scc1 L_kw1\ns_sleep 16\ns_branch L_kw\nL_kw1:")
    dstamp(3); dstamp(6, True)
    e(f"v_mov_b32 v28, {L_PX}\nds_read_b128 v[48:51], v28 offset:16\nds_read_b32 v52, v28 offset:4\ns_lshl_b32 s40, s51, 1\ns_add_u32 s40, s40, s48\ns_lshl_b32 s40, s40, 6\ns_add_u32 s40, s40, {WS_KD}\nv_mov_b32 v29, 0\ns_waitcnt lgkmcnt(0)")
    e("v_max_f32 v48, v48, v49\nv_max3_f32 v48, v48, v50, v51\nv_mov_b32 v49, v52\nv_mov_b32 v50, s56\nv_mov_b32 v51, s57\ns_mov_b64 exec, 1\nbuffer_store_dwordx4 v[48:51], v29, s[12:15], s40 offen sc1\ns_xor_b32 s40, s40, 64\ns_mov_b32 s66, 0")
    e("L_kp:\nbuffer_load_dwordx4 v[52:55], v29, s[12:15], s40 offen sc1\ns_waitcnt vmcnt(0)\nv_xor_b32 v54, s56, v54\nv_xor_b32 v55, s57, v55\nv_or_b32 v54, v54, v55\nv_cmp_ne_u32 vcc, 0, v54\ns_cbranch_vccz L_kp1\ns_add_u32 s66, s66, 1\ns_cmp_gt_u32 s66, 400000\ns_cbranch_scc1 L_kp1\ns_sleep 8\ns_branch L_kp")
    e("L_kp1:\nv_mov_b32 v53, v52\nv_mov_b32 v52, 1\nds_write_b64 v28, v[52:53] offset:8\ns_mov_b64 exec, -1\nL_nokd:")
    if steal:
        e("s_cmp_lg_u32 s3, 2\ns_cbranch_scc1 L_nosk")
        wait_progress("L_sw", NS + 4)
        e(f"s_add_u32 s82, s82, 1\ns_addc_u32 s83, s83, 0\ns_xor_b32 s40, s51, 1\ns_lshl_b32 s41, s40, 7\ns_add_u32 s41, s41, {WS_KD}\nv_mov_b32 v29, 0\nv_mov_b32 v28, {L_PX}\ns_mov_b64 exec, 1\ns_mov_b32 s66, 0")
        e("L_sp:\nbuffer_load_dwordx4 v[48:51], v29, s[12:15], s41 offen sc1\nbuffer_load_dwordx4 v[52:55], v29, s[12:15], s41 offen offset:64 sc1\ns_waitcnt vmcnt(0)")
        e("v_xor_b32 v50, s82, v50\nv_xor_b32 v51, s83, v51\nv_xor_b32 v54, s82, v54\nv_xor_b32 v55, s83, v55\nv_or3_b32 v50, v50, v51, v54\nv_or_b32 v50, v50, v55\nv_cmp_ne_u32 vcc, 0, v50\ns_cbranch_vccz L_sp1\ns_add_u32 s66, s66, 1\ns_cmp_gt_u32 s66, 64\ns_cbranch_scc1 L_sp2\ns_sleep 32\ns_branch L_sp")
        e("L_sp1:\nv_max_f32 v50, v48, v52\nv_mov_b32 v48, 1\nds_write_b32 v28, v50 offset:36\nds_write_b32 v28, v49 offset:40\ns_waitcnt lgkmcnt(0)\nds_write_b32 v28, v48 offset:32\nL_sp2:\ns_mov_b64 exec, -1\nL_nosk:")
    wait_progress("L_w2", NS + 3)
    if cpf and cpf2:
        e("v_and_b32 v28, 255, v0\nv_lshlrev_b32 v28, 4, v28\nv_add_u32 v29, (L_lastF-L_pc)&0xffffff80, v28\nv_add_u32 v28, (L_wf-L_pc)&0xffffff80, v28\nv_min_u32 v28, (L_end-L_pc-16)&0xfffffff0, v28")
        e("global_load_dword v61, v28, s[90:91]\nglobal_load_dword v61, v29, s[90:91]")
    e("v_lshrrev_b32 v28, 1, v1\nv_mov_b32 v29, 0")
    a.srd(16, 44, 256)
    if not abl & 256: e("s_mov_b32 s66, 0\nL_initchk:\nbuffer_load_dword v31, v29, s[16:19], 0 offen sc1\ns_waitcnt vmcnt(0)\nv_readfirstlane_b32 s64, v31\ns_cmp_ge_u32 s64, 256\ns_cbranch_scc1 L_initok\ns_add_u32 s66, s66, 1\ns_cmp_gt_u32 s66, 200000\ns_cbranch_scc1 L_initok\ns_sleep 8\ns_branch L_initchk\nL_initok:")
    if hexit == 2: e("s_endpgm")
    e(f"s_setprio 0\nv_mov_b32 v27, {L_PR}")
    if gtrig < 4:
        e(f"s_cmp_ge_u32 s78, {NG}\ns_cbranch_scc1 L_wf\nL_wg:\nds_read_b32 v30, v27 offset:16\ns_waitcnt lgkmcnt(0)\nv_readfirstlane_b32 s40, v30\ns_cmp_ge_u32 s40, {gtrig}\ns_cbranch_scc1 L_wg_ok\ns_sleep 2\ns_branch L_wg\nL_wg_ok:\ns_setprio {prio}")
        glu_loads()
        e("s_setprio 0")
    e(f"L_wf:\nds_read_b32 v30, v27 offset:16\ns_waitcnt lgkmcnt(0)\nv_readfirstlane_b32 s40, v30\ns_cmp_ge_u32 s40, 4\ns_cbranch_scc1 L_wf_ok\ns_sleep {wsleep}\ns_branch L_wf\nL_wf_ok:\ns_setprio {prio}")
    e(f"v_lshrrev_b32 v28, 1, v1\ns_cmp_eq_u32 s3, 0\ns_cselect_b32 s54, s54, s85\ns_mov_b32 s40, {L_OB}\ns_cselect_b32 s40, {L_OA}, s40\nv_add_u32 v30, s40, v28\ns_mov_b32 s40, {L_MLB}\ns_cselect_b32 s40, {L_ML}, s40\nv_mov_b32 v29, s40")
    a.srd(16, 34, 4096)
    fstamp(S)
    if dbgt:
        e("s_cmp_lg_u32 s3, 3\ns_cbranch_scc1 L_d1"); dstamp(4); dstamp(7, True); e("L_d1:")
    e("s_cmp_ge_u32 s3, 2\ns_cbranch_scc1 L_st2")
    e("ds_read_b128 v[48:51], v29\nds_read_b128 v[52:55], v29 offset:16")
    for w in range(4): e(f"ds_read_b64 v[{96+2*w}:{97+2*w}], v30 offset:{1024*w}")
    e("s_waitcnt lgkmcnt(4)\nv_max_f32 v56, v48, v50\nv_max3_f32 v56, v56, v52, v54")
    for w in range(4): e(f"v_sub_f32 v{58+w}, v{48+2*w}, v56")
    for w in range(4): e(f"v_mul_f32 v{58+w}, {LOG2E}, v{58+w}")
    for w in range(4): e(f"v_exp_f32 v{58+w}, v{58+w}")
    e("s_waitcnt lgkmcnt(0)\nv_mul_f32 v57, v58, v49\nv_mul_f32 v96, v96, v58\nv_mul_f32 v97, v97, v58")
    for w in range(1, 4): e(f"v_fmac_f32 v57, v{58+w}, v{49+2*w}\nv_fmac_f32 v96, v{96+2*w}, v{58+w}\nv_fmac_f32 v97, v{97+2*w}, v{58+w}")
    e("v_min_u32 v96, -2, v96\nv_min_u32 v97, -2, v97\nv_min_u32 v56, -2, v56\nv_min_u32 v57, -2, v57")
    e("buffer_store_dwordx2 v[96:97], v28, s[12:15], s54 offen sc1\ns_mov_b64 exec, 1\nbuffer_store_dwordx2 v[56:57], v28, s[12:15], s54 offen offset:512 sc1\ns_mov_b64 exec, -1")
    fstamp(S)
    e(f"L_st2:\ns_cmp_eq_u32 s48, 1\ns_cbranch_scc1 L_st2b\ns_cmp_ge_u32 s78, {NG}\ns_cbranch_scc1 L_fin")
    if gtrig >= 4: glu_loads()
    e("s_mov_b32 s80, 0x05040100\ns_mov_b32 s81, 0x07060302")
    e(f"s_lshl_b32 s41, s3, 14\ns_add_u32 s41, s41, {L_GU}\nv_add_u32 v24, s41, v1")
    e(f"v_bfe_u32 v25, v0, 2, 2\nv_lshlrev_b32 v25, 6, v25\nv_lshl_add_u32 v25, v2, 9, v25\nv_and_b32 v28, 3, v0\nv_lshl_add_u32 v25, v28, 3, v25")
    e(f"s_lshr_b32 s41, s3, 1\ns_lshl_b32 s41, s41, 15\ns_and_b32 s42, s3, 1\ns_lshl_b32 s42, s42, 5\ns_add_u32 s41, s41, s42\ns_add_u32 s41, s41, {L_GU}\nv_add_u32 v25, s41, v25")
    for t in range(16): e(f"s_waitcnt vmcnt({31-t})\nds_write_b128 v24, v[{128+4*t}:{131+4*t}] offset:{1024*t}")
    e("s_waitcnt lgkmcnt(0)\ns_barrier")
    for ks in range(16):
        for hh in range(2):
            e(f"ds_read_b64_tr_b16 v[{128+4*ks+2*hh}:{129+4*ks+2*hh}], v25 offset:{2048*ks+256*hh}")
    e(f"s_and_b32 s40, s78, 7\ns_lshl_b32 s40, s40, 13\ns_lshl_b32 s41, s3, 11\ns_add_u32 s73, s40, s41\ns_add_u32 s73, s73, {WS_H}\nv_lshlrev_b32 v46, 1, v1")
    e(f"s_mul_i32 s40, s3, 1040\nv_add_u32 v47, s40, v1\nv_and_b32 v43, 3, v0\nv_mul_u32_u24 v43, 1040, v43\nv_lshl_add_u32 v43, v2, 4, v43")
    e("v_lshlrev_b32 v40, 2, v3\ns_lshr_b32 s40, s3, 1\ns_lshl_b32 s40, s40, 9\ns_and_b32 s41, s3, 1\ns_lshl_b32 s41, s41, 6\ns_add_u32 s40, s40, s41\nv_add_u32 v40, s40, v40")
    e("v_bfe_u32 v41, v0, 2, 2\nv_lshlrev_b32 v41, 7, v41\nv_lshl_add_u32 v41, v2, 5, v41\nv_and_b32 v61, 3, v0\nv_lshl_add_u32 v41, v61, 3, v41")
    e(f"v_lshlrev_b32 v42, 11, v2\nv_lshl_add_u32 v42, v3, 4, v42\ns_lshl_b32 s59, s78, 13\ns_lshl_b32 s40, s3, 9\ns_add_u32 s59, s59, s40\ns_add_u32 s59, s59, {WS_D}")
    e("s_waitcnt vmcnt(0)")
    for j in range(8):
        for q in range(4):
            e(f"v_perm_b32 v{192+4*j+q}, v{64+4*(2*q+1)+(j>>1)}, v{64+4*(2*q)+(j>>1)}, {'s80' if j%2==0 else 's81'}")
    fstamp(S)
    e("s_branch L_glu\nL_st2b:")
    poll("L_p1", ["buffer_load_dwordx4 v[64:67], v35, s[12:15], s88 offen sc1", "buffer_load_dwordx4 v[68:71], v35, s[12:15], s88 offen offset:16 sc1",
                  "buffer_load_dwordx2 v[56:57], v34, s[12:15], s88 offen offset:512 sc1"], [f"v{i}" for i in range(64, 72)] + ["v56", "v57"], slp=lsleep)
    e("v_mov_b32 v58, v56\nv_mov_b32 v59, v56\ns_nop 1\nv_permlane16_swap_b32 v58, v59\ns_nop 0\nv_max_f32 v58, v58, v59\nv_mov_b32 v59, v58\ns_nop 1\nv_permlane32_swap_b32 v58, v59\ns_nop 0\nv_max_f32 v58, v58, v59")
    e(f"v_sub_f32 v56, v56, v58\nv_mul_f32 v56, {LOG2E}, v56\nv_exp_f32 v56, v56\ns_nop 0\nv_mul_f32 v57, v57, v56")
    for k in range(8): e(f"v_mul_f32 v{64+k}, v{64+k}, v56")
    e("v_mov_b32 v59, v57\ns_nop 0")
    for k in range(4): e(f"v_permlane32_swap_b32 v{64+k}, v{68+k}")
    e("v_permlane16_swap_b32 v57, v59")
    for k in range(4): e(f"v_add_f32 v{64+k}, v{64+k}, v{68+k}")
    e("v_add_f32 v57, v57, v59\nv_mov_b32 v59, v57\nv_permlane16_swap_b32 v64, v66\nv_permlane16_swap_b32 v65, v67\nv_permlane32_swap_b32 v57, v59\ns_nop 0")
    e("v_add_f32 v57, v57, v59\nv_rcp_f32 v57, v57\nv_add_f32 v64, v64, v66\nv_add_f32 v65, v65, v67\nv_mul_f32 v64, v64, v57\nv_mul_f32 v65, v65, v57")
    e(f"v_cvt_pk_bf16_f32 v64, v64, v65\nds_write_b32 v4, v64 offset:{L_ON}\ns_waitcnt lgkmcnt(0)\ns_barrier")
    for ks in range(4): e(f"ds_read_b128 v[{80+4*ks}:{83+4*ks}], v5 offset:{L_ON+64*ks}")
    for ks in range(4):
        e(f"s_waitcnt lgkmcnt({3-ks})")
        for tl in range(2):
            e(f"v_mfma_f32_16x16x32_bf16 v[{20+4*tl}:{23+4*tl}], v[{80+4*ks}:{83+4*ks}], v[{160+16*tl+4*ks}:{163+16*tl+4*ks}], {'0' if ks == 0 else f'v[{20+4*tl}:{23+4*tl}]'}")
    e("s_nop 6\nv_min_u32 v20, -2, v20\nbuffer_store_dword v20, v33, s[12:15], s60 offen sc1\nv_min_u32 v24, -2, v24\nbuffer_store_dword v24, v33, s[12:15], s60 offen offset:2048 sc1")
    fstamp(S)
    e("s_cmp_ge_u32 s79, 256\ns_cbranch_scc1 L_glu")
    poll("L_p3", ["buffer_load_dwordx4 v[48:51], v44, s[12:15], s62 offen sc1"], [f"v{i}" for i in range(48, 52)], slp=s3sleep)
    e("s_nop 3")
    red4()
    a.rbf("v48"); e("v_add_f32 v48, v48, v39"); a.rbf("v48")
    e(f"v_min_u32 v39, -2, v48\nds_write_b32 v6, v39 offset:{L_HG}\ns_waitcnt lgkmcnt(0)\ns_barrier\ns_cmp_lg_u32 s3, 0\ns_cbranch_scc1 L_nohp")
    e(f"ds_read_b128 v[48:51], v7 offset:{L_HG}\ns_waitcnt lgkmcnt(0)\nbuffer_store_dwordx4 v[48:51], v37, s[12:15], s55 offen sc1\nL_nohp:")
    fstamp(S)
    e(f"L_glu:\ns_cmp_ge_u32 s78, {NG}\ns_cbranch_scc1 L_s5")
    poll("L_p4", ["buffer_load_dwordx4 v[48:51], v46, s[12:15], s73 offen sc1", "buffer_load_dwordx4 v[52:55], v46, s[12:15], s73 offen offset:16 sc1"], [f"v{i}" for i in range(48, 56)], slp=hsleep)
    fstamp(S)
    ln8(48, 56)
    e(f"ds_write_b128 v47, v[48:51] offset:{L_HN}")
    e("s_mov_b64 exec, -1\ns_waitcnt lgkmcnt(0)\ns_barrier")
    if gst: fstamp(S)
    for ks in range(12): e(f"ds_read_b128 v[{64+4*ks}:{67+4*ks}], v43 offset:{L_HN+64*ks}")
    for ks in range(12, 16): e(f"ds_read_b128 v[{224+4*(ks-12)}:{227+4*(ks-12)}], v43 offset:{L_HN+64*ks}")
    for ks in range(16):
        e(f"s_waitcnt lgkmcnt({15-ks})")
        c = "0" if ks < 2 else f"v[{20+4*(ks&1)}:{23+4*(ks&1)}]"
        ar = 64 + 4 * ks if ks < 12 else 224 + 4 * (ks - 12)
        e(f"v_mfma_f32_16x16x32_bf16 v[{20+4*(ks&1)}:{23+4*(ks&1)}], v[{ar}:{ar+3}], v[{128+4*ks}:{131+4*ks}], {c}")
    e("s_mov_b64 exec, 0xffff\ns_nop 6")
    for r in range(4): e(f"v_add_f32 v{20+r}, v{20+r}, v{24+r}\nds_write_b32 v40, v{20+r} offset:{L_AC+128*r}")
    e("s_mov_b64 exec, -1\ns_waitcnt lgkmcnt(0)\ns_barrier")
    if gst: fstamp(S)
    e(f"ds_read_b64 v[20:21], v41 offset:{L_AC}\nds_read_b64 v[22:23], v41 offset:{L_AC+512}\ns_waitcnt lgkmcnt(1)")
    e("v_cvt_pk_bf16_f32 v20, v20, v21\nv_and_b32 v21, 0xffff0000, v20\nv_lshlrev_b32 v20, 16, v20\nv_mul_f32 v21, 0xbfb8aa3b, v21\nv_mul_f32 v20, 0xbfb8aa3b, v20\nv_exp_f32 v21, v21\nv_exp_f32 v20, v20")
    e("s_waitcnt lgkmcnt(0)\nv_cvt_pk_bf16_f32 v22, v22, v23\nv_add_f32 v21, 1.0, v21\nv_add_f32 v20, 1.0, v20\nv_rcp_f32 v21, v21\nv_rcp_f32 v20, v20\nv_and_b32 v23, 0xffff0000, v22\nv_lshlrev_b32 v22, 16, v22")
    e("v_cvt_pk_bf16_f32 v20, v20, v21\nv_and_b32 v21, 0xffff0000, v20\nv_lshlrev_b32 v20, 16, v20\nv_mul_f32 v21, v21, v23\nv_mul_f32 v20, v20, v22\nv_cvt_pk_bf16_f32 v36, v20, v21\ns_nop 1")
    for q in range(4): e(f"v_mov_b32_dpp v{32+q}, v36 quad_perm:[{q},{q},{q},{q}] row_mask:0xf bank_mask:0xf")
    e("s_nop 1")
    for j in range(8):
        e(f"v_mfma_f32_16x16x32_bf16 v[{64+4*j}:{67+4*j}], v[32:35], v[{192+4*j}:{195+4*j}], 0")
    e("s_nop 0")
    for j in range(4): e(f"v_min_u32 v{96+j}, -2, v{64+4*j}")
    e("s_nop 0\nbuffer_store_dwordx4 v[96:99], v42, s[12:15], s59 offen sc1")
    for j in range(4, 8): e(f"v_min_u32 v{96+j}, -2, v{64+4*j}")
    e("buffer_store_dwordx4 v[100:103], v42, s[12:15], s59 offen offset:256 sc1")
    fstamp(S)
    e("L_s5:\ns_cmp_ge_u32 s79, 256\ns_cbranch_scc1 L_fin")
    for j in range(8): e(f"v_mov_b32 v{48+j}, 0")
    e(f"s_mov_b32 exec_lo, -1\ns_mov_b32 exec_hi, {(1 << (NG - 32)) - 1:#x}")
    poll("L_p6", ["buffer_load_dwordx4 v[48:51], v45, s[12:15], s63 offen sc1", "buffer_load_dwordx4 v[52:55], v45, s[12:15], s63 offen offset:16 sc1"], [f"v{i}" for i in range(48, 56)], slp=s5sleep)
    e("s_nop 3")
    for i in range(4): e(f"v_permlane32_swap_b32 v{48+i}, v{52+i}")
    e("s_nop 1")
    for i in range(4): e(f"v_add_f32 v{48+i}, v{48+i}, v{52+i}")
    e("s_nop 0")
    red4()
    a.rbf("v48"); e("v_add_f32 v48, v48, v39\nv_cvt_pk_bf16_f32 v48, v48, v48\ns_mov_b32 exec_lo, 0x1111\ns_mov_b32 exec_hi, 0x1111")
    e("buffer_store_short v48, v38, s[16:19], s67 offen")
    dstamp(5)
    fstamp(S)
    e("L_fin:")
    e("s_cmp_lg_u32 s3, 0\ns_cbranch_scc1 L_end")
    e("s_cmp_lg_u32 s58, 1\ns_cbranch_scc1 L_noep\ns_mov_b64 exec, 1\nv_mov_b32 v48, s56\nv_mov_b32 v49, s57\nv_mov_b32 v50, 0\nbuffer_store_dwordx2 v[48:49], v50, s[12:15], s76 offen sc1\nL_noep:")
    fstamp_store(S, 65536)
    e("L_end:\ns_endpgm")
    e('.section .rodata,"a"\n.p2align 6')
    a.descriptor(KN, 256, 96, accum=256)
    return a.text()

if __name__ == "__main__":
    import os, json
    os.makedirs("v18", exist_ok=True)
    names = []
    for spec in sys.argv[1:]:
        kw = {}
        if spec != "base":
            for p in spec.split(","):
                k, v = p.split("=")
                kw[k] = v.replace("+", " ") if k in ("wf", "wqf", "kf", "vf", "guf") else int(v)
        fn = "v18/v18_" + spec.replace(",", "_").replace("=", "") + ".s"
        open(fn, "w").write(gen(**kw))
        names.append(fn)
    print(" ".join(names))
    base = ["work/bench.py", "work/fst9.py", "sequential_preLN__mha_block_cached__glu_gated_glu__decode_np.py", "cdna_kernels/cdna_launch.py", "cdna_kernels/cdna_unwritten_srd_check.py", "work/pair/pair_NS10.s"]
    print(json.dumps(base + ["work/" + f for f in names]))
```
